```python
import torch

def _softmax(x, axis=-1):
    return torch.softmax(x, dim=axis)
def _gelu(x):
    return torch.nn.functional.gelu(x, approximate="tanh")
def _silu(x):
    return torch.nn.functional.silu(x)
def _sigmoid(x):
    return torch.sigmoid(x)
def _layernorm(x, axis=-1, eps=1e-5):
    m = x.mean(dim=axis, keepdim=True)
    v = x.var(dim=axis, keepdim=True, unbiased=False)
    return (x - m) / torch.sqrt(v + eps)
def _scatter_add(tgt, idx, src, axis=0):
    return tgt.clone().index_add_(axis, idx, src)
def _segment_sum(src, seg, n):
    out = torch.zeros((n,) + src.shape[1:], dtype=src.dtype)
    return out.index_add_(0, seg, src)
def _pad(x, pw):
    flat = tuple(v for pair in reversed(pw) for v in pair)
    return torch.nn.functional.pad(x, flat)

kernel_name = 'parallel_sum__grouped_kv_mqa__mixer_token_mlp__prompt'

def setup_inputs():

    _w = (lambda a: (lambda t: t.to(torch.bfloat16) if t.is_floating_point() else t)(torch.as_tensor(a)))
    def _A_setup():
        B, S, D, H = 1, 2048, 640, 32
        Dh = D // H
        return {
            "x": _w((lambda *s: torch.randn(*s, dtype=torch.bfloat16) * 0.05)(B, S, D)),
            "wq": _w((lambda *s: torch.randn(*s, dtype=torch.bfloat16) * 0.05)(D, H * Dh)),
            "wk": _w((lambda *s: torch.randn(*s, dtype=torch.bfloat16) * 0.05)(D, Dh)),
            "wv": _w((lambda *s: torch.randn(*s, dtype=torch.bfloat16) * 0.05)(D, Dh)),
            "wo": _w((lambda *s: torch.randn(*s, dtype=torch.bfloat16) * 0.05)(H * Dh, D)),
        }
    _A_in = _A_setup()

    def _B_setup():
        B, S, D, F = 1, 2048, 640, 1728
        return {
            "x": _w((lambda *s: torch.randn(*s, dtype=torch.bfloat16) * 0.05)(B, S, D)),
            "w1": _w((lambda *s: torch.randn(*s, dtype=torch.bfloat16) * 1.6)(S, F) * (S ** -0.5)),
            "b1": _w((lambda *s: torch.randn(*s, dtype=torch.bfloat16) * 12.8)(F) * 0.02),
            "w2": _w((lambda *s: torch.randn(*s, dtype=torch.bfloat16) * 0.8)(F, S) * (F ** -0.5)),
            "b2": _w((lambda *s: torch.randn(*s, dtype=torch.bfloat16) * 12.8)(S) * 0.02),
        }
    _B_in = _B_setup()

    return {
        "A_x": _A_in["x"],
        "A_wq": _A_in["wq"],
        "A_wk": _A_in["wk"],
        "A_wv": _A_in["wv"],
        "A_wo": _A_in["wo"],
        "B_x": _B_in["x"],
        "B_w1": _B_in["w1"],
        "B_b1": _B_in["b1"],
        "B_w2": _B_in["w2"],
        "B_b2": _B_in["b2"],
    }

def reference(A_x, A_wq, A_wk, A_wv, A_wo, B_x, B_w1, B_b1, B_w2, B_b2):
    def _A_ref(x, wq, wk, wv, wo):
        B, S, D = x.shape
        H = 32
        Dh = D // H
        q = (lambda x, *d: x.permute(*d))((x @ wq).reshape(B, S, H, Dh), 0, 2, 1, 3)
        k = x @ wk
        v = x @ wv
        scores = torch.einsum("bhqd,bkd->bhqk", q, k) * (Dh ** -0.5)
        p = _softmax(scores, axis=-1)
        o = torch.einsum("bhqk,bkd->bhqd", p, v)
        return (lambda x, *d: x.permute(*d))(o, 0, 2, 1, 3).reshape(B, S, H * Dh) @ wo

    def _B_ref(x, w1, b1, w2, b2):
        B, S, D = x.shape
        h = _layernorm(x, axis=-1)
        u = torch.einsum("bsd,sf->bdf", h, w1) + b1
        u = _gelu(u)
        y = torch.einsum("bdf,fs->bds", u, w2) + b2
        return (lambda x, *d: x.permute(*d))(y, 0, 2, 1)

    x = A_x
    xn = _layernorm(x, axis=-1)
    return x + _A_ref(xn, A_wq, A_wk, A_wv, A_wo) + _B_ref(xn, B_w1, B_b1, B_w2, B_b2)
```

```python
import re

TRANS = ("v_exp_f32", "v_log_f32", "v_rcp_f32", "v_rsq_f32", "v_sqrt_f32", "v_sin_f32", "v_cos_f32",
         "v_exp_f16", "v_rcp_iflag_f32")


def regs_of(tok):
    tok = tok.strip().lstrip('-').strip('|')
    if tok.startswith('abs(') and tok.endswith(')'):
        tok = tok[4:-1]
    m = re.fullmatch(r'([vsa])(\d+)', tok)
    if m:
        return [(m.group(1), int(m.group(2)))]
    m = re.fullmatch(r'([vsa])\[(\d+):(\d+)\]', tok)
    if m:
        return [(m.group(1), i) for i in range(int(m.group(2)), int(m.group(3)) + 1)]
    if tok == 'vcc':
        return [('s', 'vcc')]
    if tok == 'exec':
        return [('s', 'exec')]
    if tok == 'm0':
        return [('s', 'm0')]
    return []


class Ins:
    def __init__(self, text):
        self.text = text
        t = text.split(';')[0].strip()
        self.label = t.endswith(':')
        self.op = t.split()[0] if t and not self.label else ''
        rest = t[len(self.op):].strip() if not self.label else ''
        rest = re.sub(r'\b(op_sel|op_sel_hi|neg_lo|neg_hi|quad_perm):\[[^\]]*\]', '', rest)
        ops = [o.strip() for o in rest.split(',')] if rest else []
        self.mods = ''
        if ops:
            parts = ops[-1].split()
            if len(parts) > 1:
                ops[-1] = parts[0]
                self.mods = ' '.join(parts[1:])
        self.ops = ops
        self.full = t
        op = self.op
        self.kind = 'other'
        self.w = []
        self.r = []
        self.passes = 0
        self.srcc = []
        self.srcab = []
        R = lambda i: regs_of(ops[i]) if i < len(ops) else []
        allr = lambda a: [x for i in range(a, len(ops)) for x in R(i)]
        if op.startswith('v_mfma') or op.startswith('v_smfmac'):
            self.kind = 'mfma'
            self.passes = 8 if '32x32' in op else 4
            self.w = R(0)
            if op.startswith('v_smfmac'):
                self.srcc = R(0)
                self.srcab = R(1) + R(2) + R(3)
            else:
                self.srcc = R(3)
                self.srcab = R(1) + R(2)
            self.r = self.srcc + self.srcab
        elif op.startswith('v_'):
            self.kind = 'valu'
            base = re.sub(r'_(e32|e64|dpp|sdwa)$', '', op)
            self.base = base
            self.trans = base in TRANS
            self.dot = base.startswith('v_dot')
            self.dpp = op.endswith('_dpp') or 'row_' in t or 'quad_perm' in t
            self.perm = base.startswith('v_permlane')
            self.rdlane = base in ('v_readlane_b32', 'v_readfirstlane_b32')
            if self.perm:
                self.w = R(0) + R(1)
                self.r = R(0) + R(1)
            elif base.startswith('v_cmp'):
                self.w = R(0)
                self.r = allr(1)
            elif base in ('v_add_co_u32', 'v_sub_co_u32', 'v_addc_co_u32', 'v_mad_u64_u32'):
                self.w = R(0) + R(1)
                self.r = allr(2)
            else:
                self.w = R(0)
                self.r = allr(1)
                if base in ('v_fmac_f32', 'v_dot2c_f32_bf16', 'v_writelane_b32') or self.dpp:
                    self.r += R(0)
                if base == 'v_cndmask_b32' and len(ops) == 3:
                    self.r += [('s', 'vcc')]
        elif op.startswith('ds_'):
            self.kind = 'ds'
            if op.startswith('ds_read') or op.startswith('ds_bpermute') or op.startswith('ds_swizzle'):
                self.w = R(0)
                self.r = allr(1)
            else:
                self.r = allr(0)
        elif op.startswith('buffer_') or op.startswith('global_'):
            self.kind = 'vmem'
            lds = re.search(r'\blds\b', t) is not None
            self.lds = lds
            if 'load' in op and not lds:
                self.w = R(0)
                self.r = allr(1)
            else:
                self.r = allr(0)
            if lds:
                self.r += [('s', 'm0')]
            self.widestore = 'store' in op and ('x3' in op or 'x4' in op)
            if self.widestore:
                self.sdata = R(0) if op.startswith('buffer_') else R(1)
        elif op.startswith('s_'):
            self.kind = 'salu'
            if op in ('s_nop', 's_waitcnt', 's_barrier', 's_endpgm', 's_setprio', 's_sleep') or op.startswith('s_cbranch') \
                    or op == 's_branch' or op.startswith('s_cmp'):
                self.r = allr(0)
            else:
                self.w = R(0)
                self.r = allr(1)
                if 'saveexec' in op:
                    self.w += [('s', 'exec')]

    def states(self):
        if self.label or not self.op:
            return 0
        if self.op == 's_nop':
            return int(self.ops[0]) + 1
        return 1


def need(prod, cons):
    n = 0
    pw = set(prod.w)
    cr = set(cons.r)
    cw = set(cons.w)
    if prod.kind == 'valu':
        vw = {x for x in pw if x[0] in 'va'}
        sw = {x for x in pw if x[0] == 's'}
        if cons.kind == 'mfma' and vw & cr:
            n = max(n, 2)
        if cons.kind == 'valu':
            if prod.trans and not cons.trans and vw & cr:
                n = max(n, 1)
            if cons.rdlane and vw & cr:
                n = max(n, 1)
            if (cons.perm or cons.dpp) and vw & cr:
                n = max(n, 2)
            if sw & cr:
                n = max(n, 4 if cons.base in ('v_readlane_b32', 'v_writelane_b32') else 2)
            if prod.dot and vw & (cr | cw):
                same = cons.base == prod.base
                if not same:
                    n = max(n, 3)
                else:
                    ab = set()
                    for i in (1, 2):
                        ab |= set(regs_of(cons.ops[i]))
                    if vw & ab:
                        n = max(n, 3)
            if (('op_sel' in prod.full and not prod.op.startswith('v_pk_')) or 'sdwa' in prod.op) and vw & (cr | cw):
                n = max(n, 1)
        if prod.dot and cons.kind in ('ds', 'vmem') and vw & cr:
            n = max(n, 3)
        if cons.kind == 'vmem' and sw & cr:
            n = max(n, 5)
        if cons.kind == 'salu' and sw & cr:
            n = max(n, 1)
    if prod.kind == 'mfma':
        big = {4: 8, 8: 12}[prod.passes]
        if cons.kind == 'mfma':
            if pw & set(cons.srcab):
                n = max(n, big)
            if pw & set(cons.srcc):
                if not (prod.w == cons.srcc and prod.passes == cons.passes):
                    n = max(n, big - 2)
            elif pw & cw:
                if prod.passes != cons.passes:
                    n = max(n, big)
        elif cons.kind in ('valu', 'ds', 'vmem'):
            if pw & (cr | cw):
                n = max(n, big)
        if cons.kind == 'valu' and set(prod.srcc) & cw:
            n = max(n, {4: 3, 8: 7}[prod.passes])
    if prod.kind == 'salu' and ('s', 'm0') in pw and cons.kind == 'vmem' and getattr(cons, 'lds', False):
        n = max(n, 1)
    if prod.kind == 'vmem' and getattr(prod, 'widestore', False):
        if set(prod.sdata) & cw:
            n = max(n, 2)
    return n


def fix_hazards(lines):
    out = []
    hist = []
    pos = 0
    nnop = 0
    for ln in lines:
        ins = Ins(ln)
        if ins.label or not ins.op or ins.op.startswith('.'):
            out.append(ln)
            continue
        req = 0
        for p, ppos in hist:
            k = need(p, ins)
            if k:
                have = pos - ppos - 1
                req = max(req, k - have)
        while req > 0:
            k = min(req, 16)
            out.append(f"    s_nop {k - 1}")
            pos += k
            req -= k
            nnop += 1
        out.append(ln)
        hist.append((ins, pos + ins.states() - 1))
        pos += ins.states()
        hist = [(p, q) for p, q in hist if pos - q <= 24]
    return out, nnop


class Asm:
    def __init__(self):
        self.L = []
        self.lg = []
        self.vm = []

    def __call__(self, s):
        for ln in s.split('\n'):
            ln = ln.strip()
            if not ln:
                continue
            self.L.append(ln if ln.endswith(':') else '    ' + ln)

    def label(self, s):
        self.L.append(s + ':')

    def cmt(self, s):
        self.L.append('    ; ' + s)

    def ds(self, text, tag=None):
        self(text)
        self.lg.append(tag)

    def vmem(self, text, tag=None):
        self(text)
        self.vm.append(tag)

    def _cnt(self, q, tags):
        last = -1
        for i, t in enumerate(q):
            if t in tags:
                last = i
        return last

    def wait(self, lg=(), vm=()):
        if isinstance(lg, str):
            lg = (lg,)
        if isinstance(vm, str):
            vm = (vm,)
        parts = []
        i = self._cnt(self.vm, vm)
        if i >= 0:
            n = min(len(self.vm) - 1 - i, 63)
            parts.append(f"vmcnt({n})")
            self.vm = self.vm[len(self.vm) - n:] if n else []
        i = self._cnt(self.lg, lg)
        if i >= 0:
            n = min(len(self.lg) - 1 - i, 15)
            parts.append(f"lgkmcnt({n})")
            self.lg = self.lg[len(self.lg) - n:] if n else []
        if parts:
            self("s_waitcnt " + " ".join(parts))

    def wait_all(self, lg=True, vm=True):
        parts = []
        if vm:
            parts.append("vmcnt(0)")
            self.vm = []
        if lg:
            parts.append("lgkmcnt(0)")
            self.lg = []
        self("s_waitcnt " + " ".join(parts))


class Regs:
    def __init__(self, kind, start):
        self.kind = kind
        self.n = start

    def alloc(self, k=1, align=None):
        if align is None:
            align = 1 if k == 1 else (2 if self.kind == 'v' else (2 if k == 2 else 4))
        self.n = (self.n + align - 1) // align * align
        r = self.n
        self.n += k
        return r


def v(i, k=1):
    return f"v{i}" if k == 1 else f"v[{i}:{i + k - 1}]"


def s(i, k=1):
    return f"s{i}" if k == 1 else f"s[{i}:{i + k - 1}]"


def kernel_text(name, lines, nvgpr, nsgpr):
    body, nnop = fix_hazards(lines)
    txt = f".globl {name}\n.p2align 8\n.type {name},@function\n{name}:\n" + "\n".join(body) + "\n"
    acc = (nvgpr + 3) // 4 * 4
    desc = f""".amdhsa_kernel {name}
  .amdhsa_next_free_vgpr {nvgpr}
  .amdhsa_next_free_sgpr {nsgpr}
  .amdhsa_accum_offset {acc}
  .amdhsa_group_segment_fixed_size 0
  .amdhsa_kernarg_size 104
  .amdhsa_user_sgpr_count 2
  .amdhsa_user_sgpr_kernarg_segment_ptr 1
  .amdhsa_system_sgpr_workgroup_id_x 1
.end_amdhsa_kernel
"""
    return txt, desc, nnop
```

```python
from asmlib import *
from layout import *
import math

XS = 12288
WSZ = 8192
NR = 7
XB = 0
WB = NR * XS
STAT = WB + NR * WSZ
LDS_K1 = STAT + 4 * 384
QIMG = WB
QP = 144
HIMG = WB + 96 * QP
HP = 208


def srd(a, d, lo, hi, size, off=0):
    if off:
        a(f"s_add_u32 s{d}, s{lo}, {off}")
        a(f"s_addc_u32 s{d + 1}, s{hi}, 0")
    else:
        a(f"s_mov_b32 s{d}, s{lo}")
        a(f"s_mov_b32 s{d + 1}, s{hi}")
    a(f"s_mov_b32 s{d + 2}, {size}")
    a(f"s_mov_b32 s{d + 3}, 0x20000")


def bf16r(a, d, x):
    a(f"v_cvt_pk_bf16_f32 v{d}, v{x}, v{x}")
    a(f"v_and_b32 v{d}, 0xffff0000, v{d}")


def gen_k1(st="" ):
    a = Asm()
    V = Regs('v', 1)
    sT, sRB, sCB, sW = 16, 17, 18, 19
    SX, SW, SQ, SH, SKV = 20, 24, 28, 32, 36
    sKC, sOX, sOW, sWST, sMX, sMW, sT0, sT1, sRH, sCK = 40, 41, 42, 43, 44, 45, 46, 47, 48, 49
    t0, t1, t2, t3 = [V.alloc() for _ in range(4)]
    vXo0, vXo1, vWo = V.alloc(), V.alloc(), V.alloc()
    vXa = [[V.alloc() for _ in range(2)] for _ in range(2)]
    vSa = [V.alloc() for _ in range(2)]
    vWa = V.alloc()
    vI, vG = V.alloc(), V.alloc()
    ones = V.alloc(4, 4)
    XF = [[V.alloc(4, 4) for _ in range(6)] for _ in range(2)]
    WF = [[V.alloc(4, 4) for _ in range(2)] for _ in range(2)]
    SF = [[V.alloc(2) for _ in range(3)] for _ in range(2)]
    acc = [V.alloc(4, 4) for _ in range(3)]
    cs = V.alloc(4, 4)
    su = [V.alloc() for _ in range(3)]
    sq = [V.alloc() for _ in range(3)]
    tmp = V.alloc(32, 4)
    nv = V.n

    a(f"""
    s_cmp_ge_u32 s2, 256
    s_cbranch_scc1 K1_end
    s_load_dwordx8 s[4:11], s[0:1], 0
    s_load_dwordx2 s[14:15], s[0:1], 96
    v_lshrrev_b32 v{t0}, 6, v0
    v_and_b32 v0, 63, v0
    s_and_b32 s{sT}, s2, 7
    v_readfirstlane_b32 s{sW}, v{t0}
    s_lshl_b32 s{sT}, s{sT}, 5
    s_lshr_b32 s{sRB}, s2, 3
    s_add_u32 s{sT}, s{sT}, s{sRB}
    s_cmp_ge_u32 s{sT}, 242
    s_cbranch_scc1 K1_end
    s_mul_i32 s{sRB}, s{sT}, 745
    s_lshr_b32 s{sRB}, s{sRB}, 13
    s_mul_i32 s{sCB}, s{sRB}, 11
    s_sub_u32 s{sCB}, s{sT}, s{sCB}
    s_lshr_b32 s{sRH}, s{sW}, 2
    s_and_b32 s{sCK}, s{sW}, 3
    """)
    a(f"""
    v_lshrrev_b32 v{t0}, 3, v0
    v_and_b32 v{t1}, 7, v0
    s_mul_i32 s{sT0}, s{sW}, 12
    v_add_u32 v{t2}, s{sT0}, v{t0}
    v_bfe_u32 v{t3}, v{t2}, 1, 3
    v_xor_b32 v{t3}, v{t3}, v{t1}
    s_mul_i32 s{sT1}, s{sRB}, 96
    v_add_u32 v{t2}, s{sT1}, v{t2}
    v_mul_u32_u24 v{t2}, 1280, v{t2}
    v_lshl_add_u32 v{vXo0}, v{t3}, 4, v{t2}
    v_xor_b32 v{vXo1}, 64, v{vXo0}
    v_add_u32 v{vXo1}, 10240, v{vXo1}
    s_mul_i32 s{sMX}, s{sW}, 1536
    s_lshl_b32 s{sMW}, s{sW}, 10
    s_add_u32 s{sMW}, s{sMW}, {WB}
    v_and_b32 v{vI}, 15, v0
    v_lshrrev_b32 v{vG}, 4, v0
    s_cmp_eq_u32 s{sCB}, 10
    s_cbranch_scc1 K1_kv
    """)

    def issue(stage_slot, role):
        slot = stage_slot % NR
        a(f"s_lshl_b32 s{sOX}, s{sKC}, 7")
        a(f"s_mul_i32 s{sOW}, s{sKC}, {81920 if role == 'Q' else 2560}")
        a(f"s_add_u32 m0, s{sMX}, {XB + slot * XS}")
        a(f"s_add_u32 s{sKC}, s{sKC}, 1")
        a.vmem(f"buffer_load_dwordx4 v{vXo0}, s[{SX}:{SX + 3}], s{sOX} offen lds", f"st{stage_slot}")
        a(f"s_add_u32 m0, s{sMX}, {XB + slot * XS + 1024}")
        a("s_mov_b32 exec_hi, 0")
        a.vmem(f"buffer_load_dwordx4 v{vXo1}, s[{SX}:{SX + 3}], s{sOX} offen lds", f"st{stage_slot}")
        a("s_mov_b32 exec_hi, -1")
        a(f"s_add_u32 m0, s{sMW}, {slot * WSZ}")
        a(f"s_cmp_eq_u32 s{sKC}, 10")
        a.vmem(f"buffer_load_dwordx4 v{vWo}, s[{SW}:{SW + 3}], s{sOW} offen lds", f"st{stage_slot}")
        a(f"s_cselect_b32 s{sKC}, 0, s{sKC}")

    def lds_addrs(role):
        a(f"""
        v_lshrrev_b32 v{t0}, 1, v{vI}
        v_xor_b32 v{t0}, v{t0}, v{vG}
        s_mul_i32 s{sT0}, s{sRH}, {48 * 128}
        v_lshlrev_b32 v{t1}, 7, v{vI}
        v_add_u32 v{t1}, s{sT0}, v{t1}
        v_lshl_add_u32 v{vXa[0][0]}, v{t0}, 4, v{t1}
        v_xor_b32 v{vXa[0][1]}, 64, v{vXa[0][0]}
        v_add_u32 v{vXa[1][0]}, {5 * XS}, v{vXa[0][0]}
        v_add_u32 v{vXa[1][1]}, {5 * XS}, v{vXa[0][1]}
        v_lshlrev_b32 v{t0}, 3, v0
        v_add_u32 v{vSa[0]}, s{sMX}, v{t0}
        v_add_u32 v{vSa[1]}, {5 * XS}, v{vSa[0]}
        """)
        a(f"""
        v_lshrrev_b32 v{t0}, 2, v{vI}
        v_lshl_add_u32 v{t0}, v{vG}, 3, v{t0}
        v_bfe_u32 v{t1}, v{vI}, 1, 1
        v_and_b32 v{t2}, 1, v{vG}
        v_lshlrev_b32 v{t2}, 1, v{t2}
        """)
        if role == 'Q':
            a(f"""
            v_bfe_u32 v{t3}, v{vI}, 3, 1
            v_lshl_or_b32 v{t2}, v{t3}, 2, v{t2}
            s_lshl_b32 s{sT0}, s{sCK}, 1
            v_add_u32 v{t1}, s{sT0}, v{t1}
            v_xor_b32 v{t1}, v{t1}, v{t2}
            v_lshlrev_b32 v{t0}, 7, v{t0}
            v_lshl_add_u32 v{t0}, v{t1}, 4, v{t0}
            v_add_u32 v{t0}, {WB}, v{t0}
            """)
        else:
            a(f"""
            s_and_b32 s{sT0}, s{sCK}, 1
            s_lshl_b32 s{sT0}, s{sT0}, 1
            v_add_u32 v{t1}, s{sT0}, v{t1}
            v_xor_b32 v{t1}, v{t1}, v{t2}
            v_lshlrev_b32 v{t0}, 6, v{t0}
            v_lshl_add_u32 v{t0}, v{t1}, 4, v{t0}
            s_lshr_b32 s{sT0}, s{sCK}, 1
            s_lshl_b32 s{sT0}, s{sT0}, 12
            s_add_u32 s{sT0}, s{sT0}, {WB}
            v_add_u32 v{t0}, s{sT0}, v{t0}
            """)
        a(f"""
        v_and_b32 v{t1}, 1, v{vI}
        v_lshl_add_u32 v{vWa}, v{t1}, 3, v{t0}
        """)
        for i in range(4):
            a(f"v_mov_b32 v{ones + i}, 0x3f803f80")
        for i in range(3):
            a(f"v_mov_b32 v{su[i]}, 0")
            a(f"v_mov_b32 v{sq[i]}, 0")

    def reads(i, role):
        slot = i % NR
        b = i % 2
        st_, off = (0, slot * XS) if slot < 5 else (1, (slot - 5) * XS)
        ksd, hd = (4096, 512) if role == 'Q' else (2048, 256)
        for ks in range(2):
            for h in range(2):
                a.ds(f"ds_read_b64_tr_b16 {v(WF[b][ks] + 2 * h, 2)}, v{vWa} offset:{slot * WSZ + ks * ksd + h * hd}")
            for r in range(3):
                a.ds(f"ds_read_b128 {v(XF[b][ks * 3 + r], 4)}, v{vXa[st_][ks]} offset:{off + r * 2048}")
        for n in range(3):
            a.ds(f"ds_read_b64 {v(SF[b][n], 2)}, v{vSa[st_]} offset:{off + n * 512}")

    def compute(i, role):
        b = i % 2
        dots = []
        for n in range(3):
            for e in range(2):
                dots.append(f"v_dot2c_f32_bf16 v{su[n]}, v{SF[b][n] + e}, v{ones}")
                dots.append(f"v_dot2c_f32_bf16 v{sq[n]}, v{SF[b][n] + e}, v{SF[b][n] + e}")
        for ks in range(2):
            first = (i == 0 and ks == 0)
            for r in range(4):
                d = acc[r] if r < 3 else cs
                x = XF[b][ks * 3 + r] if r < 3 else ones
                w = WF[b][ks]
                A, B = (x, w) if role == 'V' else (w, x)
                c = "0" if first else v(d, 4)
                a(f"v_mfma_f32_16x16x32_bf16 {v(d, 4)}, {v(A, 4)}, {v(B, 4)}, {c}")
                k = 2 if (ks * 4 + r) < 4 else 1
                for _ in range(k):
                    a(dots.pop(0))
        assert not dots

    def mainloop(role):
        for i in range(10):
            a.wait(vm=f"st{i}")
            a("s_barrier")
            if i == 0:
                a.cmt("MARK1")
            if 1 <= i <= 3:
                issue(i + 6, role)
            reads(i, role)
            if i > 0:
                compute(i - 1, role)
            a.wait_all(vm=False)
        compute(9, role)

    def stats(role):
        for sh in (8, 4, 2, 1):
            for n in range(3):
                a(f"v_add_f32_dpp v{su[n]}, v{su[n]}, v{su[n]} row_ror:{sh} row_mask:0xf bank_mask:0xf")
                a(f"v_add_f32_dpp v{sq[n]}, v{sq[n]}, v{sq[n]} row_ror:{sh} row_mask:0xf bank_mask:0xf")
        m, e, mb, r1, m2, x1, x2, r2 = [tmp + i for i in range(8)]
        a(f"""
        v_cmp_eq_u32 vcc, 1, v{vI}
        v_cndmask_b32 v{m}, v{su[0]}, v{su[1]}, vcc
        v_cndmask_b32 v{e}, v{sq[0]}, v{sq[1]}, vcc
        v_cmp_eq_u32 vcc, 2, v{vI}
        v_cndmask_b32 v{m}, v{m}, v{su[2]}, vcc
        v_cndmask_b32 v{e}, v{e}, v{sq[2]}, vcc
        v_mul_f32 v{m}, {f32(1.0 / 640)}, v{m}
        v_mul_f32 v{e}, {f32(1.0 / 640)}, v{e}
        v_fma_f32 v{e}, -v{m}, v{m}, v{e}
        v_max_f32 v{e}, 0, v{e}
        """)
        bf16r(a, mb, m)
        bf16r(a, x1, e)
        a(f"v_add_f32 v{x1}, {f32(1e-5)}, v{x1}")
        bf16r(a, x1, x1)
        a(f"v_sqrt_f32 v{x1}, v{x1}")
        bf16r(a, x1, x1)
        a(f"v_rcp_f32 v{r1}, v{x1}")
        a(f"v_sub_f32 v{m2}, v{m}, v{mb}")
        a(f"v_mul_f32 v{m2}, v{m2}, v{r1}")
        bf16r(a, m2, m2)
        a(f"v_mul_f32 v{x2}, v{e}, v{r1}")
        a(f"v_mul_f32 v{x2}, v{x2}, v{r1}")
        bf16r(a, x2, x2)
        a(f"v_add_f32 v{x2}, {f32(1e-5)}, v{x2}")
        bf16r(a, x2, x2)
        a(f"v_sqrt_f32 v{x2}, v{x2}")
        bf16r(a, x2, x2)
        a(f"v_rcp_f32 v{r2}, v{x2}")
        A1, B1, G, H = [tmp + 8 + i for i in range(4)]
        a(f"v_mul_f32 v{B1}, -v{mb}, v{r1}")
        a(f"v_mul_f32 v{G}, v{r1}, v{r2}")
        a(f"v_sub_f32 v{H}, v{B1}, v{m2}")
        a(f"v_mul_f32 v{H}, v{H}, v{r2}")
        if role == 'Q':
            c = f32(math.log2(math.e) / math.sqrt(20.0))
            a(f"v_mul_f32 v{A1}, {c}, v{r1}")
            a(f"v_mul_f32 v{B1}, {c}, v{B1}")
        else:
            a(f"v_mov_b32 v{A1}, v{r1}")
        a(f"""
        v_lshl_add_u32 v{t0}, v{vI}, 2, v{vG}
        s_mul_i32 s{sT0}, s{sW}, 48
        s_add_u32 s{sT0}, s{sT0}, {STAT}
        v_lshl_add_u32 v{t0}, v{t0}, 2, s{sT0}
        v_cmp_gt_u32 vcc, 3, v{vI}
        s_and_saveexec_b64 s[50:51], vcc
        """)
        for k, r in enumerate((A1, B1, G, H)):
            a.ds(f"ds_write_b32 v{t0}, v{r} offset:{k * 384}")
        a("s_mov_b64 exec, s[50:51]")
        a.wait_all(vm=False)
        a("s_barrier")

    a(f"""
    v_lshrrev_b32 v{t0}, 3, v0
    s_lshl_b32 s{sT0}, s{sW}, 3
    v_add_u32 v{t2}, s{sT0}, v{t0}
    v_bfe_u32 v{t3}, v{t0}, 1, 1
    v_lshlrev_b32 v{t3}, 2, v{t3}
    s_and_b32 s{sT0}, s{sW}, 1
    s_lshl_b32 s{sT0}, s{sT0}, 1
    v_or_b32 v{t3}, s{sT0}, v{t3}
    v_xor_b32 v{t3}, v{t3}, v{t1}
    v_mul_u32_u24 v{t2}, 1280, v{t2}
    v_lshl_add_u32 v{t2}, v{t3}, 4, v{t2}
    s_lshl_b32 s{sT0}, s{sCB}, 7
    v_add_u32 v{vWo}, s{sT0}, v{t2}
    s_add_u32 s{sKC}, s{sCB}, 1
    s_cmp_eq_u32 s{sKC}, 10
    s_cselect_b32 s{sKC}, 0, s{sKC}
    s_waitcnt lgkmcnt(0)
    """)
    srd(a, SX, 4, 5, 2621440)
    srd(a, SW, 6, 7, 819200)
    for i in range(NR):
        issue(i, 'Q')
    srd(a, SQ, 14, 15, 2621440, WS_Q)
    srd(a, SH, 14, 15, 2621440, WS_HT)
    lds_addrs('Q')
    mainloop('Q')
    stats('Q')
    pa = tmp
    a(f"""
    s_mul_i32 s{sT0}, s{sRH}, {48 * 4}
    s_add_u32 s{sT0}, s{sT0}, {STAT}
    v_lshl_add_u32 v{t0}, v{vI}, 2, s{sT0}
    """)
    for i in range(3):
        a.ds(f"ds_read_b32 v{pa + 2 * i}, v{t0} offset:{i * 64}", f"pa{i}")
        a.ds(f"ds_read_b32 v{pa + 2 * i + 1}, v{t0} offset:{384 + i * 64}", f"pa{i}")
    hx = tmp + 8
    hg = XF[0][0]
    assert XF[0][5] + 4 - hg == 24
    lastslot = 9 % NR
    a(f"""
    v_lshrrev_b32 v{t1}, 2, v{vI}
    s_mul_i32 s{sT0}, s{sW}, 12
    v_add_u32 v{t1}, s{sT0}, v{t1}
    v_bfe_u32 v{t2}, v{vI}, 1, 1
    v_lshl_add_u32 v{t2}, v{vG}, 1, v{t2}
    v_and_b32 v{t3}, 1, v{vI}
    v_lshlrev_b32 v{t3}, 3, v{t3}
    """)
    ad = tmp + 14
    for n in range(3):
        a(f"""
        v_add_u32 v{ad}, {4 * n}, v{t1}
        v_bfe_u32 v{ad + 1}, v{ad}, 1, 3
        v_xor_b32 v{ad + 1}, v{ad + 1}, v{t2}
        v_lshl_add_u32 v{ad}, v{ad}, 7, v{t3}
        v_lshl_add_u32 v{ad + 2 + n}, v{ad + 1}, 4, v{ad}
        """)
        a.ds(f"ds_read_b64_tr_b16 {v(hx + 2 * n, 2)}, v{ad + 2 + n} offset:{XB + lastslot * XS}", f"hx{n}")
    a(f"""
    s_mul_i32 s{sT0}, s{sW}, 48
    s_add_u32 s{sT0}, s{sT0}, {STAT + 768}
    v_mov_b32 v{ad}, s{sT0}
    """)
    for n in range(3):
        a.ds(f"ds_read_b128 {v(hg + 4 * n, 4)}, v{ad} offset:{16 * n}", f"hx{n}")
        a.ds(f"ds_read_b128 {v(hg + 12 + 4 * n, 4)}, v{ad} offset:{384 + 16 * n}", f"hx{n}")
    a(f"""
    s_mul_i32 s{sT0}, s{sRH}, {48 * QP}
    s_lshl_b32 s{sT1}, s{sCK}, 5
    s_add_u32 s{sT0}, s{sT0}, s{sT1}
    s_add_u32 s{sT0}, s{sT0}, {QIMG}
    v_mul_u32_u24 v{t0}, {QP}, v{vI}
    v_lshl_add_u32 v{t0}, v{vG}, 3, v{t0}
    v_add_u32 v{t0}, s{sT0}, v{t0}
    """)
    o = tmp + 20
    for i in range(3):
        a.wait(lg=f"pa{i}")
        for j in range(4):
            a(f"v_mul_f32 v{acc[i] + j}, v{acc[i] + j}, v{pa + 2 * i}")
            a(f"v_fmac_f32 v{acc[i] + j}, v{cs + j}, v{pa + 2 * i + 1}")
        a(f"v_cvt_pk_bf16_f32 v{o + 2 * i}, v{acc[i]}, v{acc[i] + 1}")
        a(f"v_cvt_pk_bf16_f32 v{o + 2 * i + 1}, v{acc[i] + 2}, v{acc[i] + 3}")
        a.ds(f"ds_write_b64 v{t0}, {v(o + 2 * i, 2)} offset:{i * 16 * QP}")
    a(f"""
    s_mul_i32 s{sT0}, s{sW}, 24
    s_add_u32 s{sT0}, s{sT0}, {HIMG}
    v_mul_u32_u24 v{t1}, {HP}, v0
    v_add_u32 v{t1}, s{sT0}, v{t1}
    """)
    w4 = XF[1][0]
    for n in range(3):
        a.wait(lg=f"hx{n}")
        for e in range(2):
            a(f"v_lshlrev_b32 v{w4 + 2 * e}, 16, v{hx + 2 * n + e}")
            a(f"v_and_b32 v{w4 + 2 * e + 1}, 0xffff0000, v{hx + 2 * n + e}")
        for j in range(4):
            a(f"v_fma_f32 v{w4 + j}, v{w4 + j}, v{hg + 4 * n + j}, v{hg + 12 + 4 * n + j}")
        a(f"v_cvt_pk_bf16_f32 v{o + 6 + 2 * n}, v{w4}, v{w4 + 1}")
        a(f"v_cvt_pk_bf16_f32 v{o + 6 + 2 * n + 1}, v{w4 + 2}, v{w4 + 3}")
        a.ds(f"ds_write_b64 v{t1}, {v(o + 6 + 2 * n, 2)} offset:{8 * n}")
    ql, qg, hl0, hg0, hl1, hg1, c0, c1 = [XF[1][1] + i for i in range(8)]
    a(f"""
    v_lshrrev_b32 v{t0}, 3, v0
    v_and_b32 v{t1}, 7, v0
    s_mul_i32 s{sT0}, s{sW}, 12
    v_add_u32 v{t0}, s{sT0}, v{t0}
    v_mul_u32_u24 v{ql}, {QP}, v{t0}
    v_lshl_add_u32 v{ql}, v{t1}, 4, v{ql}
    v_add_u32 v{ql}, {QIMG}, v{ql}
    s_mul_i32 s{sT1}, s{sRB}, 96
    v_add_u32 v{t0}, s{sT1}, v{t0}
    v_mul_u32_u24 v{qg}, 1280, v{t0}
    v_lshl_add_u32 v{qg}, v{t1}, 4, v{qg}
    s_lshl_b32 s{sT0}, s{sCB}, 7
    v_add_u32 v{qg}, s{sT0}, v{qg}
    s_lshl_b32 s{sT0}, s{sW}, 3
    s_lshl_b32 s52, s{sCB}, 6
    s_mul_i32 s53, s{sRB}, 192
    """)
    for (hl, hgl, c, add) in ((hl0, hg0, c0, 0), (hl1, hg1, c1, 64)):
        a(f"""
        v_add_u32 v{t0}, {add}, v0
        v_mul_u32_u24 v{t1}, 43, v{t0}
        v_lshrrev_b32 v{t1}, 9, v{t1}
        v_mul_u32_u24 v{t2}, 12, v{t1}
        v_sub_u32 v{t2}, v{t0}, v{t2}
        v_add_u32 v{t1}, s{sT0}, v{t1}
        v_mul_u32_u24 v{hl}, {HP}, v{t1}
        v_lshl_add_u32 v{hl}, v{t2}, 4, v{hl}
        v_add_u32 v{hl}, {HIMG}, v{hl}
        v_add_u32 v{t1}, s52, v{t1}
        v_lshlrev_b32 v{hgl}, 12, v{t1}
        v_lshl_add_u32 v{c}, v{t2}, 4, s53
        v_add_u32 v{hgl}, v{hgl}, v{c}
        """)
        a(f"v_cmp_le_u32 vcc, 4096, v{c}")
        a(f"v_cndmask_b32 v{hgl}, v{hgl}, v{ones}, vcc")
    a.wait_all(vm=False)
    a("s_barrier")
    d = XF[0][0]
    a.ds(f"ds_read_b128 {v(d, 4)}, v{ql}", "a")
    a.ds(f"ds_read_b128 {v(d + 4, 4)}, v{ql} offset:{8 * QP}", "b")
    a.ds(f"ds_read_b128 {v(d + 8, 4)}, v{hl0}", "c")
    a.ds(f"ds_read_b128 {v(d + 12, 4)}, v{hl1}", "d")
    a(f"v_add_u32 v{t0}, 10240, v{qg}")
    a.wait(lg="a")
    a(f"buffer_store_dwordx4 {v(d, 4)}, v{qg}, s[{SQ}:{SQ + 3}], 0 offen {st}")
    a.wait(lg="c")
    a(f"buffer_store_dwordx4 {v(d + 8, 4)}, v{hg0}, s[{SH}:{SH + 3}], 0 offen {st}")
    a.wait(lg="d")
    a("s_mov_b32 exec_hi, 0")
    a(f"buffer_store_dwordx4 {v(d + 4, 4)}, v{t0}, s[{SQ}:{SQ + 3}], 0 offen {st}")
    a(f"buffer_store_dwordx4 {v(d + 12, 4)}, v{hg1}, s[{SH}:{SH + 3}], 0 offen {st}")
    a("s_endpgm")

    a.lg, a.vm = [], []
    a.label("K1_kv")
    a(f"""
    v_lshrrev_b32 v{t0}, 2, v0
    v_and_b32 v{t1}, 3, v0
    v_bfe_u32 v{t3}, v{t0}, 3, 1
    v_lshlrev_b32 v{t3}, 1, v{t3}
    v_xor_b32 v{t3}, v{t3}, v{t1}
    s_lshl_b32 s{sT0}, s{sCK}, 4
    v_add_u32 v{t0}, s{sT0}, v{t0}
    v_mul_u32_u24 v{t0}, 40, v{t0}
    v_lshl_add_u32 v{vWo}, v{t3}, 4, v{t0}
    s_mov_b32 s{sKC}, 0
    s_waitcnt lgkmcnt(0)
    s_cmp_eq_u32 s{sRH}, 0
    s_cselect_b32 s6, s8, s10
    s_cselect_b32 s7, s9, s11
    """)
    srd(a, SX, 4, 5, 2621440)
    srd(a, SW, 6, 7, 25600)
    for i in range(NR):
        issue(i, 'K')
    srd(a, SKV, 14, 15, KV_BYTES, WS_KV)
    lds_addrs('K')
    a(f"s_cmp_ge_u32 s{sCK}, 2")
    a("s_cbranch_scc1 K1_v")
    vm_save = list(a.vm)

    def tb_off(i, sd, stile, st_):
        a(f"""
        s_mul_i32 s{sT0}, s{sRB}, 6
        s_mul_i32 s{sT1}, s{sRH}, 3
        s_add_u32 s{sT0}, s{sT0}, s{sT1}
        s_add_u32 s{sT0}, s{sT0}, {i}
        s_lshr_b32 s{sT1}, s{sT0}, 2
        s_mul_i32 s{sd}, s{sT1}, 6144
        s_bfe_u32 s{sT1}, s{sT0}, 0x10001
        s_mul_i32 s{sT1}, s{sT1}, s{stile}
        s_add_u32 s{sd}, s{sd}, s{sT1}
        s_and_b32 s{sT1}, s{sT0}, 1
        s_mul_i32 s{sT1}, s{sT1}, s{st_}
        s_add_u32 s{sd}, s{sd}, s{sT1}
        """)

    mainloop('K')
    stats('K')
    a(f"""
    s_mul_i32 s{sT0}, s{sRH}, {48 * 4}
    s_add_u32 s{sT0}, s{sT0}, {STAT}
    v_lshl_add_u32 v{t0}, v{vI}, 2, s{sT0}
    """)
    for i in range(3):
        a.ds(f"ds_read_b32 v{pa + 2 * i}, v{t0} offset:{i * 64}", f"pa{i}")
        a.ds(f"ds_read_b32 v{pa + 2 * i + 1}, v{t0} offset:{384 + i * 64}", f"pa{i}")
    a(f"""
    v_lshrrev_b32 v{t1}, 1, v{vG}
    v_lshl_add_u32 v{t1}, v{t1}, 5, v{vI}
    v_and_b32 v{t2}, 1, v{vG}
    v_lshlrev_b32 v{t2}, 3, v{t2}
    v_lshl_add_u32 v{t1}, v{t1}, 4, v{t2}
    v_lshlrev_b32 v{t2}, 8, v{vG}
    v_lshl_add_u32 v{t2}, v{vI}, 3, v{t2}
    v_add_u32 v{t2}, 2048, v{t2}
    v_cmp_le_u32 vcc, 2, v{vG}
    v_cndmask_b32 v{t2}, v{t2}, v{ones}, vcc
    s_mov_b32 s54, 512
    s_mov_b32 s55, 128
    s_cmp_eq_u32 s{sCK}, 0
    s_cselect_b64 vcc, -1, 0
    s_cselect_b32 s54, 1024, s54
    s_cselect_b32 s55, 256, s55
    v_cndmask_b32 v{t1}, v{t2}, v{t1}, vcc
    v_cmp_eq_u32 s[56:57], 1, v{vG}
    s_andn2_b64 s[56:57], s[56:57], vcc
    v_mov_b32 v{t2}, 0x3f80
    v_mov_b32 v{t3}, 0
    """)
    for i in range(3):
        tb_off(i, 58, 54, 55)
        a.wait(lg=f"pa{i}")
        for j in range(4):
            a(f"v_mul_f32 v{acc[i] + j}, v{acc[i] + j}, v{pa + 2 * i}")
            a(f"v_fmac_f32 v{acc[i] + j}, v{cs + j}, v{pa + 2 * i + 1}")
        a(f"v_cvt_pk_bf16_f32 v{o + 2 * i}, v{acc[i]}, v{acc[i] + 1}")
        a(f"v_cvt_pk_bf16_f32 v{o + 2 * i + 1}, v{acc[i] + 2}, v{acc[i] + 3}")
        a(f"v_cndmask_b32 v{o + 2 * i}, v{o + 2 * i}, v{t2}, s[56:57]")
        a(f"v_cndmask_b32 v{o + 2 * i + 1}, v{o + 2 * i + 1}, v{t3}, s[56:57]")
        a(f"buffer_store_dwordx2 {v(o + 2 * i, 2)}, v{t1}, s[{SKV}:{SKV + 3}], s58 offen {st}")
    a("s_endpgm")

    a.lg, a.vm = [], vm_save
    a.label("K1_v")
    mainloop2_role = 'V'

    def reads_v(i):
        reads(i, 'K')
    for i in range(10):
        a.wait(vm=f"st{i}")
        a("s_barrier")
        if 1 <= i <= 3:
            issue(i + 6, 'K')
        reads(i, 'K')
        if i > 0:
            compute(i - 1, 'V')
        a.wait_all(vm=False)
    compute(9, 'V')
    stats('V')
    pv = XF[0][0]
    a(f"""
    s_mul_i32 s{sT0}, s{sRH}, {48 * 4}
    s_add_u32 s{sT0}, s{sT0}, {STAT}
    v_lshl_add_u32 v{t0}, v{vG}, 4, s{sT0}
    """)
    for i in range(3):
        a.ds(f"ds_read_b128 {v(pv + 8 * i, 4)}, v{t0} offset:{i * 64}", f"pa{i}")
        a.ds(f"ds_read_b128 {v(pv + 8 * i + 4, 4)}, v{t0} offset:{384 + i * 64}", f"pa{i}")
    a(f"""
    v_lshrrev_b32 v{t1}, 1, v{vG}
    v_mul_u32_u24 v{t1}, 24, v{t1}
    v_add_u32 v{t1}, v{t1}, v{vI}
    s_sub_u32 s{sT0}, s{sCK}, 2
    s_lshl_b32 s{sT0}, s{sT0}, 4
    v_add_u32 v{t3}, s{sT0}, v{vI}
    v_add_u32 v{t1}, s{sT0}, v{t1}
    v_and_b32 v{t2}, 1, v{vG}
    v_lshlrev_b32 v{t2}, 3, v{t2}
    v_lshl_add_u32 v{t1}, v{t1}, 4, v{t2}
    v_add_u32 v{t1}, 3072, v{t1}
    v_cmp_le_u32 vcc, 24, v{t3}
    v_cndmask_b32 v{t1}, v{t1}, v{ones}, vcc
    v_cmp_le_u32 s[56:57], 20, v{t3}
    s_mov_b32 s54, 1536
    s_mov_b32 s55, 768
    """)
    for i in range(3):
        tb_off(i, 58, 54, 55)
        a.wait(lg=f"pa{i}")
        for j in range(4):
            a(f"v_mul_f32 v{acc[i] + j}, v{acc[i] + j}, v{pv + 8 * i + j}")
            a(f"v_fmac_f32 v{acc[i] + j}, v{cs + j}, v{pv + 8 * i + 4 + j}")
        a(f"v_cvt_pk_bf16_f32 v{o + 2 * i}, v{acc[i]}, v{acc[i] + 1}")
        a(f"v_cvt_pk_bf16_f32 v{o + 2 * i + 1}, v{acc[i] + 2}, v{acc[i] + 3}")
        a(f"v_cndmask_b32 v{o + 2 * i}, v{o + 2 * i}, v{ones}, s[56:57]")
        a(f"v_cndmask_b32 v{o + 2 * i + 1}, v{o + 2 * i + 1}, v{ones}, s[56:57]")
        a(f"buffer_store_dwordx2 {v(o + 2 * i, 2)}, v{t1}, s[{SKV}:{SKV + 3}], s58 offen {st}")
    a.label("K1_end")
    a("s_endpgm")
    return a.L, nv, 64
```

```python
from asmlib import *
from layout import *
from k1 import srd
import math

NR = 6
W1B, W1S = 0, 8192
HTB, HTS = NR * W1S, 10240
KVB, KVS = HTB + NR * HTS, 6144
LDS_K2 = KVB + NR * KVS
RB, RP, RS = 0, 272, 80 * 272
OIMG, OP = HTB, 176
NST = 32


def gen_k2(st="", gemm=True):
    a = Asm()
    V = Regs('v', 1)
    sX, sIdx, sI, sJ, sA, sB, sW = 24, 25, 26, 27, 28, 29, 30
    SW1, SWS, SB1 = 12, 16, 20
    sO1, sO2, sSt2, sD1, sT0, sT1, sP, sQ4, sMI, sNI = 31, 32, 33, 34, 35, 36, 37, 38, 39, 40
    sM2 = [42 + i for i in range(NR)]
    t0, t1, t2, t3 = [V.alloc() for _ in range(4)]
    vO1, vO2a, vO2b = V.alloc(), V.alloc(), V.alloc()
    vI, vG, vL32, vH = [V.alloc() for _ in range(4)]
    aA32, aA16, aB16, aKa, aKb, aV = [V.alloc() for _ in range(6)]
    aB32 = [V.alloc(), V.alloc()]
    idx = V.alloc()
    bias = V.alloc(2)
    Qa = V.alloc(4, 4)
    Qb = V.alloc(2)
    Ka = V.alloc(4, 4)
    Kb = V.alloc(2)
    V1 = V.alloc(4, 4)
    V2 = V.alloc(4, 4)
    S = [V.alloc(16, 4) for _ in range(3)]
    O = V.alloc(16, 4)
    G32 = V.alloc(16, 4)
    G16 = V.alloc(4, 4)
    GA32 = [V.alloc(4, 4) for _ in range(2)]
    GB32 = [V.alloc(4, 4) for _ in range(2)]
    GA16 = V.alloc(4, 4)
    GB16 = V.alloc(4, 4)
    nv = V.n

    a(f"""
    s_cmp_ge_u32 s2, 256
    s_cbranch_scc1 K2_end
    s_load_dwordx4 s[4:7], s[0:1], 48
    s_load_dwordx2 s[8:9], s[0:1], 96
    v_lshrrev_b32 v{t0}, 6, v0
    v_and_b32 v0, 63, v0
    s_and_b32 s{sX}, s2, 7
    v_readfirstlane_b32 s{sW}, v{t0}
    s_lshr_b32 s{sIdx}, s2, 3
    s_and_b32 s{sT0}, s{sIdx}, 3
    s_lshl_b32 s{sI}, s{sX}, 2
    s_add_u32 s{sI}, s{sI}, s{sT0}
    s_lshr_b32 s{sJ}, s{sIdx}, 2
    s_mul_i32 s{sT0}, s{sX}, 27
    s_sub_u32 s{sT1}, s{sIdx}, 27
    s_cmp_ge_u32 s{sIdx}, 27
    s_cselect_b32 s{sT1}, s{sT1}, s{sIdx}
    s_add_u32 s{sT0}, s{sT0}, s{sT1}
    s_lshr_b32 s{sA}, s{sT0}, 3
    s_and_b32 s{sB}, s{sT0}, 7
    s_lshr_b32 s{sP}, s{sW}, 2
    s_and_b32 s{sQ4}, s{sW}, 3
    s_and_b32 s{sMI}, s{sW}, 1
    s_bfe_u32 s{sNI}, s{sW}, 0x10001
    v_and_b32 v{vI}, 15, v0
    v_lshrrev_b32 v{vG}, 4, v0
    v_and_b32 v{vL32}, 31, v0
    v_lshrrev_b32 v{vH}, 5, v0
    """)
    a(f"""
    s_lshl_b32 s{sT0}, s{sI}, 1
    s_add_u32 s{sT0}, s{sT0}, s{sMI}
    s_mul_i32 s{sT0}, s{sT0}, {32 * 1280}
    s_lshr_b32 s{sT1}, s{sW}, 1
    s_mul_i32 s{sT1}, s{sT1}, 40
    s_add_u32 s{sT0}, s{sT0}, s{sT1}
    s_mul_i32 s{sT1}, s{sJ}, 160
    s_add_u32 s{sT0}, s{sT0}, s{sT1}
    s_add_u32 s{sT0}, s{sT0}, {WS_Q}
    v_mul_u32_u24 v{t2}, 1280, v{vL32}
    v_add_u32 v{t2}, s{sT0}, v{t2}
    v_lshl_add_u32 v{t3}, v{vH}, 4, v{t2}
    """)
    a(f"""
    v_lshrrev_b32 v{t0}, 3, v0
    v_and_b32 v{t1}, 7, v0
    v_bfe_u32 v{vO2a}, v{t0}, 1, 1
    v_lshlrev_b32 v{vO2a}, 2, v{vO2a}
    s_lshl_b32 s{sT0}, s{sMI}, 1
    v_or_b32 v{vO2a}, s{sT0}, v{vO2a}
    v_xor_b32 v{vO2a}, v{vO2a}, v{t1}
    s_lshl_b32 s{sT0}, s{sW}, 3
    v_add_u32 v{vO1}, s{sT0}, v{t0}
    v_mul_u32_u24 v{vO1}, 3456, v{vO1}
    v_lshl_add_u32 v{vO1}, v{vO2a}, 4, v{vO1}
    s_lshl_b32 s{sT0}, s{sA}, 7
    v_add_u32 v{vO1}, s{sT0}, v{vO1}
    """)
    a(f"""
    v_lshrrev_b32 v{vO2b}, 1, v{t0}
    v_xor_b32 v{vO2b}, v{vO2b}, v{t1}
    s_mul_i32 s{sT0}, s{sB}, 80
    s_lshl_b32 s{sT1}, s{sW}, 4
    s_add_u32 s{sT0}, s{sT0}, s{sT1}
    s_lshl_b32 s{sT0}, s{sT0}, 12
    s_add_u32 s{sT0}, s{sT0}, {WS_HT}
    v_lshlrev_b32 v{vO2a}, 12, v{t0}
    v_lshl_add_u32 v{vO2a}, v{vO2b}, 4, v{vO2a}
    v_add_u32 v{vO2a}, s{sT0}, v{vO2a}
    v_xor_b32 v{vO2b}, 64, v{vO2a}
    v_add_u32 v{vO2b}, {8 * 4096}, v{vO2b}
    s_lshl_b32 s{sT0}, s{sW}, 11
    s_add_u32 s{sT1}, s{sT0}, {WS_KV - 5 * 2048}
    v_lshl_add_u32 v{t0}, v0, 4, s{sT1}
    v_add_u32 v{t1}, 1024, v{t0}
    s_mov_b32 s{sSt2}, 128
    s_mov_b32 s{sT1}, {HTB}
    s_mov_b32 s{sD1}, {HTS}
    s_cmp_ge_u32 s{sW}, 5
    s_cselect_b64 vcc, -1, 0
    s_cselect_b32 s{sSt2}, 6144, s{sSt2}
    s_cselect_b32 s{sT1}, {KVB - 5 * 2048}, s{sT1}
    s_cselect_b32 s{sD1}, {KVS}, s{sD1}
    v_cndmask_b32 v{vO2a}, v{vO2a}, v{t0}, vcc
    v_cndmask_b32 v{vO2b}, v{vO2b}, v{t1}, vcc
    s_add_u32 s{sM2[0]}, s{sT0}, s{sT1}
    """)
    for k in range(1, NR):
        a(f"s_add_u32 s{sM2[k]}, s{sM2[k - 1]}, s{sD1}")
    a(f"""
    s_lshl_b32 s{sD1}, s{sW}, 10
    s_mov_b32 s{sO1}, 0
    s_mov_b32 s{sO2}, 0
    s_waitcnt lgkmcnt(0)
    """)
    srd(a, SWS, 8, 9, WS_END)
    srd(a, SW1, 4, 5, 2048 * 3456)
    a.vmem(f"buffer_load_dwordx4 {v(Qa, 4)}, v{t3}, s[{SWS}:{SWS + 3}], 0 offen", "q")
    a.vmem(f"buffer_load_dwordx2 {v(Qb, 2)}, v{t2}, s[{SWS}:{SWS + 3}], 0 offen offset:32", "q")

    def issue(stg):
        slot = stg % NR
        tag = f"st{stg}"
        g = []
        g.append([("s", f"s_add_u32 m0, s{sD1}, {W1B + slot * W1S}"), ("s", "s_nop 0"),
                  ("m", f"buffer_load_dwordx4 v{vO1}, s[{SW1}:{SW1 + 3}], s{sO1} offen lds", tag),
                  ("s", f"s_add_u32 s{sO1}, s{sO1}, {64 * 3456}")])
        g.append([("s", f"s_mov_b32 m0, s{sM2[slot]}"), ("s", "s_nop 0"),
                  ("m", f"buffer_load_dwordx4 v{vO2a}, s[{SWS}:{SWS + 3}], s{sO2} offen lds", tag)])
        g.append([("s", f"s_add_u32 m0, s{sM2[slot]}, 1024"), ("s", "s_nop 0"),
                  ("m", f"buffer_load_dwordx4 v{vO2b}, s[{SWS}:{SWS + 3}], s{sO2} offen lds", tag),
                  ("s", f"s_add_u32 s{sO2}, s{sO2}, s{sSt2}")])
        return g

    def emit(group):
        for it in group:
            if it[0] == "s":
                a(it[1])
            else:
                a.vmem(it[1], it[2])

    for stg in range(5):
        for g in issue(stg):
            emit(g)
    srd(a, SB1, 6, 7, 3456)
    a(f"""
    s_lshl_b32 s{sT0}, s{sA}, 7
    v_lshl_add_u32 v{t0}, v{vI}, 3, s{sT0}
    """)
    a.vmem(f"buffer_load_dwordx2 {v(bias, 2)}, v{t0}, s[{SB1}:{SB1 + 3}], 0 offen", "bias")
    a(f"""
    v_lshrrev_b32 v{t0}, 2, v{vI}
    s_lshl_b32 s{sT0}, s{sP}, 5
    v_add_u32 v{t0}, s{sT0}, v{t0}
    v_bfe_u32 v{t1}, v{vI}, 3, 1
    v_lshlrev_b32 v{t1}, 2, v{t1}
    v_bfe_u32 v{t2}, v{vI}, 1, 1
    v_and_b32 v{t3}, 1, v{vI}
    v_lshlrev_b32 v{t3}, 3, v{t3}
    v_lshl_add_u32 v{aA32}, v{vH}, 3, v{t0}
    v_lshl_add_u32 v{aA32}, v{aA32}, 7, v{t3}
    v_lshl_add_u32 v{aA16}, v{vG}, 3, v{t0}
    v_lshl_add_u32 v{aA16}, v{aA16}, 7, v{t3}
    v_and_b32 v{t3}, 1, v{vG}
    v_lshl_add_u32 v{t0}, v{t3}, 1, v{t2}
    s_lshl_b32 s{sT0}, s{sMI}, 2
    v_add_u32 v{t0}, s{sT0}, v{t0}
    v_lshl_or_b32 v{aKa}, v{vH}, 1, v{t1}
    v_xor_b32 v{t0}, v{t0}, v{aKa}
    v_lshl_add_u32 v{aA32}, v{t0}, 4, v{aA32}
    s_lshl_b32 s{sT0}, s{sQ4}, 1
    v_add_u32 v{t0}, s{sT0}, v{t2}
    v_lshl_or_b32 v{aKa}, v{t3}, 1, v{t1}
    v_xor_b32 v{t0}, v{t0}, v{aKa}
    v_lshl_add_u32 v{aA16}, v{t0}, 4, v{aA16}
    """)
    a(f"""
    s_lshl_b32 s{sT0}, s{sP}, 2
    v_add_u32 v{t0}, s{sT0}, v{vH}
    v_bfe_u32 v{t1}, v{vL32}, 1, 3
    v_xor_b32 v{t0}, v{t0}, v{t1}
    s_lshl_b32 s{sT1}, s{sNI}, 12
    s_add_u32 s{sT1}, s{sT1}, {HTB}
    v_lshl_add_u32 v{t1}, v{vL32}, 7, s{sT1}
    v_lshl_add_u32 v{aB32[0]}, v{t0}, 4, v{t1}
    v_xor_b32 v{aB32[1]}, 32, v{aB32[0]}
    v_add_u32 v{t0}, s{sT0}, v{vG}
    v_lshrrev_b32 v{t1}, 1, v{vI}
    v_xor_b32 v{t0}, v{t0}, v{t1}
    v_lshlrev_b32 v{t1}, 7, v{vI}
    v_add_u32 v{t1}, {HTB + 64 * 128}, v{t1}
    v_lshl_add_u32 v{aB16}, v{t0}, 4, v{t1}
    v_lshlrev_b32 v{aKa}, 4, v0
    v_add_u32 v{aKa}, {KVB}, v{aKa}
    v_lshlrev_b32 v{aKb}, 3, v0
    v_add_u32 v{aKb}, {KVB + 2048}, v{aKb}
    v_cmp_le_u32 vcc, 24, v{vL32}
    v_mov_b32 v{t0}, 20
    v_cndmask_b32 v{t0}, v{vL32}, v{t0}, vcc
    v_mad_u32_u24 v{t0}, v{vH}, 24, v{t0}
    v_lshlrev_b32 v{aV}, 4, v{t0}
    v_add_u32 v{aV}, {KVB + 3072}, v{aV}
    v_mov_b32 v{idx}, 0xdddddddd
    """)
    for i in range(16):
        a(f"v_mov_b32 v{O + i}, 0")

    def rdKa(T):
        a.ds(f"ds_read_b128 {v(Ka, 4)}, v{aKa} offset:{(T // 2 % NR) * KVS + (T % 2) * 1024}", f"Ka{T}")

    def rdKb(T):
        a.ds(f"ds_read_b64 {v(Kb, 2)}, v{aKb} offset:{(T // 2 % NR) * KVS + (T % 2) * 512}", f"Kb{T}")

    def rdV(T, t):
        a.ds(f"ds_read_b128 {v(V2 if t else V1, 4)}, v{aV} offset:{(T // 2 % NR) * KVS + (T % 2) * 1536 + t * 768}",
             f"V{t}_{T}")

    def rdG32(stg, ks):
        sl = stg % NR
        for h in range(2):
            a.ds(f"ds_read_b64_tr_b16 {v(GA32[ks] + 2 * h, 2)}, v{aA32} offset:{W1B + sl * W1S + ks * 2048 + h * 512}",
                 f"G{ks}_{stg}")
        a.ds(f"ds_read_b128 {v(GB32[ks], 4)}, v{aB32[ks]} offset:{sl * HTS}", f"G{ks}_{stg}")

    def rdG16(stg):
        sl = stg % NR
        for h in range(2):
            a.ds(f"ds_read_b64_tr_b16 {v(GA16 + 2 * h, 2)}, v{aA16} offset:{W1B + sl * W1S + h * 512}", f"G2_{stg}")
        a.ds(f"ds_read_b128 {v(GB16, 4)}, v{aB16} offset:{sl * HTS}", f"G2_{stg}")

    def qka(d):
        a(f"v_mfma_f32_32x32x16_bf16 {v(d, 16)}, {v(Ka, 4)}, {v(Qa, 4)}, 0")

    def qkb(d):
        a(f"v_mfma_f32_32x32x8_bf16 {v(d, 16)}, {v(Kb, 2)}, {v(Qb, 2)}, {v(d, 16)}")

    def pv(d, t):
        a(f"v_smfmac_f32_32x32x32_bf16 {v(O, 16)}, {v(V2 if t else V1, 4)}, {v(d + 8 * t, 8)}, v{idx}")

    def halfmax(m, src):
        a(f"v_max3_f32 v{m}, v{src}, v{src + 1}, v{src + 2}")
        for k in range(3, 15, 2):
            a(f"v_max3_f32 v{m}, v{m}, v{src + k}, v{src + k + 1}")
        a(f"v_max_f32 v{m}, v{m}, v{src + 15}")

    def crosshalf(m, tmp):
        a(f"v_mov_b32 v{tmp}, v{m}")
        a(f"v_permlane32_swap_b32 v{m}, v{tmp}")
        a(f"v_max_f32 v{m}, v{m}, v{tmp}")

    a.wait(vm="q")
    a(f"""
    v_cmp_le_u32 s[50:51], 32, v0
    v_cndmask_b32 v{Qb}, v{Qb}, 0, s[50:51]
    v_cndmask_b32 v{Qb + 1}, v{Qb + 1}, 0, s[50:51]
    """)
    a.wait(vm="st1")
    a("s_barrier")
    rdKa(0)
    rdKb(0)
    for g in issue(5):
        emit(g)
    a.wait(lg="Kb0")
    qka(S[1])
    qkb(S[1])
    rdV(0, 0)
    if gemm:
        rdG32(0, 0)
        rdG16(0)
        rdG32(0, 1)
    halfmax(t0, S[1])
    crosshalf(t0, t1)
    a(f"v_cvt_pk_bf16_f32 v{t0}, -v{t0}, 0")
    a(f"v_cndmask_b32 v{Qb}, v{Qb}, v{t0}, s[50:51]")
    qka(S[0])
    rdKa(1)
    qkb(S[0])
    rdKb(1)

    NT = 2 * NST
    pend = []
    for t in range(NT):
        s_ = t // 2
        if t % 2 == 0 and t > 0:
            a.wait(vm=f"st{s_ + 1}", lg=f"V1_{t - 1}")
            a("s_barrier")
            if s_ + 5 < NST:
                pend = issue(s_ + 5)
        cur = S[t % 3]
        nxt = S[(t + 1) % 3]
        prv = S[(t + 2) % 3]

        def ex(lo, hi):
            for e in range(lo, hi):
                a(f"v_exp_f32 v{cur + e}, v{cur + e}")

        def dma():
            if pend:
                emit(pend.pop(0))
        if t + 1 < NT:
            a.wait(lg=f"Ka{t + 1}")
            qka(nxt)
            if t + 2 < NT:
                rdKa(t + 2)
        ex(0, 2)
        dma()
        ex(2, 4)
        if t + 1 < NT:
            a.wait(lg=f"Kb{t + 1}")
            qkb(nxt)
            if t + 2 < NT:
                rdKb(t + 2)
        ex(4, 6)
        if gemm:
            ks = t % 2
            a.wait(lg=f"G{ks}_{s_}")
            c = "0" if t == 0 else v(G32, 16)
            a(f"v_mfma_f32_32x32x16_bf16 {v(G32, 16)}, {v(GA32[ks], 4)}, {v(GB32[ks], 4)}, {c}")
            if s_ + 1 < NST:
                rdG32(s_ + 1, ks)
        ex(6, 8)
        if t > 0:
            a.wait(lg=f"V1_{t - 1}")
            pv(prv, 1)
        rdV(t, 1)
        ex(8, 10)
        dma()
        ex(10, 12)
        a.wait(lg=f"V0_{t}")
        pv(cur, 0)
        if t + 1 < NT:
            rdV(t + 1, 0)
        ex(12, 14)
        if gemm and t % 2 == 0:
            a.wait(lg=f"G2_{s_}")
            c = "0" if t == 0 else v(G16, 4)
            a(f"v_mfma_f32_16x16x32_bf16 {v(G16, 4)}, {v(GA16, 4)}, {v(GB16, 4)}, {c}")
            if s_ + 1 < NST:
                rdG16(s_ + 1)
        ex(14, 16)
    a.wait(lg=f"V1_{NT - 1}")
    pv(S[(NT - 1) % 3], 1)
    a("s_barrier")
    a(f"""
    s_mul_i32 s{sT0}, s{sP}, {RS}
    s_mul_i32 s{sT1}, s{sNI}, {32 * RP}
    s_add_u32 s{sT1}, s{sT1}, s{sT0}
    s_lshl_b32 s52, s{sMI}, 7
    s_add_u32 s{sT1}, s{sT1}, s52
    v_mul_u32_u24 v{t0}, {RP}, v{vL32}
    v_lshl_add_u32 v{t0}, v{vH}, 4, v{t0}
    v_add_u32 v{t0}, s{sT1}, v{t0}
    s_lshl_b32 s52, s{sQ4}, 6
    s_add_u32 s{sT0}, s{sT0}, s52
    s_add_u32 s{sT0}, s{sT0}, {64 * RP}
    v_mul_u32_u24 v{t1}, {RP}, v{vI}
    v_lshl_add_u32 v{t1}, v{vG}, 4, v{t1}
    v_add_u32 v{t1}, s{sT0}, v{t1}
    """)
    if gemm:
        for g in range(4):
            a.ds(f"ds_write_b128 v{t0}, {v(G32 + 4 * g, 4)} offset:{RB + 32 * g}")
        a.ds(f"ds_write_b128 v{t1}, {v(G16, 4)} offset:{RB}")
    a(f"v_add_f32 v{t2}, |v{O}|, |v{O + 1}|")
    for k in range(2, 12):
        a(f"v_add_f32 v{t2}, v{t2}, |v{O + k}|")
    a(f"""
    v_mov_b32 v{t3}, {f32(2.0 ** 120)}
    v_cmp_nle_f32 s[52:53], v{t2}, v{t3}
    v_mov_b32 v{t3}, {f32(2.0 ** 64)}
    v_cmp_nle_f32 s[54:55], v{O + 12}, v{t3}
    v_cmp_nle_f32 vcc, {f32(2.0 ** -64)}, v{O + 12}
    s_or_b64 s[52:53], s[52:53], s[54:55]
    s_or_b64 vcc, vcc, s[52:53]
    s_cbranch_vccnz K2_fallback
    """)
    a.label("K2_norm")
    pk = S[0]
    a(f"""
    v_rcp_f32 v{t2}, v{O + 12}
    s_lshl_b32 s{sT0}, s{sMI}, 5
    v_add_u32 v{t0}, s{sT0}, v{vL32}
    v_mul_u32_u24 v{t0}, {OP}, v{t0}
    v_lshl_add_u32 v{t0}, v{vH}, 3, v{t0}
    s_lshr_b32 s{sT0}, s{sW}, 1
    s_mul_i32 s{sT0}, s{sT0}, 40
    s_add_u32 s{sT0}, s{sT0}, {OIMG}
    v_add_u32 v{t0}, s{sT0}, v{t0}
    """)
    for k in range(12):
        a(f"v_mul_f32 v{O + k}, v{O + k}, v{t2}")
    for k in range(6):
        a(f"v_cvt_pk_bf16_f32 v{pk + k}, v{O + 2 * k}, v{O + 2 * k + 1}")
    a.ds(f"ds_write_b64 v{t0}, {v(pk, 2)}")
    a.ds(f"ds_write_b64 v{t0}, {v(pk + 2, 2)} offset:16")
    a("s_mov_b32 exec_hi, 0")
    a.ds(f"ds_write_b64 v{t0}, {v(pk + 4, 2)} offset:32")
    a("s_mov_b32 exec_hi, -1")
    ol = [S[1], S[1] + 1]
    og = [S[1] + 2, S[1] + 3]
    a(f"""
    s_lshl_b32 s{sT0}, s{sW}, 3
    s_lshl_b32 s{sT1}, s{sI}, 6
    s_mul_i32 s52, s{sJ}, 160
    s_add_u32 s52, s52, {WS_O}
    """)
    for r in range(2):
        a(f"""
        v_add_u32 v{t0}, {64 * r}, v0
        v_mul_u32_u24 v{t1}, 103, v{t0}
        v_lshrrev_b32 v{t1}, 10, v{t1}
        v_mul_u32_u24 v{t2}, 10, v{t1}
        v_sub_u32 v{t2}, v{t0}, v{t2}
        v_add_u32 v{t1}, s{sT0}, v{t1}
        v_mul_u32_u24 v{ol[r]}, {OP}, v{t1}
        v_lshl_add_u32 v{ol[r]}, v{t2}, 4, v{ol[r]}
        v_add_u32 v{t1}, s{sT1}, v{t1}
        v_mul_u32_u24 v{og[r]}, 1280, v{t1}
        v_lshl_add_u32 v{og[r]}, v{t2}, 4, v{og[r]}
        """)
    ul, ug = S[1] + 4, S[1] + 5
    a(f"""
    v_add_u32 v{t0}, s{sT0}, v{vG}
    v_mul_u32_u24 v{ul}, {RP}, v{t0}
    v_lshl_add_u32 v{ul}, v{vI}, 4, v{ul}
    s_mul_i32 s{sT1}, s{sB}, 80
    v_add_u32 v{t0}, s{sT1}, v{t0}
    v_mul_u32_u24 v{ug}, {U_PITCH}, v{t0}
    v_lshl_add_u32 v{ug}, v{vI}, 3, v{ug}
    s_lshl_b32 s53, s{sA}, 7
    s_add_u32 s53, s53, {WS_U}
    """)
    a.wait_all()
    a("s_barrier")
    d = S[2]
    a.ds(f"ds_read_b128 {v(d, 4)}, v{ol[0]} offset:{OIMG}", "o0")
    a.ds(f"ds_read_b128 {v(d + 4, 4)}, v{ol[1]} offset:{OIMG}", "o1")
    u = [G32, G32 + 8, O]
    bs = S[0]
    if gemm:
        for r in range(2):
            a.ds(f"ds_read_b128 {v(u[r], 4)}, v{ul} offset:{RB + 4 * r * RP}", f"u{r}")
            a.ds(f"ds_read_b128 {v(u[r] + 4, 4)}, v{ul} offset:{RB + RS + 4 * r * RP}", f"u{r}")
        a(f"""
        s_lshl_b32 s{sT0}, s{sW}, 2
        s_sub_u32 s{sT0}, 64, s{sT0}
        s_mul_i32 s{sT1}, s{sT0}, {RP}
        v_add_u32 v{t0}, s{sT1}, v{ul}
        s_mul_i32 s54, s{sT0}, {U_PITCH}
        s_add_u32 s54, s54, s53
        """)
        a.ds(f"ds_read_b128 {v(u[2], 4)}, v{t0} offset:{RB}", "u2")
        a.ds(f"ds_read_b128 {v(u[2] + 4, 4)}, v{t0} offset:{RB + RS}", "u2")
        for e in range(2):
            a(f"v_lshlrev_b32 v{bs + 2 * e}, 16, v{bias + e}")
            a(f"v_and_b32 v{bs + 2 * e + 1}, 0xffff0000, v{bias + e}")
    a.wait(lg="o0")
    a(f"buffer_store_dwordx4 {v(d, 4)}, v{og[0]}, s[{SWS}:{SWS + 3}], s52 offen {st}")
    a.wait(lg="o1")
    a("s_mov_b64 exec, 0xffff")
    a(f"buffer_store_dwordx4 {v(d + 4, 4)}, v{og[1]}, s[{SWS}:{SWS + 3}], s52 offen {st}")
    a("s_mov_b64 exec, -1")
    if gemm:
        a(f"s_cmp_ge_u32 s{sIdx}, 27")
        a("s_cbranch_scc1 K2_end")
        k0 = -2.0 * math.sqrt(2.0 / math.pi) * math.log2(math.e)
        k1 = k0 * 0.044715
        a(f"s_mov_b32 s55, {f32(k0)}")
        a(f"s_add_u32 s56, s53, {4 * U_PITCH}")
        w = S[0] + 4
        for r in range(3):
            if r == 2:
                a(f"s_cmp_ge_u32 s{sW}, 4")
                a("s_cbranch_scc1 K2_end")
            a.wait(lg=f"u{r}")
            for j in range(4):
                a(f"v_add_f32 v{u[r] + j}, v{u[r] + j}, v{u[r] + 4 + j}")
            for j in range(4):
                a(f"v_add_f32 v{u[r] + j}, v{u[r] + j}, v{bs + j}")
            for j in range(4):
                a(f"v_mul_f32 v{w + j}, v{u[r] + j}, v{u[r] + j}")
            for j in range(4):
                a(f"v_fmaak_f32 v{w + j}, {f32(k1)}, v{w + j}, {f32(k0)}" if False else
                  f"v_fmamk_f32 v{w + j}, v{w + j}, {f32(k1)}, v{t3}")
            for j in range(4):
                a(f"v_mul_f32 v{w + j}, v{w + j}, v{u[r] + j}")
            for j in range(4):
                a(f"v_exp_f32 v{w + j}, v{w + j}")
            for j in range(4):
                a(f"v_add_f32 v{w + j}, 1.0, v{w + j}")
            for j in range(4):
                a(f"v_rcp_f32 v{w + j}, v{w + j}")
            for j in range(4):
                a(f"v_mul_f32 v{w + j}, v{w + j}, v{u[r] + j}")
            a(f"v_cvt_pk_bf16_f32 v{u[r] + 4}, v{w}, v{w + 1}")
            a(f"v_cvt_pk_bf16_f32 v{u[r] + 5}, v{w + 2}, v{w + 3}")
            a(f"buffer_store_dwordx2 {v(u[r] + 4, 2)}, v{ug}, s[{SWS}:{SWS + 3}], s{(53, 56, 54)[r]} offen {st}")
        i0 = max(i for i, ln in enumerate(a.L) if "s_mov_b32 s55" in ln)
        a.L.insert(i0, f"    v_mov_b32 v{t3}, {f32(k0)}")
    a.label("K2_end")
    a("s_endpgm")

    a.label("K2_fallback")
    m = t2
    gka, gkb, gv = GA32[0], GA32[0] + 1, GA32[0] + 2
    a(f"""
    s_nop 7
    v_cndmask_b32 v{Qb}, v{Qb}, 0, s[50:51]
    v_add_u32 v{gka}, {WS_KV - KVB}, v{aKa}
    v_add_u32 v{gkb}, {WS_KV - KVB}, v{aKb}
    v_add_u32 v{gv}, {WS_KV - KVB}, v{aV}
    v_mov_b32 v{m}, 0xff800000
    s_mov_b32 s57, 0
    """)
    for i in range(16):
        a(f"v_mov_b32 v{O + i}, 0")
    a.label("K2_fb1")
    for T in range(2):
        a(f"buffer_load_dwordx4 {v(Ka, 4)}, v{gka}, s[{SWS}:{SWS + 3}], s57 offen offset:{T * 1024}")
        a(f"buffer_load_dwordx2 {v(Kb, 2)}, v{gkb}, s[{SWS}:{SWS + 3}], s57 offen offset:{T * 512}")
        a("s_waitcnt vmcnt(0)")
        qka(S[0])
        qkb(S[0])
        halfmax(t3, S[0])
        a(f"v_max_f32 v{m}, v{m}, v{t3}")
    a(f"""
    s_add_u32 s57, s57, 6144
    s_cmp_lt_u32 s57, {KV_BYTES}
    s_cbranch_scc1 K2_fb1
    """)
    crosshalf(m, t3)
    a("s_mov_b32 s57, 0")
    a.label("K2_fb2")
    for T in range(2):
        a(f"buffer_load_dwordx4 {v(Ka, 4)}, v{gka}, s[{SWS}:{SWS + 3}], s57 offen offset:{T * 1024}")
        a(f"buffer_load_dwordx2 {v(Kb, 2)}, v{gkb}, s[{SWS}:{SWS + 3}], s57 offen offset:{T * 512}")
        a(f"buffer_load_dwordx4 {v(V1, 4)}, v{gv}, s[{SWS}:{SWS + 3}], s57 offen offset:{T * 1536}")
        a(f"buffer_load_dwordx4 {v(V2, 4)}, v{gv}, s[{SWS}:{SWS + 3}], s57 offen offset:{T * 1536 + 768}")
        a("s_waitcnt vmcnt(0)")
        qka(S[0])
        qkb(S[0])
        for e in range(16):
            a(f"v_sub_f32 v{S[0] + e}, v{S[0] + e}, v{m}")
        for e in range(16):
            a(f"v_exp_f32 v{S[0] + e}, v{S[0] + e}")
        pv(S[0], 0)
        pv(S[0], 1)
        a("s_nop 7")
    a(f"""
    s_add_u32 s57, s57, 6144
    s_cmp_lt_u32 s57, {KV_BYTES}
    s_cbranch_scc1 K2_fb2
    s_nop 15
    s_branch K2_norm
    """)
    return a.L, nv, 64
```

```python
from asmlib import *
from layout import *
from k1 import srd

NR = 8
BB, BS = 0, 8192
AB, AS = NR * BS, 10240
LDS_K3 = AB + NR * AS
RB, RP, RS = 0, 336, 64 * 336
N2, NO = 27, 10
NST = N2 + NO


def gen_k3(st=""):
    a = Asm()
    V = Regs('v', 1)
    sX, sIdx, sI, sJ, sW = 40, 41, 42, 43, 44
    SWO, SW2, SWS, SXX, SB2, SOUT = 16, 20, 24, 28, 32, 36
    sOA, sOB, sMA, sMB, sT0, sT1, sP, sQ4, sMI, sNI = 45, 46, 47, 48, 49, 50, 51, 52, 53, 54
    t0, t1, t2, t3 = [V.alloc() for _ in range(4)]
    vI, vG, vL32, vH = [V.alloc() for _ in range(4)]
    oA = [[V.alloc(), V.alloc()] for _ in range(2)]
    oB = [V.alloc() for _ in range(2)]
    aA32 = [[V.alloc(), V.alloc()] for _ in range(2)]
    aA16 = [V.alloc() for _ in range(2)]
    aT32 = [V.alloc() for _ in range(2)]
    aT16 = [V.alloc() for _ in range(2)]
    bT32, bT16, bB16 = V.alloc(), V.alloc(), V.alloc()
    bB32 = [V.alloc(), V.alloc()]
    el = [V.alloc(), V.alloc()]
    eg = [V.alloc(), V.alloc()]
    b2 = [V.alloc(), V.alloc()]
    xr = [V.alloc(4, 4), V.alloc(4, 4)]
    G32 = V.alloc(16, 4)
    G16 = V.alloc(4, 4)
    F = [[V.alloc(4, 4) for _ in range(6)] for _ in range(2)]
    nv = V.n

    a(f"""
    s_cmp_ge_u32 s2, 256
    s_cbranch_scc1 K3_end
    s_load_dwordx2 s[4:5], s[0:1], 0
    s_load_dwordx2 s[6:7], s[0:1], 32
    s_load_dwordx4 s[8:11], s[0:1], 64
    s_load_dwordx2 s[12:13], s[0:1], 80
    s_load_dwordx2 s[14:15], s[0:1], 96
    v_lshrrev_b32 v{t0}, 6, v0
    v_and_b32 v0, 63, v0
    s_and_b32 s{sX}, s2, 7
    v_readfirstlane_b32 s{sW}, v{t0}
    s_lshr_b32 s{sIdx}, s2, 3
    s_and_b32 s{sT0}, s{sIdx}, 3
    s_lshl_b32 s{sI}, s{sX}, 2
    s_add_u32 s{sI}, s{sI}, s{sT0}
    s_lshr_b32 s{sJ}, s{sIdx}, 2
    s_lshr_b32 s{sP}, s{sW}, 2
    s_and_b32 s{sQ4}, s{sW}, 3
    s_and_b32 s{sMI}, s{sW}, 1
    s_bfe_u32 s{sNI}, s{sW}, 0x10001
    v_lshrrev_b32 v{t0}, 3, v0
    v_and_b32 v{t1}, 7, v0
    """)
    a(f"""
    s_mul_i32 s{sT0}, s{sW}, 10
    v_add_u32 v{t2}, s{sT0}, v{t0}
    v_bfe_u32 v{t3}, v{t2}, 1, 3
    v_xor_b32 v{t3}, v{t3}, v{t1}
    s_mul_i32 s{sT1}, s{sJ}, 80
    v_add_u32 v{t2}, s{sT1}, v{t2}
    v_mul_u32_u24 v{t2}, {U_PITCH}, v{t2}
    v_lshl_add_u32 v{t2}, v{t3}, 4, v{t2}
    v_add_u32 v{oA[0][0]}, {WS_U}, v{t2}
    v_xor_b32 v{oA[0][1]}, 64, v{oA[0][0]}
    v_add_u32 v{oA[0][1]}, {8 * U_PITCH}, v{oA[0][1]}
    """)
    a(f"""
    v_bfe_u32 v{t3}, v{t0}, 1, 1
    v_lshlrev_b32 v{t3}, 2, v{t3}
    s_lshl_b32 s{sT1}, s{sMI}, 1
    v_or_b32 v{t3}, s{sT1}, v{t3}
    v_xor_b32 v{t3}, v{t3}, v{t1}
    s_lshl_b32 s{sT0}, s{sW}, 3
    v_add_u32 v{t2}, s{sT0}, v{t0}
    v_lshlrev_b32 v{oB[0]}, 12, v{t2}
    v_lshl_add_u32 v{oB[0]}, v{t3}, 4, v{oB[0]}
    s_lshl_b32 s{sT1}, s{sI}, 7
    v_add_u32 v{oB[0]}, s{sT1}, v{oB[0]}
    s_mul_i32 s{sMA}, s{sW}, 1280
    s_add_u32 s{sMA}, s{sMA}, {AB}
    s_lshl_b32 s{sMB}, s{sW}, 10
    s_mov_b32 s{sOA}, 0
    s_mov_b32 s{sOB}, 0
    s_waitcnt lgkmcnt(0)
    """)
    srd(a, SWS, 14, 15, WS_END)
    srd(a, SW2, 8, 9, 1728 * 4096)

    def issue(stg):
        slot = stg % NR
        ph = 0 if stg < N2 else 1
        tag = f"st{stg}"
        if stg == N2:
            a(f"s_mov_b32 s{sOA}, 0")
            a(f"s_mov_b32 s{sOB}, 0")
        sa = SWS if ph == 0 else SWO
        sb = SW2 if ph == 0 else SWS
        a(f"s_add_u32 m0, s{sMA}, {slot * AS}")
        a("s_nop 0")
        a.vmem(f"buffer_load_dwordx4 v{oA[ph][0]}, s[{sa}:{sa + 3}], s{sOA} offen lds", tag)
        a(f"s_add_u32 m0, s{sMA}, {slot * AS + 1024}")
        a("s_mov_b64 exec, 0xffff")
        a.vmem(f"buffer_load_dwordx4 v{oA[ph][1]}, s[{sa}:{sa + 3}], s{sOA} offen lds", tag)
        a("s_mov_b64 exec, -1")
        a(f"s_add_u32 m0, s{sMB}, {BB + slot * BS}")
        a(f"s_add_u32 s{sOA}, s{sOA}, {128 if ph == 0 else 64 * 1280}")
        a.vmem(f"buffer_load_dwordx4 v{oB[ph]}, s[{sb}:{sb + 3}], s{sOB} offen lds", tag)
        a(f"s_add_u32 s{sOB}, s{sOB}, {64 * 4096 if ph == 0 else 128}")

    for stg in range(NR):
        issue(stg)
    srd(a, SWO, 6, 7, 819200)
    srd(a, SXX, 4, 5, 2621440)
    srd(a, SB2, 10, 11, 4096)
    srd(a, SOUT, 12, 13, 2621440)
    a(f"""
    v_bfe_u32 v{t3}, v{t2}, 1, 3
    v_xor_b32 v{t3}, v{t3}, v{t1}
    s_lshl_b32 s{sT1}, s{sI}, 6
    v_add_u32 v{t2}, s{sT1}, v{t2}
    v_mul_u32_u24 v{t2}, 1280, v{t2}
    v_lshl_add_u32 v{t2}, v{t3}, 4, v{t2}
    v_add_u32 v{oB[1]}, {WS_O}, v{t2}
    v_and_b32 v{vI}, 15, v0
    v_lshrrev_b32 v{vG}, 4, v0
    v_and_b32 v{vL32}, 31, v0
    v_lshrrev_b32 v{vH}, 5, v0
    s_mul_i32 s55, s{sJ}, 160
    """)
    for r in range(2):
        a(f"""
        v_add_u32 v{t0}, {64 * r}, v0
        v_mul_u32_u24 v{t1}, 103, v{t0}
        v_lshrrev_b32 v{t1}, 10, v{t1}
        v_mul_u32_u24 v{t2}, 10, v{t1}
        v_sub_u32 v{t2}, v{t0}, v{t2}
        v_add_u32 v{t1}, s{sT0}, v{t1}
        v_mul_u32_u24 v{t3}, 1280, v{t1}
        v_lshl_add_u32 v{t3}, v{t2}, 4, v{t3}
        v_add_u32 v{oA[1][r]}, s55, v{t3}
        v_mul_u32_u24 v{el[r]}, {RP}, v{t1}
        v_lshl_add_u32 v{el[r]}, v{t2}, 5, v{el[r]}
        s_mul_i32 s56, s{sI}, {64 * 1280}
        v_add_u32 v{eg[r]}, s56, v{oA[1][r]}
        v_add_u32 v{t1}, s{sT1}, v{t1}
        v_lshlrev_b32 v{t1}, 1, v{t1}
        """)
        if r == 1:
            a("s_mov_b64 exec, 0xffff")
        a.vmem(f"buffer_load_dwordx4 {v(xr[r], 4)}, v{eg[r]}, s[{SXX}:{SXX + 3}], 0 offen", "x")
        a.vmem(f"buffer_load_ushort v{b2[r]}, v{t1}, s[{SB2}:{SB2 + 3}], 0 offen", "x")
        if r == 1:
            a("s_mov_b64 exec, -1")
    a(f"""
    s_lshl_b32 s{sT0}, s{sP}, 2
    v_add_u32 v{t0}, s{sT0}, v{vH}
    v_bfe_u32 v{t1}, v{vL32}, 1, 3
    v_xor_b32 v{t0}, v{t0}, v{t1}
    v_lshlrev_b32 v{t1}, 7, v{vL32}
    v_lshl_add_u32 v{t0}, v{t0}, 4, v{t1}
    s_lshl_b32 s{sT1}, s{sMI}, 12
    s_add_u32 s{sT1}, s{sT1}, {AB}
    v_add_u32 v{aA32[0][0]}, s{sT1}, v{t0}
    v_xor_b32 v{aA32[0][1]}, 32, v{aA32[0][0]}
    v_add_u32 v{aA32[1][0]}, {6 * AS}, v{aA32[0][0]}
    v_add_u32 v{aA32[1][1]}, {6 * AS}, v{aA32[0][1]}
    s_lshl_b32 s{sT1}, s{sNI}, 12
    v_add_u32 v{bB32[0]}, s{sT1}, v{t0}
    v_xor_b32 v{bB32[1]}, 32, v{bB32[0]}
    v_add_u32 v{t0}, s{sT0}, v{vG}
    v_lshrrev_b32 v{t1}, 1, v{vI}
    v_xor_b32 v{t0}, v{t0}, v{t1}
    v_lshlrev_b32 v{t1}, 7, v{vI}
    v_lshl_add_u32 v{t0}, v{t0}, 4, v{t1}
    v_add_u32 v{aA16[0]}, {AB + 64 * 128}, v{t0}
    v_add_u32 v{aA16[1]}, {6 * AS}, v{aA16[0]}
    s_lshl_b32 s{sT1}, s{sQ4}, 11
    v_add_u32 v{bB16}, s{sT1}, v{t0}
    """)
    a(f"""
    v_lshrrev_b32 v{t0}, 2, v{vI}
    s_lshl_b32 s{sT0}, s{sP}, 5
    v_add_u32 v{t0}, s{sT0}, v{t0}
    v_lshl_add_u32 v{aT32[0]}, v{vH}, 3, v{t0}
    v_lshl_add_u32 v{aT16[0]}, v{vG}, 3, v{t0}
    v_and_b32 v{t3}, 1, v{vI}
    v_lshlrev_b32 v{t3}, 3, v{t3}
    v_lshl_add_u32 v{bT32}, v{aT32[0]}, 7, v{t3}
    v_lshl_add_u32 v{bT16}, v{aT16[0]}, 7, v{t3}
    v_bfe_u32 v{t1}, v{vI}, 3, 1
    v_lshlrev_b32 v{t1}, 2, v{t1}
    v_bfe_u32 v{t2}, v{vI}, 1, 1
    v_and_b32 v{t3}, 1, v{vG}
    v_lshl_add_u32 v{t0}, v{t3}, 1, v{t2}
    s_lshl_b32 s{sT0}, s{sNI}, 2
    v_add_u32 v{t0}, s{sT0}, v{t0}
    v_lshl_or_b32 v{aT32[1]}, v{vH}, 1, v{t1}
    v_xor_b32 v{t0}, v{t0}, v{aT32[1]}
    v_lshl_add_u32 v{bT32}, v{t0}, 4, v{bT32}
    s_lshl_b32 s{sT0}, s{sQ4}, 1
    v_add_u32 v{t0}, s{sT0}, v{t2}
    v_lshl_or_b32 v{aT32[1]}, v{t3}, 1, v{t1}
    v_xor_b32 v{t0}, v{t0}, v{aT32[1]}
    v_lshl_add_u32 v{bT16}, v{t0}, 4, v{bT16}
    v_and_b32 v{t0}, 3, v{vI}
    v_lshlrev_b32 v{t0}, 3, v{t0}
    v_mul_u32_u24 v{aT32[0]}, 160, v{aT32[0]}
    v_add_u32 v{aT32[0]}, v{aT32[0]}, v{t0}
    v_lshl_add_u32 v{aT32[0]}, v{t3}, 5, v{aT32[0]}
    s_lshl_b32 s{sT0}, s{sMI}, 6
    s_add_u32 s{sT0}, s{sT0}, {AB}
    v_add_u32 v{aT32[0]}, s{sT0}, v{aT32[0]}
    v_add_u32 v{aT32[1]}, {6 * AS}, v{aT32[0]}
    v_mul_u32_u24 v{aT16[0]}, 160, v{aT16[0]}
    v_add_u32 v{aT16[0]}, v{aT16[0]}, v{t0}
    v_add_u32 v{aT16[0]}, {AB + 128}, v{aT16[0]}
    v_add_u32 v{aT16[1]}, {6 * AS}, v{aT16[0]}
    """)

    def reads(stg):
        slot = stg % NR
        f = F[stg % 2]
        st_, ao = (0, slot * AS) if slot < 6 else (1, (slot - 6) * AS)
        bo = BB + slot * BS
        if stg < N2:
            for ks in range(2):
                a.ds(f"ds_read_b128 {v(f[2 * ks], 4)}, v{aA32[st_][ks]} offset:{ao}")
                for h in range(2):
                    a.ds(f"ds_read_b64_tr_b16 {v(f[2 * ks + 1] + 2 * h, 2)}, v{bT32} offset:{bo + ks * 2048 + h * 512}")
            a.ds(f"ds_read_b128 {v(f[4], 4)}, v{aA16[st_]} offset:{ao}")
            for h in range(2):
                a.ds(f"ds_read_b64_tr_b16 {v(f[5] + 2 * h, 2)}, v{bT16} offset:{bo + h * 512}")
        else:
            for ks in range(2):
                for h in range(2):
                    a.ds(f"ds_read_b64_tr_b16 {v(f[2 * ks] + 2 * h, 2)}, v{aT32[st_]} offset:{ao + ks * 2560 + h * 640}")
                a.ds(f"ds_read_b128 {v(f[2 * ks + 1], 4)}, v{bB32[ks]} offset:{bo}")
            for h in range(2):
                a.ds(f"ds_read_b64_tr_b16 {v(f[4] + 2 * h, 2)}, v{aT16[st_]} offset:{ao + h * 640}")
            a.ds(f"ds_read_b128 {v(f[5], 4)}, v{bB16} offset:{bo}")

    def compute(stg):
        f = F[stg % 2]
        c = "0" if stg == 0 else v(G32, 16)
        a(f"v_mfma_f32_32x32x16_bf16 {v(G32, 16)}, {v(f[0], 4)}, {v(f[1], 4)}, {c}")
        c = "0" if stg == 0 else v(G16, 4)
        a(f"v_mfma_f32_16x16x32_bf16 {v(G16, 4)}, {v(f[4], 4)}, {v(f[5], 4)}, {c}")
        a(f"v_mfma_f32_32x32x16_bf16 {v(G32, 16)}, {v(f[2], 4)}, {v(f[3], 4)}, {v(G32, 16)}")

    for stg in range(NST):
        a.wait(vm=f"st{stg}")
        a("s_barrier")
        if stg in (0, 10, 27):
            a.cmt("MARK%d" % {0: 0, 10: 1, 27: 2}[stg])
        reads(stg)
        if stg >= 1 and stg + NR - 1 < NST:
            issue(stg + NR - 1)
        if stg > 0:
            compute(stg - 1)
        a.wait_all(vm=False)
    compute(NST - 1)
    a("s_barrier")
    a(f"""
    s_mul_i32 s{sT0}, s{sP}, {RS}
    s_mul_i32 s{sT1}, s{sNI}, {32 * RP}
    s_add_u32 s{sT1}, s{sT1}, s{sT0}
    s_lshl_b32 s56, s{sMI}, 7
    s_add_u32 s{sT1}, s{sT1}, s56
    v_mul_u32_u24 v{t0}, {RP}, v{vL32}
    v_lshl_add_u32 v{t0}, v{vH}, 4, v{t0}
    v_add_u32 v{t0}, s{sT1}, v{t0}
    s_mul_i32 s56, s{sQ4}, {16 * RP}
    s_add_u32 s{sT0}, s{sT0}, s56
    s_add_u32 s{sT0}, s{sT0}, 256
    v_mul_u32_u24 v{t1}, {RP}, v{vI}
    v_lshl_add_u32 v{t1}, v{vG}, 4, v{t1}
    v_add_u32 v{t1}, s{sT0}, v{t1}
    """)
    a.ds(f"ds_write_b128 v{t1}, {v(G16, 4)} offset:{RB}")
    for g in range(4):
        a.ds(f"ds_write_b128 v{t0}, {v(G32 + 4 * g, 4)} offset:{RB + 32 * g}")
    a.wait_all()
    a("s_barrier")
    d = [F[0][0], F[1][0]]
    for r in range(2):
        for k in range(4):
            a.ds(f"ds_read_b128 {v(d[r] + 4 * k, 4)}, v{el[r]} offset:{RB + (k // 2) * RS + (k % 2) * 16}", f"e{r}")
    for r in range(2):
        xs = G32
        for e in range(4):
            a(f"v_lshlrev_b32 v{xs + 2 * e}, 16, v{xr[r] + e}")
            a(f"v_and_b32 v{xs + 2 * e + 1}, 0xffff0000, v{xr[r] + e}")
        a(f"v_lshlrev_b32 v{b2[r]}, 16, v{b2[r]}")
        for e in range(8):
            a(f"v_add_f32 v{xs + e}, v{xs + e}, v{b2[r]}")
        a.wait(lg=f"e{r}")
        for e in range(8):
            a(f"v_add_f32 v{d[r] + e}, v{d[r] + e}, v{d[r] + 8 + e}")
        for e in range(8):
            a(f"v_add_f32 v{d[r] + e}, v{d[r] + e}, v{xs + e}")
        for e in range(4):
            a(f"v_cvt_pk_bf16_f32 v{xr[r] + e}, v{d[r] + 2 * e}, v{d[r] + 2 * e + 1}")
        if r == 1:
            a("s_mov_b64 exec, 0xffff")
        a(f"buffer_store_dwordx4 {v(xr[r], 4)}, v{eg[r]}, s[{SOUT}:{SOUT + 3}], 0 offen {st}")
    a.label("K3_end")
    a("s_endpgm")
    return a.L, nv, 64
```

```python
import struct
WS_Q = 0
WS_HT = 0x280000
WS_KV = 0x500000
KV_BYTES = 32 * 6144
WS_U = 0x600000
U_PITCH = 3456
WS_O = 0x900000
WS_END = 0xC00000

def f32(x):
    return "0x%08x" % struct.unpack("<I", struct.pack("<f", x))[0]
```

```python
import sys
from asmlib import *
import k1, k2, k3
NAME = "parallel_sum__grouped_kv_mqa__mixer_token_mlp__prompt"
def build(opts=None):
    opts = opts or {}
    ks = [("k1_kernel", k1.gen_k1(opts.get("st1", "")), k1.LDS_K1),
          ("k2_kernel", k2.gen_k2(opts.get("st2", "")), k2.LDS_K2),
          ("k3_kernel", k3.gen_k3(opts.get("st3", "")), k3.LDS_K3)]
    head = open("cdna_kernels/%s.s.ref" % NAME).read().split("; Override launch")[0]
    out = head
    for n, _, lds in ks:
        out += f"; @launch kernel={n} grid=(256,1,1) block=(512,1,1) lds={lds}\n"
    for i in range(opts.get("empty", 0)):
        out += f"; @launch kernel=empty_kernel grid=(256,1,1) block=(512,1,1) lds=0\n"
    out += '.amdgcn_target "amdgcn-amd-amdhsa--gfx950"\n.text\n'
    descs = ""
    if opts.get("empty", 0):
        ks.append(("empty_kernel", (["    s_endpgm"], 8, 16), 0))
    for n, (L, nv, ns), lds in ks:
        t, d, nn = kernel_text(n, L, nv, ns)
        print(f"{n}: {len(L)} lines, vgpr {nv}, nops inserted {nn}", file=sys.stderr)
        out += t
        descs += ".p2align 6\n" + d
    out += '.section .rodata,"a"\n' + descs
    return out
if __name__ == "__main__":
    path = sys.argv[1] if len(sys.argv) > 1 else "cdna_kernels/%s.s" % NAME
    opts = eval(sys.argv[2]) if len(sys.argv) > 2 else {}
    open(path, "w").write(build(opts))
```

```python
from asmlib import *
from layout import *
from k1 import srd
import math

NR = 6
W1B, W1S = 0, 8192
HTB, HTS = NR * W1S, 10240
KVB, KVS = HTB + NR * HTS, 6144
LDS_K2 = KVB + NR * KVS
RB, RP, RS = 0, 272, 80 * 272
OIMG, OP = HTB, 176
NST = 32


def gen_k2(st="", gemm=True, nodma=False, nobar=False, noexp=False, nomfma=False, nolds=False):
    a = Asm()
    V = Regs('v', 1)
    sX, sIdx, sI, sJ, sA, sB, sW = 24, 25, 26, 27, 28, 29, 30
    SW1, SWS, SB1 = 12, 16, 20
    sO1, sO2, sSt2, sD1, sT0, sT1, sP, sQ4, sMI, sNI = 31, 32, 33, 34, 35, 36, 37, 38, 39, 40
    sM2 = [42 + i for i in range(NR)]
    t0, t1, t2, t3 = [V.alloc() for _ in range(4)]
    vO1, vO2a, vO2b = V.alloc(), V.alloc(), V.alloc()
    vI, vG, vL32, vH = [V.alloc() for _ in range(4)]
    aA32, aA16, aB16, aKa, aKb, aV = [V.alloc() for _ in range(6)]
    aB32 = [V.alloc(), V.alloc()]
    idx = V.alloc()
    bias = V.alloc(2)
    Qa = V.alloc(4, 4)
    Qb = V.alloc(2)
    Ka = V.alloc(4, 4)
    Kb = V.alloc(2)
    V1 = V.alloc(4, 4)
    V2 = V.alloc(4, 4)
    S = [V.alloc(16, 4) for _ in range(3)]
    O = V.alloc(16, 4)
    G32 = V.alloc(16, 4)
    G16 = V.alloc(4, 4)
    GA32 = [V.alloc(4, 4) for _ in range(2)]
    GB32 = [V.alloc(4, 4) for _ in range(2)]
    GA16 = V.alloc(4, 4)
    GB16 = V.alloc(4, 4)
    nv = V.n

    a(f"""
    s_cmp_ge_u32 s2, 256
    s_cbranch_scc1 K2_end
    s_load_dwordx4 s[4:7], s[0:1], 48
    s_load_dwordx2 s[8:9], s[0:1], 96
    v_lshrrev_b32 v{t0}, 6, v0
    v_and_b32 v0, 63, v0
    s_and_b32 s{sX}, s2, 7
    v_readfirstlane_b32 s{sW}, v{t0}
    s_lshr_b32 s{sIdx}, s2, 3
    s_and_b32 s{sT0}, s{sIdx}, 3
    s_lshl_b32 s{sI}, s{sX}, 2
    s_add_u32 s{sI}, s{sI}, s{sT0}
    s_lshr_b32 s{sJ}, s{sIdx}, 2
    s_mul_i32 s{sT0}, s{sX}, 27
    s_sub_u32 s{sT1}, s{sIdx}, 27
    s_cmp_ge_u32 s{sIdx}, 27
    s_cselect_b32 s{sT1}, s{sT1}, s{sIdx}
    s_add_u32 s{sT0}, s{sT0}, s{sT1}
    s_lshr_b32 s{sA}, s{sT0}, 3
    s_and_b32 s{sB}, s{sT0}, 7
    s_lshr_b32 s{sP}, s{sW}, 2
    s_and_b32 s{sQ4}, s{sW}, 3
    s_and_b32 s{sMI}, s{sW}, 1
    s_bfe_u32 s{sNI}, s{sW}, 0x10001
    v_and_b32 v{vI}, 15, v0
    v_lshrrev_b32 v{vG}, 4, v0
    v_and_b32 v{vL32}, 31, v0
    v_lshrrev_b32 v{vH}, 5, v0
    """)
    a(f"""
    s_lshl_b32 s{sT0}, s{sI}, 1
    s_add_u32 s{sT0}, s{sT0}, s{sMI}
    s_mul_i32 s{sT0}, s{sT0}, {32 * 1280}
    s_lshr_b32 s{sT1}, s{sW}, 1
    s_mul_i32 s{sT1}, s{sT1}, 40
    s_add_u32 s{sT0}, s{sT0}, s{sT1}
    s_mul_i32 s{sT1}, s{sJ}, 160
    s_add_u32 s{sT0}, s{sT0}, s{sT1}
    s_add_u32 s{sT0}, s{sT0}, {WS_Q}
    v_mul_u32_u24 v{t2}, 1280, v{vL32}
    v_add_u32 v{t2}, s{sT0}, v{t2}
    v_lshl_add_u32 v{t3}, v{vH}, 4, v{t2}
    """)
    a(f"""
    v_lshrrev_b32 v{t0}, 3, v0
    v_and_b32 v{t1}, 7, v0
    v_bfe_u32 v{vO2a}, v{t0}, 1, 1
    v_lshlrev_b32 v{vO2a}, 2, v{vO2a}
    s_lshl_b32 s{sT0}, s{sMI}, 1
    v_or_b32 v{vO2a}, s{sT0}, v{vO2a}
    v_xor_b32 v{vO2a}, v{vO2a}, v{t1}
    s_lshl_b32 s{sT0}, s{sW}, 3
    v_add_u32 v{vO1}, s{sT0}, v{t0}
    v_mul_u32_u24 v{vO1}, 3456, v{vO1}
    v_lshl_add_u32 v{vO1}, v{vO2a}, 4, v{vO1}
    s_lshl_b32 s{sT0}, s{sA}, 7
    v_add_u32 v{vO1}, s{sT0}, v{vO1}
    """)
    a(f"""
    v_lshrrev_b32 v{vO2b}, 1, v{t0}
    v_xor_b32 v{vO2b}, v{vO2b}, v{t1}
    s_mul_i32 s{sT0}, s{sB}, 80
    s_lshl_b32 s{sT1}, s{sW}, 4
    s_add_u32 s{sT0}, s{sT0}, s{sT1}
    s_lshl_b32 s{sT0}, s{sT0}, 12
    s_add_u32 s{sT0}, s{sT0}, {WS_HT}
    v_lshlrev_b32 v{vO2a}, 12, v{t0}
    v_lshl_add_u32 v{vO2a}, v{vO2b}, 4, v{vO2a}
    v_add_u32 v{vO2a}, s{sT0}, v{vO2a}
    v_xor_b32 v{vO2b}, 64, v{vO2a}
    v_add_u32 v{vO2b}, {8 * 4096}, v{vO2b}
    s_lshl_b32 s{sT0}, s{sW}, 11
    s_add_u32 s{sT1}, s{sT0}, {WS_KV - 5 * 2048}
    v_lshl_add_u32 v{t0}, v0, 4, s{sT1}
    v_add_u32 v{t1}, 1024, v{t0}
    s_mov_b32 s{sSt2}, 128
    s_mov_b32 s{sT1}, {HTB}
    s_mov_b32 s{sD1}, {HTS}
    s_cmp_ge_u32 s{sW}, 5
    s_cselect_b64 vcc, -1, 0
    s_cselect_b32 s{sSt2}, 6144, s{sSt2}
    s_cselect_b32 s{sT1}, {KVB - 5 * 2048}, s{sT1}
    s_cselect_b32 s{sD1}, {KVS}, s{sD1}
    v_cndmask_b32 v{vO2a}, v{vO2a}, v{t0}, vcc
    v_cndmask_b32 v{vO2b}, v{vO2b}, v{t1}, vcc
    s_add_u32 s{sM2[0]}, s{sT0}, s{sT1}
    """)
    for k in range(1, NR):
        a(f"s_add_u32 s{sM2[k]}, s{sM2[k - 1]}, s{sD1}")
    a(f"""
    s_lshl_b32 s{sD1}, s{sW}, 10
    s_mov_b32 s{sO1}, 0
    s_mov_b32 s{sO2}, 0
    s_waitcnt lgkmcnt(0)
    """)
    srd(a, SWS, 8, 9, WS_END)
    srd(a, SW1, 4, 5, 2048 * 3456)
    a.vmem(f"buffer_load_dwordx4 {v(Qa, 4)}, v{t3}, s[{SWS}:{SWS + 3}], 0 offen", "q")
    a.vmem(f"buffer_load_dwordx2 {v(Qb, 2)}, v{t2}, s[{SWS}:{SWS + 3}], 0 offen offset:32", "q")

    def issue(stg):
        slot = stg % NR
        tag = f"st{stg}"
        g = []
        g.append([("s", f"s_add_u32 m0, s{sD1}, {W1B + slot * W1S}"), ("s", "s_nop 0"),
                  ("m", f"buffer_load_dwordx4 v{vO1}, s[{SW1}:{SW1 + 3}], s{sO1} offen lds", tag),
                  ("s", f"s_add_u32 s{sO1}, s{sO1}, {64 * 3456}")])
        g.append([("s", f"s_mov_b32 m0, s{sM2[slot]}"), ("s", "s_nop 0"),
                  ("m", f"buffer_load_dwordx4 v{vO2a}, s[{SWS}:{SWS + 3}], s{sO2} offen lds", tag)])
        g.append([("s", f"s_add_u32 m0, s{sM2[slot]}, 1024"), ("s", "s_nop 0"),
                  ("m", f"buffer_load_dwordx4 v{vO2b}, s[{SWS}:{SWS + 3}], s{sO2} offen lds", tag),
                  ("s", f"s_add_u32 s{sO2}, s{sO2}, s{sSt2}")])
        return g

    def emit(group):
        for it in group:
            if it[0] == "s":
                a(it[1])
            else:
                a.vmem(it[1], it[2])

    for stg in range(5):
        for g in issue(stg):
            emit(g)
    srd(a, SB1, 6, 7, 3456)
    a(f"""
    s_lshl_b32 s{sT0}, s{sA}, 7
    v_lshl_add_u32 v{t0}, v{vI}, 3, s{sT0}
    """)
    a.vmem(f"buffer_load_dwordx2 {v(bias, 2)}, v{t0}, s[{SB1}:{SB1 + 3}], 0 offen", "bias")
    a(f"""
    v_lshrrev_b32 v{t0}, 2, v{vI}
    s_lshl_b32 s{sT0}, s{sP}, 5
    v_add_u32 v{t0}, s{sT0}, v{t0}
    v_bfe_u32 v{t1}, v{vI}, 3, 1
    v_lshlrev_b32 v{t1}, 2, v{t1}
    v_bfe_u32 v{t2}, v{vI}, 1, 1
    v_and_b32 v{t3}, 1, v{vI}
    v_lshlrev_b32 v{t3}, 3, v{t3}
    v_lshl_add_u32 v{aA32}, v{vH}, 3, v{t0}
    v_lshl_add_u32 v{aA32}, v{aA32}, 7, v{t3}
    v_lshl_add_u32 v{aA16}, v{vG}, 3, v{t0}
    v_lshl_add_u32 v{aA16}, v{aA16}, 7, v{t3}
    v_and_b32 v{t3}, 1, v{vG}
    v_lshl_add_u32 v{t0}, v{t3}, 1, v{t2}
    s_lshl_b32 s{sT0}, s{sMI}, 2
    v_add_u32 v{t0}, s{sT0}, v{t0}
    v_lshl_or_b32 v{aKa}, v{vH}, 1, v{t1}
    v_xor_b32 v{t0}, v{t0}, v{aKa}
    v_lshl_add_u32 v{aA32}, v{t0}, 4, v{aA32}
    s_lshl_b32 s{sT0}, s{sQ4}, 1
    v_add_u32 v{t0}, s{sT0}, v{t2}
    v_lshl_or_b32 v{aKa}, v{t3}, 1, v{t1}
    v_xor_b32 v{t0}, v{t0}, v{aKa}
    v_lshl_add_u32 v{aA16}, v{t0}, 4, v{aA16}
    """)
    a(f"""
    s_lshl_b32 s{sT0}, s{sP}, 2
    v_add_u32 v{t0}, s{sT0}, v{vH}
    v_bfe_u32 v{t1}, v{vL32}, 1, 3
    v_xor_b32 v{t0}, v{t0}, v{t1}
    s_lshl_b32 s{sT1}, s{sNI}, 12
    s_add_u32 s{sT1}, s{sT1}, {HTB}
    v_lshl_add_u32 v{t1}, v{vL32}, 7, s{sT1}
    v_lshl_add_u32 v{aB32[0]}, v{t0}, 4, v{t1}
    v_xor_b32 v{aB32[1]}, 32, v{aB32[0]}
    v_add_u32 v{t0}, s{sT0}, v{vG}
    v_lshrrev_b32 v{t1}, 1, v{vI}
    v_xor_b32 v{t0}, v{t0}, v{t1}
    v_lshlrev_b32 v{t1}, 7, v{vI}
    v_add_u32 v{t1}, {HTB + 64 * 128}, v{t1}
    v_lshl_add_u32 v{aB16}, v{t0}, 4, v{t1}
    v_lshlrev_b32 v{aKa}, 4, v0
    v_add_u32 v{aKa}, {KVB}, v{aKa}
    v_lshlrev_b32 v{aKb}, 3, v0
    v_add_u32 v{aKb}, {KVB + 2048}, v{aKb}
    v_cmp_le_u32 vcc, 24, v{vL32}
    v_mov_b32 v{t0}, 20
    v_cndmask_b32 v{t0}, v{vL32}, v{t0}, vcc
    v_mad_u32_u24 v{t0}, v{vH}, 24, v{t0}
    v_lshlrev_b32 v{aV}, 4, v{t0}
    v_add_u32 v{aV}, {KVB + 3072}, v{aV}
    v_mov_b32 v{idx}, 0xdddddddd
    """)
    for i in range(16):
        a(f"v_mov_b32 v{O + i}, 0")

    def rdKa(T):
        a.ds(f"ds_read_b128 {v(Ka, 4)}, v{aKa} offset:{(T // 2 % NR) * KVS + (T % 2) * 1024}", f"Ka{T}")

    def rdKb(T):
        a.ds(f"ds_read_b64 {v(Kb, 2)}, v{aKb} offset:{(T // 2 % NR) * KVS + (T % 2) * 512}", f"Kb{T}")

    def rdV(T, t):
        a.ds(f"ds_read_b128 {v(V2 if t else V1, 4)}, v{aV} offset:{(T // 2 % NR) * KVS + (T % 2) * 1536 + t * 768}",
             f"V{t}_{T}")

    def rdG32(stg, ks):
        sl = stg % NR
        for h in range(2):
            a.ds(f"ds_read_b64_tr_b16 {v(GA32[ks] + 2 * h, 2)}, v{aA32} offset:{W1B + sl * W1S + ks * 2048 + h * 512}",
                 f"G{ks}_{stg}")
        a.ds(f"ds_read_b128 {v(GB32[ks], 4)}, v{aB32[ks]} offset:{sl * HTS}", f"G{ks}_{stg}")

    def rdG16(stg):
        sl = stg % NR
        for h in range(2):
            a.ds(f"ds_read_b64_tr_b16 {v(GA16 + 2 * h, 2)}, v{aA16} offset:{W1B + sl * W1S + h * 512}", f"G2_{stg}")
        a.ds(f"ds_read_b128 {v(GB16, 4)}, v{aB16} offset:{sl * HTS}", f"G2_{stg}")

    def qka(d):
        a(f"v_mfma_f32_32x32x16_bf16 {v(d, 16)}, {v(Ka, 4)}, {v(Qa, 4)}, 0")

    def qkb(d):
        a(f"v_mfma_f32_32x32x8_bf16 {v(d, 16)}, {v(Kb, 2)}, {v(Qb, 2)}, {v(d, 16)}")

    def pv(d, t):
        a(f"v_smfmac_f32_32x32x32_bf16 {v(O, 16)}, {v(V2 if t else V1, 4)}, {v(d + 8 * t, 8)}, v{idx}")

    def halfmax(m, src):
        a(f"v_max3_f32 v{m}, v{src}, v{src + 1}, v{src + 2}")
        for k in range(3, 15, 2):
            a(f"v_max3_f32 v{m}, v{m}, v{src + k}, v{src + k + 1}")
        a(f"v_max_f32 v{m}, v{m}, v{src + 15}")

    def crosshalf(m, tmp):
        a(f"v_mov_b32 v{tmp}, v{m}")
        a(f"v_permlane32_swap_b32 v{m}, v{tmp}")
        a(f"v_max_f32 v{m}, v{m}, v{tmp}")

    a.wait(vm="q")
    a(f"""
    v_cmp_le_u32 s[50:51], 32, v0
    v_cndmask_b32 v{Qb}, v{Qb}, 0, s[50:51]
    v_cndmask_b32 v{Qb + 1}, v{Qb + 1}, 0, s[50:51]
    """)
    a.wait(vm="st1")
    a("s_barrier")
    rdKa(0)
    rdKb(0)
    for g in issue(5):
        emit(g)
    a.wait(lg="Kb0")
    qka(S[1])
    qkb(S[1])
    rdV(0, 0)
    if gemm:
        rdG32(0, 0)
        rdG16(0)
        rdG32(0, 1)
    halfmax(t0, S[1])
    crosshalf(t0, t1)
    a(f"v_cvt_pk_bf16_f32 v{t0}, -v{t0}, 0")
    a(f"v_cndmask_b32 v{Qb}, v{Qb}, v{t0}, s[50:51]")
    qka(S[0])
    rdKa(1)
    qkb(S[0])
    rdKb(1)

    NT = 2 * NST
    pend = []
    for t in range(NT):
        s_ = t // 2
        if t % 2 == 0 and t > 0:
            a.wait(vm=f"st{s_ + 1}", lg=f"V1_{t - 1}")
            if not nobar:
                a("s_barrier")
            if s_ == 8:
                a.cmt("MARK1")
            if s_ + 5 < NST and not nodma:
                pend = issue(s_ + 5)
        cur = S[t % 3]
        nxt = S[(t + 1) % 3]
        prv = S[(t + 2) % 3]

        def ex(lo, hi):
            for e in range(lo, hi):
                if not noexp:
                    a(f"v_exp_f32 v{cur + e}, v{cur + e}")

        def dma():
            if pend:
                emit(pend.pop(0))
        if t + 1 < NT:
            a.wait(lg=f"Ka{t + 1}")
            qka(nxt)
            if t + 2 < NT:
                rdKa(t + 2)
        ex(0, 2)
        dma()
        ex(2, 4)
        if t + 1 < NT:
            a.wait(lg=f"Kb{t + 1}")
            qkb(nxt)
            if t + 2 < NT:
                rdKb(t + 2)
        ex(4, 6)
        if gemm:
            ks = t % 2
            a.wait(lg=f"G{ks}_{s_}")
            c = "0" if t == 0 else v(G32, 16)
            a(f"v_mfma_f32_32x32x16_bf16 {v(G32, 16)}, {v(GA32[ks], 4)}, {v(GB32[ks], 4)}, {c}")
            if s_ + 1 < NST:
                rdG32(s_ + 1, ks)
        ex(6, 8)
        if t > 0:
            a.wait(lg=f"V1_{t - 1}")
            pv(prv, 1)
        rdV(t, 1)
        ex(8, 10)
        dma()
        ex(10, 12)
        a.wait(lg=f"V0_{t}")
        pv(cur, 0)
        if t + 1 < NT:
            rdV(t + 1, 0)
        ex(12, 14)
        if gemm and t % 2 == 0:
            a.wait(lg=f"G2_{s_}")
            c = "0" if t == 0 else v(G16, 4)
            a(f"v_mfma_f32_16x16x32_bf16 {v(G16, 4)}, {v(GA16, 4)}, {v(GB16, 4)}, {c}")
            if s_ + 1 < NST:
                rdG16(s_ + 1)
        ex(14, 16)
    if nomfma or nolds:
        i0 = max(i for i, ln in enumerate(a.L) if "MARK0" in ln) + 60
        a.L = a.L[:i0] + [ln for ln in a.L[i0:] if not ((nomfma and "mfma" in ln) or (nolds and "ds_read" in ln))]
    a.wait(lg=f"V1_{NT - 1}")
    pv(S[(NT - 1) % 3], 1)
    a("s_barrier")
    a(f"""
    s_mul_i32 s{sT0}, s{sP}, {RS}
    s_mul_i32 s{sT1}, s{sNI}, {32 * RP}
    s_add_u32 s{sT1}, s{sT1}, s{sT0}
    s_lshl_b32 s52, s{sMI}, 7
    s_add_u32 s{sT1}, s{sT1}, s52
    v_mul_u32_u24 v{t0}, {RP}, v{vL32}
    v_lshl_add_u32 v{t0}, v{vH}, 4, v{t0}
    v_add_u32 v{t0}, s{sT1}, v{t0}
    s_lshl_b32 s52, s{sQ4}, 6
    s_add_u32 s{sT0}, s{sT0}, s52
    s_add_u32 s{sT0}, s{sT0}, {64 * RP}
    v_mul_u32_u24 v{t1}, {RP}, v{vI}
    v_lshl_add_u32 v{t1}, v{vG}, 4, v{t1}
    v_add_u32 v{t1}, s{sT0}, v{t1}
    """)
    if gemm:
        for g in range(4):
            a.ds(f"ds_write_b128 v{t0}, {v(G32 + 4 * g, 4)} offset:{RB + 32 * g}")
        a.ds(f"ds_write_b128 v{t1}, {v(G16, 4)} offset:{RB}")
    a(f"v_add_f32 v{t2}, |v{O}|, |v{O + 1}|")
    for k in range(2, 12):
        a(f"v_add_f32 v{t2}, v{t2}, |v{O + k}|")
    a(f"""
    v_mov_b32 v{t3}, {f32(2.0 ** 120)}
    v_cmp_nle_f32 s[52:53], v{t2}, v{t3}
    v_mov_b32 v{t3}, {f32(2.0 ** 64)}
    v_cmp_nle_f32 s[54:55], v{O + 12}, v{t3}
    v_cmp_nle_f32 vcc, {f32(2.0 ** -64)}, v{O + 12}
    s_or_b64 s[52:53], s[52:53], s[54:55]
    s_or_b64 vcc, vcc, s[52:53]
    s_cbranch_vccnz K2_fallback
    """)
    a.label("K2_norm")
    pk = S[0]
    a(f"""
    v_rcp_f32 v{t2}, v{O + 12}
    s_lshl_b32 s{sT0}, s{sMI}, 5
    v_add_u32 v{t0}, s{sT0}, v{vL32}
    v_mul_u32_u24 v{t0}, {OP}, v{t0}
    v_lshl_add_u32 v{t0}, v{vH}, 3, v{t0}
    s_lshr_b32 s{sT0}, s{sW}, 1
    s_mul_i32 s{sT0}, s{sT0}, 40
    s_add_u32 s{sT0}, s{sT0}, {OIMG}
    v_add_u32 v{t0}, s{sT0}, v{t0}
    """)
    for k in range(12):
        a(f"v_mul_f32 v{O + k}, v{O + k}, v{t2}")
    for k in range(6):
        a(f"v_cvt_pk_bf16_f32 v{pk + k}, v{O + 2 * k}, v{O + 2 * k + 1}")
    a.ds(f"ds_write_b64 v{t0}, {v(pk, 2)}")
    a.ds(f"ds_write_b64 v{t0}, {v(pk + 2, 2)} offset:16")
    a("s_mov_b32 exec_hi, 0")
    a.ds(f"ds_write_b64 v{t0}, {v(pk + 4, 2)} offset:32")
    a("s_mov_b32 exec_hi, -1")
    ol = [S[1], S[1] + 1]
    og = [S[1] + 2, S[1] + 3]
    a(f"""
    s_lshl_b32 s{sT0}, s{sW}, 3
    s_lshl_b32 s{sT1}, s{sI}, 6
    s_mul_i32 s52, s{sJ}, 160
    s_add_u32 s52, s52, {WS_O}
    """)
    for r in range(2):
        a(f"""
        v_add_u32 v{t0}, {64 * r}, v0
        v_mul_u32_u24 v{t1}, 103, v{t0}
        v_lshrrev_b32 v{t1}, 10, v{t1}
        v_mul_u32_u24 v{t2}, 10, v{t1}
        v_sub_u32 v{t2}, v{t0}, v{t2}
        v_add_u32 v{t1}, s{sT0}, v{t1}
        v_mul_u32_u24 v{ol[r]}, {OP}, v{t1}
        v_lshl_add_u32 v{ol[r]}, v{t2}, 4, v{ol[r]}
        v_add_u32 v{t1}, s{sT1}, v{t1}
        v_mul_u32_u24 v{og[r]}, 1280, v{t1}
        v_lshl_add_u32 v{og[r]}, v{t2}, 4, v{og[r]}
        """)
    ul, ug = S[1] + 4, S[1] + 5
    a(f"""
    v_add_u32 v{t0}, s{sT0}, v{vG}
    v_mul_u32_u24 v{ul}, {RP}, v{t0}
    v_lshl_add_u32 v{ul}, v{vI}, 4, v{ul}
    s_mul_i32 s{sT1}, s{sB}, 80
    v_add_u32 v{t0}, s{sT1}, v{t0}
    v_mul_u32_u24 v{ug}, {U_PITCH}, v{t0}
    v_lshl_add_u32 v{ug}, v{vI}, 3, v{ug}
    s_lshl_b32 s53, s{sA}, 7
    s_add_u32 s53, s53, {WS_U}
    """)
    a.wait_all()
    a("s_barrier")
    d = S[2]
    a.ds(f"ds_read_b128 {v(d, 4)}, v{ol[0]} offset:{OIMG}", "o0")
    a.ds(f"ds_read_b128 {v(d + 4, 4)}, v{ol[1]} offset:{OIMG}", "o1")
    u = [G32, G32 + 8, O]
    bs = S[0]
    if gemm:
        for r in range(2):
            a.ds(f"ds_read_b128 {v(u[r], 4)}, v{ul} offset:{RB + 4 * r * RP}", f"u{r}")
            a.ds(f"ds_read_b128 {v(u[r] + 4, 4)}, v{ul} offset:{RB + RS + 4 * r * RP}", f"u{r}")
        a(f"""
        s_lshl_b32 s{sT0}, s{sW}, 2
        s_sub_u32 s{sT0}, 64, s{sT0}
        s_mul_i32 s{sT1}, s{sT0}, {RP}
        v_add_u32 v{t0}, s{sT1}, v{ul}
        s_mul_i32 s54, s{sT0}, {U_PITCH}
        s_add_u32 s54, s54, s53
        """)
        a.ds(f"ds_read_b128 {v(u[2], 4)}, v{t0} offset:{RB}", "u2")
        a.ds(f"ds_read_b128 {v(u[2] + 4, 4)}, v{t0} offset:{RB + RS}", "u2")
        for e in range(2):
            a(f"v_lshlrev_b32 v{bs + 2 * e}, 16, v{bias + e}")
            a(f"v_and_b32 v{bs + 2 * e + 1}, 0xffff0000, v{bias + e}")
    a.wait(lg="o0")
    a(f"buffer_store_dwordx4 {v(d, 4)}, v{og[0]}, s[{SWS}:{SWS + 3}], s52 offen {st}")
    a.wait(lg="o1")
    a("s_mov_b64 exec, 0xffff")
    a(f"buffer_store_dwordx4 {v(d + 4, 4)}, v{og[1]}, s[{SWS}:{SWS + 3}], s52 offen {st}")
    a("s_mov_b64 exec, -1")
    if gemm:
        a(f"s_cmp_ge_u32 s{sIdx}, 27")
        a("s_cbranch_scc1 K2_end")
        k0 = -2.0 * math.sqrt(2.0 / math.pi) * math.log2(math.e)
        k1 = k0 * 0.044715
        a(f"s_mov_b32 s55, {f32(k0)}")
        a(f"s_add_u32 s56, s53, {4 * U_PITCH}")
        w = S[0] + 4
        for r in range(3):
            if r == 2:
                a(f"s_cmp_ge_u32 s{sW}, 4")
                a("s_cbranch_scc1 K2_end")
            a.wait(lg=f"u{r}")
            for j in range(4):
                a(f"v_add_f32 v{u[r] + j}, v{u[r] + j}, v{u[r] + 4 + j}")
            for j in range(4):
                a(f"v_add_f32 v{u[r] + j}, v{u[r] + j}, v{bs + j}")
            for j in range(4):
                a(f"v_mul_f32 v{w + j}, v{u[r] + j}, v{u[r] + j}")
            for j in range(4):
                a(f"v_fmaak_f32 v{w + j}, {f32(k1)}, v{w + j}, {f32(k0)}" if False else
                  f"v_fmamk_f32 v{w + j}, v{w + j}, {f32(k1)}, v{t3}")
            for j in range(4):
                a(f"v_mul_f32 v{w + j}, v{w + j}, v{u[r] + j}")
            for j in range(4):
                a(f"v_exp_f32 v{w + j}, v{w + j}")
            for j in range(4):
                a(f"v_add_f32 v{w + j}, 1.0, v{w + j}")
            for j in range(4):
                a(f"v_rcp_f32 v{w + j}, v{w + j}")
            for j in range(4):
                a(f"v_mul_f32 v{w + j}, v{w + j}, v{u[r] + j}")
            a(f"v_cvt_pk_bf16_f32 v{u[r] + 4}, v{w}, v{w + 1}")
            a(f"v_cvt_pk_bf16_f32 v{u[r] + 5}, v{w + 2}, v{w + 3}")
            a(f"buffer_store_dwordx2 {v(u[r] + 4, 2)}, v{ug}, s[{SWS}:{SWS + 3}], s{(53, 56, 54)[r]} offen {st}")
        i0 = max(i for i, ln in enumerate(a.L) if "s_mov_b32 s55" in ln)
        a.L.insert(i0, f"    v_mov_b32 v{t3}, {f32(k0)}")
    a.label("K2_end")
    a("s_endpgm")

    a.label("K2_fallback")
    m = t2
    gka, gkb, gv = GA32[0], GA32[0] + 1, GA32[0] + 2
    a(f"""
    s_nop 7
    v_cndmask_b32 v{Qb}, v{Qb}, 0, s[50:51]
    v_add_u32 v{gka}, {WS_KV - KVB}, v{aKa}
    v_add_u32 v{gkb}, {WS_KV - KVB}, v{aKb}
    v_add_u32 v{gv}, {WS_KV - KVB}, v{aV}
    v_mov_b32 v{m}, 0xff800000
    s_mov_b32 s57, 0
    """)
    for i in range(16):
        a(f"v_mov_b32 v{O + i}, 0")
    a.label("K2_fb1")
    for T in range(2):
        a(f"buffer_load_dwordx4 {v(Ka, 4)}, v{gka}, s[{SWS}:{SWS + 3}], s57 offen offset:{T * 1024}")
        a(f"buffer_load_dwordx2 {v(Kb, 2)}, v{gkb}, s[{SWS}:{SWS + 3}], s57 offen offset:{T * 512}")
        a("s_waitcnt vmcnt(0)")
        qka(S[0])
        qkb(S[0])
        halfmax(t3, S[0])
        a(f"v_max_f32 v{m}, v{m}, v{t3}")
    a(f"""
    s_add_u32 s57, s57, 6144
    s_cmp_lt_u32 s57, {KV_BYTES}
    s_cbranch_scc1 K2_fb1
    """)
    crosshalf(m, t3)
    a("s_mov_b32 s57, 0")
    a.label("K2_fb2")
    for T in range(2):
        a(f"buffer_load_dwordx4 {v(Ka, 4)}, v{gka}, s[{SWS}:{SWS + 3}], s57 offen offset:{T * 1024}")
        a(f"buffer_load_dwordx2 {v(Kb, 2)}, v{gkb}, s[{SWS}:{SWS + 3}], s57 offen offset:{T * 512}")
        a(f"buffer_load_dwordx4 {v(V1, 4)}, v{gv}, s[{SWS}:{SWS + 3}], s57 offen offset:{T * 1536}")
        a(f"buffer_load_dwordx4 {v(V2, 4)}, v{gv}, s[{SWS}:{SWS + 3}], s57 offen offset:{T * 1536 + 768}")
        a("s_waitcnt vmcnt(0)")
        qka(S[0])
        qkb(S[0])
        for e in range(16):
            a(f"v_sub_f32 v{S[0] + e}, v{S[0] + e}, v{m}")
        for e in range(16):
            a(f"v_exp_f32 v{S[0] + e}, v{S[0] + e}")
        pv(S[0], 0)
        pv(S[0], 1)
        a("s_nop 7")
    a(f"""
    s_add_u32 s57, s57, 6144
    s_cmp_lt_u32 s57, {KV_BYTES}
    s_cbranch_scc1 K2_fb2
    s_nop 15
    s_branch K2_norm
    """)
    return a.L, nv, 64
```

```python
import sys
from asmlib import *
import k1, k2, k3
NAME = "parallel_sum__grouped_kv_mqa__mixer_token_mlp__prompt"
STAMP_OFF = 0x1000000
def stamp(L, ki):
    pre = ["    s_memrealtime s[64:65]", "    s_memtime s[66:67]", "    v_lshrrev_b32 v1, 6, v0", "    s_nop 1",
           "    v_readfirstlane_b32 s72, v1", "    s_mov_b32 s74, 0", "    s_mov_b32 s75, 0", "    s_mov_b32 s76, 0", "    s_mov_b32 s77, 0"]
    post = f"""    s_waitcnt vmcnt(0) lgkmcnt(0)
    s_memrealtime s[68:69]
    s_memtime s[70:71]
    s_load_dwordx2 s[62:63], s[0:1], 96
    s_lshl_b32 s73, s2, 3
    s_add_u32 s73, s73, s72
    s_lshl_b32 s73, s73, 5
    s_add_u32 s73, s73, {STAMP_OFF + ki * 0x20000}
    s_mov_b64 exec, 1
    s_waitcnt lgkmcnt(0)
    v_mov_b32 v1, s73
    v_mov_b32 v4, s64
    v_mov_b32 v5, s68
    v_mov_b32 v6, s66
    v_mov_b32 v7, s70
    global_store_dwordx4 v1, v[4:7], s[62:63]
    v_mov_b32 v8, s74
    v_mov_b32 v9, s75
    v_mov_b32 v10, s76
    v_mov_b32 v11, s77
    global_store_dwordx4 v1, v[8:11], s[62:63] offset:16
    s_endpgm""".split("\n")
    out = list(pre)
    for ln in L:
        if ln.strip() == "s_endpgm":
            out += post
        elif ln.strip().startswith("; MARK"):
            k = int(ln.strip()[6:])
            out += ["    s_memtime s[78:79]", "    s_waitcnt lgkmcnt(0)", f"    s_mov_b32 s{74 + k}, s78"]
        else:
            out.append(ln)
    return out

def build(opts=None):
    opts = opts or {}
    ks = [("k1_kernel", k1.gen_k1(opts.get("st1", ""), **opts.get("k1", {})), k1.LDS_K1),
          ("k2_kernel", k2.gen_k2(opts.get("st2", ""), **opts.get("k2", {})), k2.LDS_K2),
          ("k3_kernel", k3.gen_k3(opts.get("st3", ""), **opts.get("k3", {})), k3.LDS_K3)]
    head = open("cdna_kernels/%s.s.ref" % NAME).read().split("; Override launch")[0]
    out = head
    for n, _, lds in ks:
        out += f"; @launch kernel={n} grid=(256,1,1) block=(512,1,1) lds={lds}\n"
    for i in range(opts.get("empty", 0)):
        out += f"; @launch kernel=empty_kernel grid=(256,1,1) block=(512,1,1) lds=0\n"
    out += '.amdgcn_target "amdgcn-amd-amdhsa--gfx950"\n.text\n'
    descs = ""
    if opts.get("empty", 0):
        ks.append(("empty_kernel", (["    s_endpgm"], 8, 16), 0))
    for ki, (n, (L, nv, ns), lds) in enumerate(ks):
        if opts.get("stamp"):
            L = stamp(L, ki)
            ns = 80
        t, d, nn = kernel_text(n, L, nv, ns)
        print(f"{n}: {len(L)} lines, vgpr {nv}, nops inserted {nn}", file=sys.stderr)
        out += t
        descs += ".p2align 6\n" + d
    out += '.section .rodata,"a"\n' + descs
    return out
if __name__ == "__main__":
    path = sys.argv[1] if len(sys.argv) > 1 else "cdna_kernels/%s.s" % NAME
    opts = eval(sys.argv[2]) if len(sys.argv) > 2 else {}
    open(path, "w").write(build(opts))
```

```python
from asmlib import *
from layout import *

USZ = 9216
RING = 3 * USZ


class Engine:
    def __init__(self, a, V, sW4, sBase, sT, sL, sTmp):
        self.a = a
        self.sW4, self.sBase, self.sT, self.sL, self.sTmp = sW4, sBase, sT, sL, sTmp
        self.oT = [V.alloc() for _ in range(4)]
        self.oL = [V.alloc(), V.alloc()]
        self.aT32 = [V.alloc(), V.alloc()]
        self.aT16 = [V.alloc() for _ in range(4)]
        self.aL32 = [V.alloc(), V.alloc()]
        self.aL16 = V.alloc()
        self.t = [V.alloc() for _ in range(4)]
        self.C32 = [[V.alloc(16, 4) for _ in range(2)] for _ in range(2)]
        self.C16 = [V.alloc(4, 4) for _ in range(4)]
        self.T32 = [[V.alloc(4, 4) for _ in range(2)] for _ in range(2)]
        self.L32 = [[V.alloc(4, 4) for _ in range(2)] for _ in range(2)]
        self.T16 = [V.alloc(4, 4) for _ in range(4)]
        self.L16 = V.alloc(4, 4)
        self.n_issued = 0
        self.mpat = None

    def dma_addrs_T(self, pitch, sCol):
        a = self.a
        t0, t1, t2, _ = self.t
        a(f"""
        v_lshrrev_b32 v{t0}, 3, v0
        v_and_b32 v{t1}, 7, v0
        v_bfe_u32 v{t2}, v{t0}, 1, 1
        v_lshlrev_b32 v{t2}, 2, v{t2}
        v_xor_b32 v{t1}, v{t1}, v{t2}
        v_mul_u32_u24 v{t0}, {pitch}, v{t0}
        v_lshl_add_u32 v{t0}, v{t1}, 4, v{t0}
        v_add_u32 v{self.oT[0]}, s{sCol}, v{t0}
        v_xor_b32 v{self.oT[1]}, 32, v{self.oT[0]}
        v_add_u32 v{self.oT[1]}, {8 * pitch}, v{self.oT[1]}
        v_add_u32 v{self.oT[2]}, {16 * pitch}, v{self.oT[0]}
        v_add_u32 v{self.oT[3]}, {16 * pitch}, v{self.oT[1]}
        """)

    def dma_addrs_L(self):
        self.a(f"v_lshlrev_b32 v{self.oL[0]}, 4, v0")
        self.a(f"v_add_u32 v{self.oL[1]}, 4096, v{self.oL[0]}")

    def lds_addrs(self):
        a = self.a
        t0, t1, t2, t3 = self.t
        I, G = self.T16[0], self.T16[0] + 1
        H, R = self.T16[0] + 2, self.T16[0] + 3
        a(f"""
        v_and_b32 v{I}, 15, v0
        v_lshrrev_b32 v{G}, 4, v0
        v_lshrrev_b32 v{H}, 5, v0
        v_and_b32 v{R}, 31, v0
        v_lshrrev_b32 v{t0}, 2, v{I}
        v_and_b32 v{t3}, 1, v{I}
        v_lshl_add_u32 v{t3}, v{t3}, 3, s{self.sBase}
        v_lshl_add_u32 v{t1}, v{H}, 3, v{t0}
        v_lshl_add_u32 v{self.aT32[0]}, v{t1}, 7, v{t3}
        v_lshl_add_u32 v{t1}, v{G}, 3, v{t0}
        v_lshl_add_u32 v{self.aT16[0]}, v{t1}, 7, v{t3}
        v_bfe_u32 v{t1}, v{I}, 3, 1
        v_lshlrev_b32 v{t1}, 2, v{t1}
        v_bfe_u32 v{t2}, v{I}, 1, 1
        v_and_b32 v{t3}, 1, v{G}
        v_lshl_add_u32 v{t0}, v{t3}, 1, v{t2}
        v_lshl_or_b32 v{self.aL16}, v{H}, 1, v{t1}
        v_xor_b32 v{t0}, v{t0}, v{self.aL16}
        v_lshl_add_u32 v{self.aT32[0]}, v{t0}, 4, v{self.aT32[0]}
        v_xor_b32 v{self.aT32[1]}, 64, v{self.aT32[0]}
        v_lshl_or_b32 v{self.aL16}, v{t3}, 1, v{t1}
        v_xor_b32 v{t0}, v{t2}, v{self.aL16}
        v_lshl_add_u32 v{self.aT16[0]}, v{t0}, 4, v{self.aT16[0]}
        v_xor_b32 v{self.aT16[1]}, 32, v{self.aT16[0]}
        v_xor_b32 v{self.aT16[2]}, 64, v{self.aT16[0]}
        v_xor_b32 v{self.aT16[3]}, 96, v{self.aT16[0]}
        s_add_u32 s{self.sTmp}, s{self.sBase}, 4096
        v_mov_b32 v{t3}, {GLUT}
        v_bfe_u32 v{t0}, v{I}, 2, 2
        v_lshlrev_b32 v{t0}, 1, v{t0}
        v_lshrrev_b32 v{t0}, v{t0}, v{t3}
        v_and_b32 v{t0}, 3, v{t0}
        v_xor_b32 v{t1}, v{t0}, v{H}
        v_lshl_add_u32 v{t2}, v{R}, 6, s{self.sTmp}
        v_lshl_add_u32 v{self.aL32[0]}, v{t1}, 4, v{t2}
        v_xor_b32 v{self.aL32[1]}, 32, v{self.aL32[0]}
        v_xor_b32 v{t1}, v{t0}, v{G}
        v_lshl_add_u32 v{t2}, v{I}, 6, s{self.sTmp}
        v_lshl_add_u32 v{self.aL16}, v{t1}, 4, v{t2}
        v_add_u32 v{self.aL16}, 4096, v{self.aL16}
        """)

    def issue_ops(self, ST, SL, stepT, stepL, modT="", modL=""):
        a = self.a
        n = self.n_issued
        self.n_issued += 1
        o = (n % 3) * USZ
        tag = f"u{n}"
        ops = []

        def T(r):
            a(f"s_add_u32 m0, s{self.sBase}, {o + r * 1024}")
            a("s_nop 0")
            a.vmem(f"buffer_load_dwordx4 v{self.oT[r]}, s[{ST}:{ST + 3}], s{self.sT} offen {modT} lds", tag)

        def L(r):
            if r == 0:
                a(f"s_add_u32 m0, s{self.sBase}, {o + 4096}")
                a(f"s_add_u32 s{self.sT}, s{self.sT}, {stepT}")
            if r < 4:
                a.vmem(f"buffer_load_dwordx4 v{self.oL[0]}, s[{SL}:{SL + 3}], s{self.sL} offen offset:{r * 1024} {modL} lds", tag)
            else:
                a(f"s_add_u32 m0, s{self.sBase}, {o + 8192}")
                a("s_nop 0")
                a.vmem(f"buffer_load_dwordx4 v{self.oL[1]}, s[{SL}:{SL + 3}], s{self.sL} offen {modL} lds", tag)
                a(f"s_add_u32 s{self.sL}, s{self.sL}, {stepL}")
        for r in range(4):
            ops.append(lambda r=r: T(r))
        for r in range(5):
            ops.append(lambda r=r: L(r))
        return ops

    def issue(self, *args, **kw):
        for op in self.issue_ops(*args, **kw):
            op()

    def rdT32(self, n, ks, b):
        o = (n % 3) * USZ
        for h in range(2):
            self.a.ds(f"ds_read_b64_tr_b16 {v(self.T32[ks][b] + 2 * h, 2)}, v{self.aT32[b]} offset:{o + ks * 2048 + h * 512}",
                      f"T{ks}{b}_{n}")

    def rdL32(self, n, ks, b):
        o = (n % 3) * USZ
        self.a.ds(f"ds_read_b128 {v(self.L32[ks][b], 4)}, v{self.aL32[ks]} offset:{o + b * 2048}", f"L{ks}{b}_{n}")

    def rdT16(self, n, q):
        o = (n % 3) * USZ
        for h in range(2):
            self.a.ds(f"ds_read_b64_tr_b16 {v(self.T16[q] + 2 * h, 2)}, v{self.aT16[q]} offset:{o + h * 512}", f"t{q}_{n}")

    def rdL16(self, n):
        o = (n % 3) * USZ
        self.a.ds(f"ds_read_b128 {v(self.L16, 4)}, v{self.aL16} offset:{o}", f"l_{n}")

    def first_reads(self, n):
        self.a.wait(vm=f"u{n}")
        for ks in range(2):
            self.rdT32(n, ks, 0)
            self.rdL32(n, ks, 0)
            self.rdL32(n, ks, 1)
            self.rdT32(n, ks, 1)
        self.rdL16(n)
        for q in range(4):
            self.rdT16(n, q)

    def unit(self, n, t_is_a, zero, has_next, issue_fn):
        a = self.a
        dm = issue_fn() if issue_fn else []
        cntr = [0]

        def mm(T, L, C, k, z, tags):
            a.wait(lg=tags)
            A, B = (T, L) if t_is_a else (L, T)
            op = "v_mfma_f32_32x32x16_bf16" if k == 16 else "v_mfma_f32_16x16x32_bf16"
            hi = self.mpat and self.mpat[cntr[0] % len(self.mpat)] == '1'
            cntr[0] += 1
            if hi:
                a("s_setprio 1")
            a(f"{op} {v(C, k)}, {v(A, 4)}, {v(B, 4)}, {'0' if z else v(C, k)}")
            if hi:
                a("s_setprio 0")

        def d(k=1):
            for _ in range(k):
                if dm:
                    a.wait(lg=[f"t3_{n}"])
                    dm.pop(0)()
        nx = n + 1
        for ks in range(2):
            z = zero and ks == 0
            mm(self.T32[ks][0], self.L32[ks][0], self.C32[0][0], 16, z, [f"T{ks}0_{n}", f"L{ks}0_{n}"])
            if ks:
                d()
            mm(self.T32[ks][0], self.L32[ks][1], self.C32[0][1], 16, z, [f"L{ks}1_{n}"])
            if has_next:
                if ks == 0:
                    a.wait(vm=f"u{nx}")
                self.rdT32(nx, ks, 0)
            mm(self.T32[ks][1], self.L32[ks][0], self.C32[1][0], 16, z, [f"T{ks}1_{n}"])
            if has_next:
                self.rdL32(nx, ks, 0)
            d()
            mm(self.T32[ks][1], self.L32[ks][1], self.C32[1][1], 16, z, [])
            if has_next:
                self.rdL32(nx, ks, 1)
                self.rdT32(nx, ks, 1)
            d()
        for q in range(4):
            mm(self.T16[q], self.L16, self.C16[q], 4, zero, [f"t{q}_{n}", f"l_{n}"])
            if has_next:
                if q == 3:
                    self.rdL16(nx)
                self.rdT16(nx, q)
            d()
        while dm:
            d()

    def dump(self, t_is_a, pitch):
        a = self.a
        t0, t1, t2, t3 = self.t
        a(f"""
        v_and_b32 v{t0}, 31, v0
        v_lshrrev_b32 v{t1}, 5, v0
        v_mul_u32_u24 v{t0}, {pitch}, v{t0}
        v_lshl_add_u32 v{t0}, v{t1}, 4, v{t0}
        v_add_u32 v{t0}, s{self.sBase}, v{t0}
        v_and_b32 v{t2}, 15, v0
        v_lshrrev_b32 v{t1}, 4, v0
        v_mul_u32_u24 v{t2}, {pitch}, v{t2}
        v_lshl_add_u32 v{t2}, v{t1}, 4, v{t2}
        v_add_u32 v{t2}, s{self.sBase}, v{t2}
        """)
        for tb in range(2):
            for lb in range(2):
                col, row = (lb, tb) if t_is_a else (tb, lb)
                for g in range(4):
                    a.ds(f"ds_write_b128 v{t0}, {v(self.C32[tb][lb] + 4 * g, 4)} offset:{col * 32 * pitch + row * 128 + g * 32}")
        for q in range(4):
            off = (64 * pitch + q * 64) if t_is_a else (q * 16 * pitch + 256)
            a.ds(f"ds_write_b128 v{t2}, {v(self.C16[q], 4)} offset:{off}")
```

```python
from asmlib import *
from layout import *
import math

XS = 12288
WSZ = 8192
NR = 5
XB = 0
WB = NR * XS
STAT = WB + NR * WSZ
QIMG = STAT + 4 * 384
QP = 144
HIMG = QIMG + 96 * QP
HP = 208
LDS_K1 = HIMG + 64 * HP


def srd(a, d, lo, hi, size, off=0):
    if off:
        a(f"s_add_u32 s{d}, s{lo}, {off}")
        a(f"s_addc_u32 s{d + 1}, s{hi}, 0")
    else:
        a(f"s_mov_b32 s{d}, s{lo}")
        a(f"s_mov_b32 s{d + 1}, s{hi}")
    a(f"s_mov_b32 s{d + 2}, {size}")
    a(f"s_mov_b32 s{d + 3}, 0x20000")


def bf16r(a, d, x):
    a(f"v_cvt_pk_bf16_f32 v{d}, v{x}, v{x}")
    a(f"v_and_b32 v{d}, 0xffff0000, v{d}")


def gen_k1(st="", pf1=True, lprio=3, NPRE=4):
    a = Asm()
    V = Regs('v', 1)
    sT, sRB, sCB, sW = 16, 17, 18, 19
    SX, SW, SW2, SQ, SH, SKV = 20, 24, 28, 32, 36, 40
    sKC, sOX, sOW, sMX, sMW, sT0, sT1, sRH, sCK = 44, 45, 46, 47, 48, 49, 50, 51, 52
    t0, t1, t2, t3 = [V.alloc() for _ in range(4)]
    vI, vG = V.alloc(), V.alloc()
    ones = V.alloc(4, 4)
    ql, qg, hl, hg = [V.alloc() for _ in range(4)]
    base = V.n
    vXa = [V.alloc() for _ in range(2)]
    vWa, vPa, vQw = V.alloc(), V.alloc(), V.alloc()
    XF = [[V.alloc(4, 4) for _ in range(6)] for _ in range(2)]
    WF = [[V.alloc(4, 4) for _ in range(2)] for _ in range(2)]
    acc = [V.alloc(4, 4) for _ in range(3)]
    cs = V.alloc(4, 4)
    tmp = V.alloc(16, 4)
    nv = V.n
    V.n = base
    vXo = [V.alloc() for _ in range(3)]
    vWo = [V.alloc() for _ in range(2)]
    vSw, vHw, vGa, vPf = [V.alloc() for _ in range(4)]
    vSa = [V.alloc(), V.alloc()]
    vHa = [V.alloc() for _ in range(6)]
    SF = [V.alloc(16, 4) for _ in range(2)]
    GR = [V.alloc(4, 4) for _ in range(2)]
    SU = [V.alloc(4, 4) for _ in range(2)]
    lt = V.alloc(16, 4)
    hx = V.alloc(12, 4)
    hG = V.alloc(48, 4)
    nv = max(nv, V.n)

    a(f"""
    s_cmp_ge_u32 s2, 256
    s_cbranch_scc1 K1_end
    s_load_dwordx8 s[4:11], s[0:1], 0
    s_load_dwordx2 s[14:15], s[0:1], 96
    s_load_dwordx2 s[68:69], s[0:1], 48
    v_lshrrev_b32 v{t0}, 6, v0
    v_and_b32 v0, 63, v0
    s_and_b32 s{sT}, s2, 7
    v_readfirstlane_b32 s{sW}, v{t0}
    s_lshl_b32 s{sT}, s{sT}, 5
    s_lshr_b32 s{sRB}, s2, 3
    s_add_u32 s{sT}, s{sT}, s{sRB}
    s_cmp_ge_u32 s{sT}, 242
    s_cbranch_scc1 K1_zero
    s_mul_i32 s{sRB}, s{sT}, 745
    s_lshr_b32 s{sRB}, s{sRB}, 13
    s_mul_i32 s{sCB}, s{sRB}, 11
    s_sub_u32 s{sCB}, s{sT}, s{sCB}
    s_and_b32 s{sCK}, s{sW}, 3
    s_lshr_b32 s{sRH}, s{sW}, 2
    s_cmp_lt_u32 s{sW}, 8
    s_cbranch_scc1 K1_comp
    """)

    def store_addrs():
        a(f"""
        v_lshrrev_b32 v{t0}, 3, v0
        v_and_b32 v{t1}, 7, v0
        s_lshl_b32 s{sT0}, s{sW}, 3
        v_add_u32 v{t0}, s{sT0}, v{t0}
        v_mul_u32_u24 v{ql}, {QP}, v{t0}
        v_lshl_add_u32 v{ql}, v{t1}, 4, v{ql}
        v_add_u32 v{ql}, {QIMG}, v{ql}
        s_mul_i32 s{sT1}, s{sRB}, 96
        v_add_u32 v{t0}, s{sT1}, v{t0}
        v_mul_u32_u24 v{qg}, 1280, v{t0}
        v_lshl_add_u32 v{qg}, v{t1}, 4, v{qg}
        s_lshl_b32 s{sT0}, s{sCB}, 7
        v_add_u32 v{qg}, s{sT0}, v{qg}
        s_lshl_b32 s{sT0}, s{sCB}, 2
        s_add_u32 s{sT0}, s{sT0}, s{sCK}
        s_mul_i32 s{sT1}, s{sT0}, 205
        s_lshr_b32 s{sT1}, s{sT1}, 10
        s_mul_i32 s53, s{sT1}, 5
        s_sub_u32 s53, s{sT0}, s53
        s_mul_i32 s54, s{sRB}, 3
        s_add_u32 s54, s54, s{sRH}
        s_lshl_b32 s{sT1}, s{sT1}, 6
        s_add_u32 s{sT1}, s{sT1}, s54
        s_mul_i32 s{sT1}, s{sT1}, {LUNIT}
        s_lshl_b32 s53, s53, 10
        s_add_u32 s{sT1}, s{sT1}, s53
        s_cmp_ge_u32 s54, 64
        s_cselect_b32 s{sT1}, 0x40000000, s{sT1}
        v_lshl_add_u32 v{hg}, v0, 4, s{sT1}
        v_lshlrev_b32 v{t0}, 1, v{vG}
        v_mov_b32 v{t1}, {GLUT}
        v_lshrrev_b32 v{t0}, v{t0}, v{t1}
        v_xor_b32 v{t0}, v{t0}, v0
        v_and_b32 v{t0}, 3, v{t0}
        v_lshrrev_b32 v{t1}, 2, v0
        s_lshl_b32 s{sT0}, s{sCK}, 4
        v_add_u32 v{t1}, s{sT0}, v{t1}
        v_mul_u32_u24 v{hl}, {HP}, v{t1}
        v_lshl_add_u32 v{hl}, v{t0}, 4, v{hl}
        s_lshl_b32 s{sT0}, s{sRH}, 6
        s_add_u32 s{sT0}, s{sT0}, {HIMG}
        v_add_u32 v{hl}, s{sT0}, v{hl}
        """)

    def final_store(d):
        a.wait_all(vm=False)
        a("s_barrier")
        a.ds(f"ds_read_b128 {v(d, 4)}, v{ql}", "a")
        a.ds(f"ds_read_b128 {v(d + 4, 4)}, v{hl}", "b")
        a.wait(lg="a")
        a(f"buffer_store_dwordx4 {v(d, 4)}, v{qg}, s[{SQ}:{SQ + 3}], 0 offen {st}")
        a.wait(lg="b")
        a(f"buffer_store_dwordx4 {v(d + 4, 4)}, v{hg}, s[{SH}:{SH + 3}], 0 offen {st}")
        a("s_endpgm")

    a(f"""
    s_setprio {lprio}
    v_lshrrev_b32 v{t0}, 3, v0
    v_and_b32 v{t1}, 7, v0
    s_mul_i32 s{sT0}, s{sCK}, 24
    v_add_u32 v{t2}, s{sT0}, v{t0}
    v_bfe_u32 v{t3}, v{t2}, 1, 3
    v_xor_b32 v{t3}, v{t3}, v{t1}
    s_mul_i32 s{sT1}, s{sRB}, 96
    v_add_u32 v{t2}, s{sT1}, v{t2}
    v_mul_u32_u24 v{t2}, 1280, v{t2}
    v_lshl_add_u32 v{vXo[0]}, v{t3}, 4, v{t2}
    v_xor_b32 v{vXo[1]}, 64, v{vXo[0]}
    v_add_u32 v{vXo[1]}, 10240, v{vXo[1]}
    v_add_u32 v{vXo[2]}, 20480, v{vXo[0]}
    s_mul_i32 s{sMX}, s{sCK}, 3072
    s_cmp_eq_u32 s{sCB}, 10
    s_cbranch_scc1 K1_lkv
    """)

    def issue(stg, role):
        slot = stg % NR
        tag = f"st{stg}"
        a(f"s_lshl_b32 s{sOX}, s{sKC}, 7")
        a(f"s_add_u32 m0, s{sMX}, {XB + slot * XS}")
        a(f"s_mul_i32 s{sOW}, s{sKC}, {81920 if role == 'Q' else 2560}")
        for e in range(3):
            a.vmem(f"buffer_load_dwordx4 v{vXo[e]}, s[{SX}:{SX + 3}], s{sOX} offen lds", tag)
            if e < 2:
                a(f"s_add_u32 m0, s{sMX}, {XB + slot * XS + 1024 * (e + 1)}")
            else:
                a(f"s_add_u32 m0, s{sMW}, {slot * WSZ}")
            a(f"s_add_u32 s{sKC}, s{sKC}, 1" if e == 0 else "s_nop 0")
        a.vmem(f"buffer_load_dwordx4 v{vWo[0]}, s[{SW}:{SW + 3}], s{sOW} offen lds", tag)
        a(f"s_add_u32 m0, s{sMW}, {slot * WSZ + (1024 if role == 'Q' else 4096)}")
        a(f"s_cmp_eq_u32 s{sKC}, 10")
        if role == 'Q':
            a.vmem(f"buffer_load_dwordx4 v{vWo[1]}, s[{SW}:{SW + 3}], s{sOW} offen lds", tag)
        else:
            a.vmem(f"buffer_load_dwordx4 v{vWo[0]}, s[{SW2}:{SW2 + 3}], s{sOW} offen lds", tag)
        a(f"s_cselect_b32 s{sKC}, 0, s{sKC}")

    def loader(role):
        a.lg, a.vm = [], []
        for i in range(NPRE):
            issue(i, role)
        a(f"""
        v_and_b32 v{vI}, 15, v0
        v_lshrrev_b32 v{vG}, 4, v0
        s_mul_i32 s{sT0}, s{sCK}, 24
        v_add_u32 v{t0}, s{sT0}, v{vI}
        v_bfe_u32 v{t1}, v{t0}, 1, 3
        v_xor_b32 v{t1}, v{t1}, v{vG}
        v_lshlrev_b32 v{t0}, 7, v{t0}
        v_lshl_add_u32 v{vSa[0]}, v{t1}, 4, v{t0}
        v_xor_b32 v{vSa[1]}, 64, v{vSa[0]}
        """)
        for i in range(4):
            a(f"v_mov_b32 v{ones + i}, 0x3f803f80")

        def late_setup():
            a(f"""
            v_lshrrev_b32 v{t0}, 2, v{vI}
            v_cmp_eq_u32 s[56:57], v{t0}, v{vG}
            v_xor_b32 v{t0}, 2, v{t0}
            v_cmp_eq_u32 s[58:59], v{t0}, v{vG}
            v_cmp_gt_u32 vcc, 8, v{vI}
            s_and_b64 s[58:59], s[58:59], vcc
            s_or_b64 s[60:61], s[56:57], s[58:59]
            v_add_u32 v{t0}, 16, v{vI}
            v_cndmask_b32 v{t0}, v{vI}, v{t0}, s[58:59]
            s_mul_i32 s{sT0}, s{sCK}, 96
            s_add_u32 s{sT0}, s{sT0}, {STAT}
            v_lshl_add_u32 v{vSw}, v{t0}, 2, s{sT0}
            v_and_b32 v{t0}, 3, v{vI}
            v_cmp_eq_u32 s[62:63], 1, v{t0}
            v_cmp_eq_u32 s[64:65], 2, v{t0}
            v_cmp_eq_u32 s[66:67], 3, v{t0}
            """)
            if role != 'Q':
                return
            srd(a, SQ, 14, 15, 2621440, WS_Q)
            srd(a, SH, 14, 15, 2621440, WS_HT)
            a(f"""
            s_add_u32 s{sT0}, s{sT0}, 768
            v_mov_b32 v{vGa}, s{sT0}
            v_lshrrev_b32 v{t1}, 2, v{vI}
            s_mul_i32 s{sT0}, s{sCK}, 24
            v_add_u32 v{t1}, s{sT0}, v{t1}
            v_bfe_u32 v{t2}, v{vI}, 1, 1
            v_lshl_add_u32 v{t2}, v{vG}, 1, v{t2}
            v_and_b32 v{t3}, 1, v{vI}
            v_lshlrev_b32 v{t3}, 3, v{t3}
            """)
            for n in range(6):
                a(f"""
                v_add_u32 v{lt}, {4 * n}, v{t1}
                v_bfe_u32 v{lt + 1}, v{lt}, 1, 3
                v_xor_b32 v{lt + 1}, v{lt + 1}, v{t2}
                v_lshl_add_u32 v{lt}, v{lt}, 7, v{t3}
                v_lshl_add_u32 v{vHa[n]}, v{lt + 1}, 4, v{lt}
                """)
            a(f"""
            s_mul_i32 s{sT0}, s{sCK}, 48
            s_add_u32 s{sT0}, s{sT0}, {HIMG}
            v_mul_u32_u24 v{vHw}, {HP}, v0
            v_add_u32 v{vHw}, s{sT0}, v{vHw}
            """)
            store_addrs()

        def prefetch_w1():
            a(f"""
            v_mul_u32_u24 v{t0}, 205, v0
            v_lshrrev_b32 v{t0}, 10, v{t0}
            v_mul_u32_u24 v{t1}, 5, v{t0}
            v_sub_u32 v{t1}, v0, v{t1}
            v_mul_u32_u24 v{t0}, 3456, v{t0}
            v_lshl_add_u32 v{vPf}, v{t1}, 7, v{t0}
            s_and_b32 s{sT0}, s2, 7
            s_mul_i32 s{sT0}, s{sT0}, 27
            s_lshr_b32 s{sT0}, s{sT0}, 3
            s_lshl_b32 s{sT0}, s{sT0}, 7
            s_lshr_b32 s{sT1}, s2, 3
            s_lshl_b32 s{sT1}, s{sT1}, 2
            s_add_u32 s{sT1}, s{sT1}, s{sCK}
            s_mul_i32 s{sT1}, s{sT1}, {16 * 3456}
            s_add_u32 s70, s{sT0}, s{sT1}
            s_add_u32 s71, s70, {8 * 3456}
            """)
            srd(a, 72, 68, 69, 2048 * 3456)
            a("s_mov_b32 exec_hi, 0xff")
            a.vmem(f"buffer_load_dword v{t2}, v{vPf}, s[72:75], s70 offen", "pf")
            a.vmem(f"buffer_load_dword v{t3}, v{vPf}, s[72:75], s71 offen", "pf")
            a("s_mov_b32 exec_hi, -1")

        late_setup()
        for i in range(10):
            a.wait(vm=f"st{i}")
            a("s_barrier")
            if i in (0, 1, 2, 4, 6, 8, 9):
                a.cmt("MARK%d" % {0: 2, 1: 3, 2: 4, 4: 5, 6: 6, 8: 7, 9: 8}[i])
            if i + NPRE < 10:
                issue(i + NPRE, role)
            f = SF[i % 2]
            for blk in range(2):
                for ks in range(2):
                    a.ds(f"ds_read_b128 {v(f + 8 * blk + 4 * ks, 4)}, v{vSa[blk ^ ks]} offset:{XB + (i % NR) * XS + blk * 1024}", f"s{i}")
            if i == 9 and role == 'Q':
                for n in range(6):
                    a.ds(f"ds_read_b64_tr_b16 {v(hx + 2 * n, 2)}, v{vHa[n]} offset:{XB + (9 % NR) * XS}", "hx")

            def stat_mm(i):
                f = SF[i % 2]
                for ks in range(2):
                    for blk in range(2):
                        x = v(f + 8 * blk + 4 * ks, 4)
                        z = i == 0 and ks == 0
                        a(f"v_mfma_f32_16x16x32_bf16 {v(GR[blk], 4)}, {x}, {x}, {'0' if z else v(GR[blk], 4)}")
                        a(f"v_mfma_f32_16x16x32_bf16 {v(SU[blk], 4)}, {v(ones, 4)}, {x}, {'0' if z else v(SU[blk], 4)}")
            if i > 0:
                stat_mm(i - 1)
            if i == 10 - NPRE and pf1:
                prefetch_w1()
            a.wait(lg=f"s{i}")
        stat_mm(9)
        su, sq = [lt + 12, lt + 13], [lt + 14, lt + 15]
        for blk in range(2):
            a(f"v_cndmask_b32 v{sq[blk]}, v{GR[blk]}, v{GR[blk] + 1}, s[62:63]")
            a(f"v_cndmask_b32 v{sq[blk]}, v{sq[blk]}, v{GR[blk] + 2}, s[64:65]")
            a(f"v_cndmask_b32 v{sq[blk]}, v{sq[blk]}, v{GR[blk] + 3}, s[66:67]")
        a(f"v_mov_b32_dpp v{su[1]}, v{SU[1]} row_ror:8 row_mask:0xf bank_mask:0xf")
        a(f"v_mov_b32_dpp v{su[0]}, v{sq[1]} row_ror:8 row_mask:0xf bank_mask:0xf")
        m, e_, mb, r1, m2, x1, x2, r2, A1, B1, G, H = [lt + i for i in range(12)]
        a(f"""
        v_cndmask_b32 v{m}, v{SU[0]}, v{su[1]}, s[58:59]
        v_cndmask_b32 v{e_}, v{sq[0]}, v{su[0]}, s[58:59]
        v_mul_f32 v{m}, {f32(1.0 / 640)}, v{m}
        v_mul_f32 v{e_}, {f32(1.0 / 640)}, v{e_}
        v_fma_f32 v{e_}, -v{m}, v{m}, v{e_}
        v_max_f32 v{e_}, 0, v{e_}
        """)
        bf16r(a, x1, e_)
        bf16r(a, mb, m)
        a(f"v_add_f32 v{x1}, {f32(1e-5)}, v{x1}")
        bf16r(a, x1, x1)
        a(f"v_sqrt_f32 v{x1}, v{x1}")
        a(f"v_sub_f32 v{m2}, v{m}, v{mb}")
        bf16r(a, x1, x1)
        a(f"v_rcp_f32 v{r1}, v{x1}")
        a("s_mov_b64 exec, s[60:61]")
        a(f"v_mul_f32 v{B1}, -v{mb}, v{r1}")
        if role == 'Q':
            c = f32(math.log2(math.e) / math.sqrt(20.0))
            a(f"v_mul_f32 v{A1}, {c}, v{r1}")
            a(f"v_mul_f32 v{G}, {c}, v{B1}")
            a.ds(f"ds_write_b32 v{vSw}, v{A1}")
            a.ds(f"ds_write_b32 v{vSw}, v{G} offset:384")
        else:
            a.ds(f"ds_write_b32 v{vSw}, v{r1}")
            a.ds(f"ds_write_b32 v{vSw}, v{B1} offset:384")
            a.wait_all(vm=False)
            a("s_barrier")
            a("s_endpgm")
            return
        a(f"v_mul_f32 v{x2}, v{e_}, v{r1}")
        a(f"v_mul_f32 v{m2}, v{m2}, v{r1}")
        a(f"v_mul_f32 v{x2}, v{x2}, v{r1}")
        a.wait_all(vm=False)
        a("s_barrier")
        bf16r(a, x2, x2)
        bf16r(a, m2, m2)
        a(f"v_add_f32 v{x2}, {f32(1e-5)}, v{x2}")
        bf16r(a, x2, x2)
        a(f"v_sqrt_f32 v{x2}, v{x2}")
        a(f"v_sub_f32 v{H}, v{B1}, v{m2}")
        bf16r(a, x2, x2)
        a(f"v_rcp_f32 v{r2}, v{x2}")
        a(f"v_mul_f32 v{G}, v{r1}, v{r2}")
        a(f"v_mul_f32 v{H}, v{H}, v{r2}")
        a.ds(f"ds_write_b32 v{vSw}, v{G} offset:768")
        a.ds(f"ds_write_b32 v{vSw}, v{H} offset:1152")
        a("s_mov_b64 exec, -1")
        ux = SF[0]
        assert SF[1] == SF[0] + 16
        for k in range(12):
            a(f"v_lshlrev_b32 v{ux + 2 * k}, 16, v{hx + k}")
            a(f"v_and_b32 v{ux + 2 * k + 1}, 0xffff0000, v{hx + k}")
        a.wait_all(vm=False)
        for n in range(6):
            a.ds(f"ds_read_b128 {v(hG + 4 * n, 4)}, v{vGa} offset:{16 * n}", f"g{n}")
            a.ds(f"ds_read_b128 {v(hG + 24 + 4 * n, 4)}, v{vGa} offset:{384 + 16 * n}", f"g{n}")
        for n in range(6):
            a.wait(lg=f"g{n}")
            for j in range(4):
                a(f"v_fma_f32 v{ux + 4 * n + j}, v{ux + 4 * n + j}, v{hG + 4 * n + j}, v{hG + 24 + 4 * n + j}")
            a(f"v_cvt_pk_bf16_f32 v{hx + 2 * n}, v{ux + 4 * n}, v{ux + 4 * n + 1}")
            a(f"v_cvt_pk_bf16_f32 v{hx + 2 * n + 1}, v{ux + 4 * n + 2}, v{ux + 4 * n + 3}")
            if n % 2:
                a.ds(f"ds_write_b128 v{vHw}, {v(hx + 2 * n - 2, 4)} offset:{8 * (n - 1)}")
        final_store(lt)

    a(f"""
    v_bfe_u32 v{t3}, v{t0}, 1, 1
    v_lshlrev_b32 v{t3}, 2, v{t3}
    v_xor_b32 v{t3}, v{t3}, v{t1}
    s_lshl_b32 s{sT0}, s{sCK}, 4
    v_add_u32 v{t2}, s{sT0}, v{t0}
    v_mul_u32_u24 v{t2}, 1280, v{t2}
    v_lshl_add_u32 v{t2}, v{t3}, 4, v{t2}
    s_lshl_b32 s{sT0}, s{sCB}, 7
    v_add_u32 v{vWo[0]}, s{sT0}, v{t2}
    v_xor_b32 v{vWo[1]}, 32, v{vWo[0]}
    v_add_u32 v{vWo[1]}, 10240, v{vWo[1]}
    s_lshl_b32 s{sMW}, s{sCK}, 11
    s_add_u32 s{sMW}, s{sMW}, {WB}
    s_add_u32 s{sKC}, s{sCB}, 1
    s_cmp_eq_u32 s{sKC}, 10
    s_cselect_b32 s{sKC}, 0, s{sKC}
    s_waitcnt lgkmcnt(0)
    """)
    srd(a, SX, 4, 5, 2621440)
    srd(a, SW, 6, 7, 819200)
    loader('Q')

    a.label("K1_lkv")
    a(f"""
    v_lshrrev_b32 v{t0}, 2, v0
    v_and_b32 v{t1}, 3, v0
    v_bfe_u32 v{t3}, v{t0}, 3, 1
    v_lshlrev_b32 v{t3}, 1, v{t3}
    v_xor_b32 v{t3}, v{t3}, v{t1}
    s_lshl_b32 s{sT0}, s{sCK}, 4
    v_add_u32 v{t0}, s{sT0}, v{t0}
    v_mul_u32_u24 v{t0}, 40, v{t0}
    v_lshl_add_u32 v{vWo[0]}, v{t3}, 4, v{t0}
    s_lshl_b32 s{sMW}, s{sCK}, 10
    s_add_u32 s{sMW}, s{sMW}, {WB}
    s_mov_b32 s{sKC}, 0
    s_waitcnt lgkmcnt(0)
    """)
    srd(a, SX, 4, 5, 2621440)
    srd(a, SW, 8, 9, 25600)
    srd(a, SW2, 10, 11, 25600)
    loader('K')

    a.label("K1_comp")
    a(f"""
    v_and_b32 v{vI}, 15, v0
    v_lshrrev_b32 v{vG}, 4, v0
    v_lshrrev_b32 v{t0}, 1, v{vI}
    v_xor_b32 v{t0}, v{t0}, v{vG}
    s_mul_i32 s{sT0}, s{sRH}, {48 * 128}
    v_lshlrev_b32 v{t1}, 7, v{vI}
    v_add_u32 v{t1}, s{sT0}, v{t1}
    v_lshl_add_u32 v{vXa[0]}, v{t0}, 4, v{t1}
    v_xor_b32 v{vXa[1]}, 64, v{vXa[0]}
    v_lshrrev_b32 v{t0}, 2, v{vI}
    v_lshl_add_u32 v{t0}, v{vG}, 3, v{t0}
    v_bfe_u32 v{t1}, v{vI}, 1, 1
    v_and_b32 v{t2}, 1, v{vG}
    v_lshlrev_b32 v{t2}, 1, v{t2}
    s_cmp_eq_u32 s{sCB}, 10
    s_cbranch_scc1 K1_ckv
    """)

    def reads(i, role):
        slot = i % NR
        b = i % 2
        ksd, hd = (4096, 512) if role == 'Q' else (2048, 256)
        for ks in range(2):
            for h in range(2):
                a.ds(f"ds_read_b64_tr_b16 {v(WF[b][ks] + 2 * h, 2)}, v{vWa} offset:{slot * WSZ + ks * ksd + h * hd}")
            for r in range(3):
                a.ds(f"ds_read_b128 {v(XF[b][ks * 3 + r], 4)}, v{vXa[ks]} offset:{XB + slot * XS + r * 2048}")

    def compute(i, role):
        b = i % 2
        for ks in range(2):
            first = (i == 0 and ks == 0)
            for r in range(4):
                d = acc[r] if r < 3 else cs
                x = XF[b][ks * 3 + r] if r < 3 else ones
                w = WF[b][ks]
                A, B = (x, w) if role == 'V' else (w, x)
                c = "0" if first else v(d, 4)
                a(f"v_mfma_f32_16x16x32_bf16 {v(d, 4)}, {v(A, 4)}, {v(B, 4)}, {c}")

    def mainloop(role):
        a.lg, a.vm = [], []
        for i in range(10):
            a("s_barrier")
            if i in (0, 1, 2, 4, 6, 8, 9):
                a.cmt("MARK%d" % {0: 2, 1: 3, 2: 4, 4: 5, 6: 6, 8: 7, 9: 8}[i])
            reads(i, 'Q' if role == 'Q' else 'K')
            if i > 0:
                compute(i - 1, role)
            a.wait_all(vm=False)
        compute(9, role)
        a("s_barrier")

    def set_ones():
        for i in range(4):
            a(f"v_mov_b32 v{ones + i}, 0x3f803f80")

    pa = tmp
    o = tmp + 8

    def scale_qk(i):
        a.wait(lg=f"pa{i}")
        for j in range(4):
            a(f"v_mul_f32 v{acc[i] + j}, v{acc[i] + j}, v{pa + 2 * i}")
        for j in range(4):
            a(f"v_fmac_f32 v{acc[i] + j}, v{cs + j}, v{pa + 2 * i + 1}")
        a(f"v_cvt_pk_bf16_f32 v{o + 2 * i}, v{acc[i]}, v{acc[i] + 1}")
        a(f"v_cvt_pk_bf16_f32 v{o + 2 * i + 1}, v{acc[i] + 2}, v{acc[i] + 3}")

    def read_pa():
        for i in range(3):
            a.ds(f"ds_read_b32 v{pa + 2 * i}, v{vPa} offset:{i * 64}", f"pa{i}")
            a.ds(f"ds_read_b32 v{pa + 2 * i + 1}, v{vPa} offset:{384 + i * 64}", f"pa{i}")

    a(f"""
    v_bfe_u32 v{t3}, v{vI}, 3, 1
    v_lshl_or_b32 v{t2}, v{t3}, 2, v{t2}
    s_lshl_b32 s{sT0}, s{sCK}, 1
    v_add_u32 v{t1}, s{sT0}, v{t1}
    v_xor_b32 v{t1}, v{t1}, v{t2}
    v_lshlrev_b32 v{t0}, 7, v{t0}
    v_lshl_add_u32 v{t0}, v{t1}, 4, v{t0}
    v_add_u32 v{t0}, {WB}, v{t0}
    v_and_b32 v{t1}, 1, v{vI}
    v_lshl_add_u32 v{vWa}, v{t1}, 3, v{t0}
    s_mul_i32 s{sT0}, s{sRH}, {48 * 4}
    s_add_u32 s{sT0}, s{sT0}, {STAT}
    v_lshl_add_u32 v{vPa}, v{vI}, 2, s{sT0}
    s_mul_i32 s{sT0}, s{sRH}, {48 * QP}
    s_lshl_b32 s{sT1}, s{sCK}, 5
    s_add_u32 s{sT0}, s{sT0}, s{sT1}
    s_add_u32 s{sT0}, s{sT0}, {QIMG}
    v_mul_u32_u24 v{t0}, {QP}, v{vI}
    v_lshl_add_u32 v{t0}, v{vG}, 3, v{t0}
    v_add_u32 v{vQw}, s{sT0}, v{t0}
    """)
    store_addrs()
    set_ones()
    a("s_waitcnt lgkmcnt(0)")
    srd(a, SQ, 14, 15, 2621440, WS_Q)
    srd(a, SH, 14, 15, 2621440, WS_HT)
    mainloop('Q')
    read_pa()
    for i in range(3):
        scale_qk(i)
        a.ds(f"ds_write_b64 v{vQw}, {v(o + 2 * i, 2)} offset:{i * 16 * QP}")
    final_store(XF[0][0])

    a.label("K1_ckv")
    a(f"""
    s_and_b32 s{sT0}, s{sCK}, 1
    s_lshl_b32 s{sT0}, s{sT0}, 1
    v_add_u32 v{t1}, s{sT0}, v{t1}
    v_xor_b32 v{t1}, v{t1}, v{t2}
    v_lshlrev_b32 v{t0}, 6, v{t0}
    v_lshl_add_u32 v{t0}, v{t1}, 4, v{t0}
    s_lshr_b32 s{sT0}, s{sCK}, 1
    s_lshl_b32 s{sT0}, s{sT0}, 12
    s_add_u32 s{sT0}, s{sT0}, {WB}
    v_add_u32 v{t0}, s{sT0}, v{t0}
    v_and_b32 v{t1}, 1, v{vI}
    v_lshl_add_u32 v{vWa}, v{t1}, 3, v{t0}
    s_waitcnt lgkmcnt(0)
    """)
    set_ones()
    srd(a, SKV, 14, 15, KV_BYTES, WS_KV)

    def tb_off(i, sd, stile, st_):
        a(f"""
        s_mul_i32 s{sT0}, s{sRB}, 6
        s_mul_i32 s{sT1}, s{sRH}, 3
        s_add_u32 s{sT0}, s{sT0}, s{sT1}
        s_add_u32 s{sT0}, s{sT0}, {i}
        s_lshr_b32 s{sT1}, s{sT0}, 2
        s_mul_i32 s{sd}, s{sT1}, 6144
        s_cmp_ge_u32 s{sT1}, 32
        s_cselect_b32 s{sd}, 0x40000000, s{sd}
        s_bfe_u32 s{sT1}, s{sT0}, 0x10001
        s_mul_i32 s{sT1}, s{sT1}, s{stile}
        s_add_u32 s{sd}, s{sd}, s{sT1}
        s_and_b32 s{sT1}, s{sT0}, 1
        s_mul_i32 s{sT1}, s{sT1}, s{st_}
        s_add_u32 s{sd}, s{sd}, s{sT1}
        """)

    a(f"s_cmp_ge_u32 s{sCK}, 2")
    a("s_cbranch_scc1 K1_v")
    a(f"""
    s_mul_i32 s{sT0}, s{sRH}, {48 * 4}
    s_add_u32 s{sT0}, s{sT0}, {STAT}
    v_lshl_add_u32 v{vPa}, v{vI}, 2, s{sT0}
    v_lshrrev_b32 v{t1}, 1, v{vG}
    v_lshl_add_u32 v{t1}, v{t1}, 5, v{vI}
    v_and_b32 v{t2}, 1, v{vG}
    v_lshlrev_b32 v{t2}, 3, v{t2}
    v_lshl_add_u32 v{t1}, v{t1}, 4, v{t2}
    v_lshlrev_b32 v{t2}, 8, v{vG}
    v_lshl_add_u32 v{t2}, v{vI}, 3, v{t2}
    v_add_u32 v{t2}, 2048, v{t2}
    v_cmp_le_u32 vcc, 2, v{vG}
    v_cndmask_b32 v{t2}, v{t2}, v{ones}, vcc
    s_mov_b32 s54, 512
    s_mov_b32 s55, 128
    s_cmp_eq_u32 s{sCK}, 0
    s_cselect_b64 vcc, -1, 0
    s_cselect_b32 s54, 1024, s54
    s_cselect_b32 s55, 256, s55
    v_cndmask_b32 v{t1}, v{t2}, v{t1}, vcc
    v_cmp_eq_u32 s[56:57], 1, v{vG}
    s_andn2_b64 s[56:57], s[56:57], vcc
    v_mov_b32 v{t2}, 0x3f80
    v_mov_b32 v{t3}, 0
    """)
    for i in range(3):
        tb_off(i, 58 + i, 54, 55)
    mainloop('K')
    read_pa()
    for i in range(3):
        scale_qk(i)
        a(f"v_cndmask_b32 v{o + 2 * i}, v{o + 2 * i}, v{t2}, s[56:57]")
        a(f"v_cndmask_b32 v{o + 2 * i + 1}, v{o + 2 * i + 1}, v{t3}, s[56:57]")
        a(f"buffer_store_dwordx2 {v(o + 2 * i, 2)}, v{t1}, s[{SKV}:{SKV + 3}], s{58 + i} offen {st}")
    a("s_endpgm")

    a.label("K1_v")
    a(f"""
    s_mul_i32 s{sT0}, s{sRH}, {48 * 4}
    s_add_u32 s{sT0}, s{sT0}, {STAT}
    v_lshl_add_u32 v{vPa}, v{vG}, 4, s{sT0}
    v_lshrrev_b32 v{t1}, 1, v{vG}
    v_mul_u32_u24 v{t1}, 24, v{t1}
    v_add_u32 v{t1}, v{t1}, v{vI}
    s_sub_u32 s{sT0}, s{sCK}, 2
    s_lshl_b32 s{sT0}, s{sT0}, 4
    v_add_u32 v{t3}, s{sT0}, v{vI}
    v_add_u32 v{t1}, s{sT0}, v{t1}
    v_and_b32 v{t2}, 1, v{vG}
    v_lshlrev_b32 v{t2}, 3, v{t2}
    v_lshl_add_u32 v{t1}, v{t1}, 4, v{t2}
    v_add_u32 v{t1}, 3072, v{t1}
    v_cmp_le_u32 vcc, 24, v{t3}
    v_cndmask_b32 v{t1}, v{t1}, v{ones}, vcc
    v_cmp_le_u32 s[56:57], 20, v{t3}
    v_cmp_eq_u32 vcc, 20, v{t3}
    v_cndmask_b32 v{t3}, 0, v{ones}, vcc
    s_mov_b32 s54, 768
    s_mov_b32 s55, {6144 + 1536}
    """)
    for i in range(3):
        tb_off(i, 58 + i, 54, 55)
    mainloop('V')
    pv = XF[0][0]
    for i in range(3):
        a.ds(f"ds_read_b128 {v(pv + 8 * i, 4)}, v{vPa} offset:{i * 64}", f"pa{i}")
        a.ds(f"ds_read_b128 {v(pv + 8 * i + 4, 4)}, v{vPa} offset:{384 + i * 64}", f"pa{i}")
    for i in range(3):
        a.wait(lg=f"pa{i}")
        for j in range(4):
            a(f"v_mul_f32 v{acc[i] + j}, v{acc[i] + j}, v{pv + 8 * i + j}")
        for j in range(4):
            a(f"v_fmac_f32 v{acc[i] + j}, v{cs + j}, v{pv + 8 * i + 4 + j}")
        a(f"v_cvt_pk_bf16_f32 v{o + 2 * i}, v{acc[i]}, v{acc[i] + 1}")
        a(f"v_cvt_pk_bf16_f32 v{o + 2 * i + 1}, v{acc[i] + 2}, v{acc[i] + 3}")
        a(f"v_cndmask_b32 v{o + 2 * i}, v{o + 2 * i}, v{t3}, s[56:57]")
        a(f"v_cndmask_b32 v{o + 2 * i + 1}, v{o + 2 * i + 1}, v{t3}, s[56:57]")
        a(f"buffer_store_dwordx2 {v(o + 2 * i, 2)}, v{t1}, s[{SKV}:{SKV + 3}], s{58 + i} offen {st}")
    a("s_endpgm")
    a.label("K1_zero")
    a(f"""
    s_cmp_lg_u32 s{sT}, 242
    s_cbranch_scc1 K1_end
    s_lshl_b32 s{sT0}, s{sW}, 10
    v_lshl_add_u32 v{t0}, v0, 4, s{sT0}
    s_waitcnt lgkmcnt(0)
    """)
    srd(a, SKV, 14, 15, 8192, WS_FLAG)
    for i in range(4):
        a(f"v_mov_b32 v{ones + i}, 0")
    a(f"buffer_store_dwordx4 {v(ones, 4)}, v{t0}, s[{SKV}:{SKV + 3}], 0 offen")
    a.label("K1_end")
    a("s_endpgm")
    return a.L, nv, 76
```

```python
from asmlib import *
from layout import *
from k1 import srd
from engine import *
import math

KVB = 4 * RING
KVG = 4 * 6144
FLB = KVB + 2 * KVG
LXB = FLB + 256
LDS_K2 = LXB + 2048
RP1 = 272
BIAS = 80 * RP1
NST = 32
QIMG = KVB + 4 * 6144


def rec(r):
    return ((r - 1) % 8) * 6144


def spin_lds(a, name, vaddr, vt, st, want, off=0):
    a("s_mov_b32 s63, 0x100000")
    a(f"s_branch {name}_c") if False else None
    a.label(name)
    a(f"""
    ds_read_b32 v{vt}, v{vaddr} offset:{off}
    s_waitcnt lgkmcnt(0)
    v_readfirstlane_b32 s{st}, v{vt}
    s_cmp_ge_u32 s{st}, {want}
    s_cbranch_scc1 {name}_x
    s_sleep 1
    s_sub_u32 s63, s63, 1
    s_cbranch_scc0 {name}
    """)
    a.label(name + "_x")
    a.lg = []


RP2 = 336
FLAGU = WS_FLAG
FLAGO = WS_FLAG + 1024


def gen_k2(st="", BARPOS=4, pat="aeeeebeeee2eeee1eeee", eprio=(0, 1, 0, 0),
           fused=True, pf2=True, aprio=(0, 0), mpat=(None, None), hs="sc1", hl=""):
    a = Asm()
    sX, sIdx, sI, sJ, sA, sB, sW = 24, 25, 26, 27, 28, 29, 30
    SW1, SWS, SB1 = 12, 16, 20
    sT0, sT1, sP, sQ4 = 31, 32, 33, 34
    a(f"""
    s_cmp_ge_u32 s2, 256
    s_cbranch_scc1 K2_end
    s_setprio 3
    s_load_dwordx2 s[8:9], s[0:1], 96
    s_load_dwordx4 s[4:7], s[0:1], 48
    s_load_dwordx2 s[10:11], s[0:1], 32
    s_load_dwordx2 s[64:65], s[0:1], 0
    s_load_dwordx4 s[68:71], s[0:1], 64
    s_load_dwordx2 s[66:67], s[0:1], 80
    v_lshrrev_b32 v1, 6, v0
    v_and_b32 v0, 63, v0
    s_and_b32 s{sX}, s2, 7
    v_readfirstlane_b32 s{sW}, v1
    s_lshr_b32 s{sIdx}, s2, 3
    s_and_b32 s{sQ4}, s{sW}, 3
    s_and_b32 s{sT0}, s{sIdx}, 3
    s_lshl_b32 s{sI}, s{sX}, 2
    s_add_u32 s{sI}, s{sI}, s{sT0}
    s_lshr_b32 s{sJ}, s{sIdx}, 2
    s_cmp_ge_u32 s{sW}, 8
    s_cbranch_scc1 K2_eng
    """)
    SXX, SB2, SOUT = 40, 44, 52

    def final_pre(R):
        t0, t1, t2, el, eg, b2 = [R + i for i in range(6)]
        xr = R + 8
        srd(a, SXX, 64, 65, 2621440)
        srd(a, SB2, 70, 71, 4096)
        srd(a, SOUT, 66, 67, 2621440)
        a(f"""
        s_mul_i32 s48, s{sI}, {64 * 1280}
        s_mul_i32 s49, s{sJ}, 160
        s_add_u32 s48, s48, s49
        s_lshl_b32 s49, s{sI}, 7
        s_lshl_b32 s56, s{sW}, 6
        v_add_u32 v{t0}, s56, v0
        v_mul_u32_u24 v{t1}, 205, v{t0}
        v_lshrrev_b32 v{t1}, 11, v{t1}
        v_mul_u32_u24 v{t2}, 10, v{t1}
        v_sub_u32 v{t2}, v{t0}, v{t2}
        v_mul_u32_u24 v{el}, {RP2}, v{t1}
        v_lshl_add_u32 v{el}, v{t2}, 5, v{el}
        v_mul_u32_u24 v{eg}, 1280, v{t1}
        v_lshl_add_u32 v{eg}, v{t2}, 4, v{eg}
        v_lshlrev_b32 v{t1}, 1, v{t1}
        """)
        a.vmem(f"buffer_load_dwordx4 {v(xr, 4)}, v{eg}, s[{SXX}:{SXX + 3}], s48 offen", "fx")
        a.vmem(f"buffer_load_ushort v{b2}, v{t1}, s[{SB2}:{SB2 + 3}], s49 offen", "fx")
        a(f"v_add_u32 v{t0}, {2 * RING}, v{el}")

    def final_post(R, P):
        t0, t1, t2, el, eg, b2 = [R + i for i in range(6)]
        xr = R + 8
        a(f"s_cmp_ge_u32 s{sW}, 10")
        a("s_cbranch_scc1 K2_end")
        for w in range(4):
            for k in range(2):
                a.ds(f"ds_read_b128 {v(P + 8 * w + 4 * k, 4)}, v{el if w < 2 else t0} offset:{(w % 2) * RING + 16 * k}", f"e{w}")
        xs = P + 32
        a.wait(vm="fx")
        a(f"v_lshlrev_b32 v{b2}, 16, v{b2}")
        for e in range(4):
            a(f"v_lshlrev_b32 v{xs + 2 * e}, 16, v{xr + e}")
            a(f"v_and_b32 v{xs + 2 * e + 1}, 0xffff0000, v{xr + e}")
        for e in range(8):
            a(f"v_add_f32 v{xs + e}, v{xs + e}, v{b2}")
        for w in range(4):
            a.wait(lg=f"e{w}")
            for e in range(8):
                a(f"v_add_f32 v{xs + e}, v{xs + e}, v{P + 8 * w + e}")
        for e in range(4):
            a(f"v_cvt_pk_bf16_f32 v{xr + e}, v{xs + 2 * e}, v{xs + 2 * e + 1}")
        a(f"buffer_store_dwordx4 {v(xr, 4)}, v{eg}, s[{SOUT}:{SOUT + 3}], s48 offen {st}")
        a("s_endpgm")
    V = Regs('v', 1)
    t0, t1, t2, t3 = [V.alloc() for _ in range(4)]
    vL32, vH = V.alloc(), V.alloc()
    aKa, aKb, aV, aV0, idx = [V.alloc() for _ in range(5)]
    aK0 = V.alloc(2)
    aE, aEp, aF, aFp, aLx, aLxp, aIw, aIr, og, og2 = [V.alloc() for _ in range(10)]
    oKV, aCt, one, cnt = [V.alloc() for _ in range(4)]
    sKV, sKM = 35, 36
    QA = [V.alloc(4, 4), V.alloc(4, 4)]
    QB = [V.alloc(2), V.alloc(2)]
    Ka = V.alloc(4, 4)
    Kb = V.alloc(2)
    V1 = V.alloc(4, 4)
    V2 = V.alloc(4, 4)
    S = [V.alloc(16, 4) for _ in range(3)]
    OO = [V.alloc(16, 4), V.alloc(16, 4)]
    O = OO[0]
    nv = V.n
    a(f"""
    s_lshr_b32 s{sP}, s{sW}, 2
    v_and_b32 v{vL32}, 31, v0
    v_lshrrev_b32 v{vH}, 5, v0
    v_mul_u32_u24 v{t1}, 103, v0
    v_lshrrev_b32 v{t1}, 10, v{t1}
    v_mul_u32_u24 v{t2}, 1120, v{t1}
    v_lshl_add_u32 v{t2}, v0, 4, v{t2}
    v_cmp_le_u32 vcc, 6, v0
    v_lshlrev_b32 v{t3}, 4, v0
    v_add_u32 v{t1}, {7 * 1120 + 1024}, v{t3}
    v_add_u32 v{t3}, {6 * 1120 + 1024}, v{t3}
    v_cndmask_b32 v{t3}, v{t3}, v{t1}, vcc
    s_lshl_b32 s{sT0}, s{sI}, 3
    s_add_u32 s{sT0}, s{sT0}, s{sW}
    s_mul_i32 s{sT0}, s{sT0}, {8 * 1280}
    s_mul_i32 s{sT1}, s{sJ}, 160
    s_add_u32 s{sT0}, s{sT0}, s{sT1}
    s_mul_i32 s{sT1}, s{sW}, 1280
    s_add_u32 m0, s{sT1}, {QIMG}
    s_waitcnt lgkmcnt(0)
    """)
    assert WS_Q == 0
    srd(a, SWS, 8, 9, WS_END)
    a.vmem(f"buffer_load_dwordx4 v{t2}, s[{SWS}:{SWS + 3}], s{sT0} offen lds", "q")
    a(f"s_add_u32 m0, s{sT1}, {QIMG + 1024}")
    a("s_mov_b64 exec, 0xffff")
    a.vmem(f"buffer_load_dwordx4 v{t3}, s[{SWS}:{SWS + 3}], s{sT0} offen lds", "q")
    a("s_mov_b64 exec, -1")
    a(f"""
    v_lshlrev_b32 v{oKV}, 4, v0
    s_mul_i32 s{sKM}, s{sW}, 768
    s_add_u32 m0, s{sKM}, {KVB + rec(0)}
    s_add_u32 s{sKV}, s{sKM}, {WS_KV}
    s_mov_b32 exec_hi, 0xffff
    """)
    a.vmem(f"buffer_load_dwordx4 v{oKV}, s[{SWS}:{SWS + 3}], s{sKV} offen lds", "q")
    a(f"""
    s_mov_b32 exec_hi, -1
    s_lshl_b32 s{sKM}, s{sKM}, 1
    s_add_u32 s{sKV}, s{sKM}, {WS_KV + 6144}
    s_add_u32 s{sKM}, s{sKM}, {KVB}
    """)

    def kv_ops(g):
        def f0():
            a(f"s_add_u32 m0, s{sKM}, {(g % 4) * 12288}")

        def f1():
            a.vmem(f"buffer_load_dwordx4 v{oKV}, s[{SWS}:{SWS + 3}], s{sKV} offen lds", f"g{g}")

        def f2():
            a("s_mov_b32 exec_hi, 0")
            a.vmem(f"buffer_load_dwordx4 v{oKV}, s[{SWS}:{SWS + 3}], s{sKV} offen offset:1024 lds", f"g{g}")
            a("s_mov_b32 exec_hi, -1")

        def f3():
            a(f"s_add_u32 s{sKV}, s{sKV}, 12288")
        return [f0, f1, f2, f3]
    for g in range(2):
        for f in kv_ops(g):
            f()
    a(f"s_setprio {aprio[0]}")
    if aprio[0] != aprio[1]:
        a(f"s_cmp_lt_u32 s{sW}, 4")
        a("s_cbranch_scc1 K2_ap")
        a(f"s_setprio {aprio[1]}")
        a.label("K2_ap")
    a(f"""
    v_lshlrev_b32 v{aK0}, 4, v0
    v_add_u32 v{aK0}, {KVB}, v{aK0}
    v_lshlrev_b32 v{aK0 + 1}, 3, v0
    v_add_u32 v{aK0 + 1}, {KVB + 2048}, v{aK0 + 1}
    s_lshl_b32 s{sT0}, s{sP}, 10
    v_add_u32 v{aKa}, s{sT0}, v{aK0}
    s_lshl_b32 s{sT0}, s{sP}, 9
    v_add_u32 v{aKb}, s{sT0}, v{aK0 + 1}
    v_and_b32 v{t1}, 3, v{vL32}
    v_min_u32 v{t1}, 1, v{t1}
    v_add_u32 v{t1}, 20, v{t1}
    v_cmp_le_u32 vcc, 20, v{vL32}
    v_mov_b32 v{t0}, 21
    v_cndmask_b32 v{t0}, v{vL32}, v{t0}, vcc
    v_cmp_le_u32 vcc, 24, v{vL32}
    v_cndmask_b32 v{t0}, v{t0}, v{t1}, vcc
    v_cmp_le_u32 vcc, 28, v{vL32}
    v_xor_b32 v{t1}, 1, v{vH}
    v_cndmask_b32 v{t1}, v{vH}, v{t1}, vcc
    v_mad_u32_u24 v{t0}, v{t1}, 24, v{t0}
    v_lshlrev_b32 v{aV0}, 4, v{t0}
    v_add_u32 v{aV0}, {KVB + 3072}, v{aV0}
    s_mul_i32 s{sT0}, s{sP}, 768
    v_add_u32 v{aV}, s{sT0}, v{aV0}
    v_mov_b32 v{idx}, 0xdddddddd
    """)
    a(f"""
    s_xor_b32 s{sT1}, s{sW}, 4
    s_mul_i32 s{sT0}, s{sW}, 3072
    s_add_u32 s{sT0}, s{sT0}, {KVB}
    v_lshl_add_u32 v{aE}, v0, 4, s{sT0}
    s_mul_i32 s{sT0}, s{sT1}, 3072
    s_add_u32 s{sT0}, s{sT0}, {KVB}
    v_lshl_add_u32 v{aEp}, v0, 4, s{sT0}
    v_mov_b32 v{aIr}, v{aEp}
    v_lshl_add_u32 v{aIw}, v{vL32}, 1, s{sT0}
    v_lshl_add_u32 v{aIw}, v{vH}, 8, v{aIw}
    s_lshl_b32 s{sT0}, s{sW}, 2
    s_add_u32 s{sT0}, s{sT0}, {FLB}
    v_mov_b32 v{aF}, s{sT0}
    v_xor_b32 v{aFp}, 16, v{aF}
    s_lshl_b32 s{sT0}, s{sW}, 8
    s_add_u32 s{sT0}, s{sT0}, {LXB}
    v_lshl_add_u32 v{aLx}, v0, 2, s{sT0}
    s_lshl_b32 s{sT0}, s{sT1}, 8
    s_add_u32 s{sT0}, s{sT0}, {LXB}
    v_lshl_add_u32 v{aLxp}, v0, 2, s{sT0}
    s_mul_i32 s{sT0}, s{sI}, 81920
    s_mul_i32 s{sT1}, s{sJ}, 10240
    s_add_u32 s{sT0}, s{sT0}, s{sT1}
    s_mul_i32 s{sT1}, s{sQ4}, 2560
    s_add_u32 s{sT0}, s{sT0}, s{sT1}
    s_lshl_b32 s{sT1}, s{sP}, 6
    s_add_u32 s{sT0}, s{sT0}, s{sT1}
    s_add_u32 s{sT0}, s{sT0}, {WS_OT}
    v_lshrrev_b32 v{t0}, 2, v0
    v_and_b32 v{t1}, 3, v0
    v_lshl_add_u32 v{og}, v{t0}, 7, s{sT0}
    v_lshl_add_u32 v{og}, v{t1}, 4, v{og}
    v_mov_b32 v{t0}, 0
    """)
    a.ds(f"ds_write_b32 v{aF}, v{t0}")
    a(f"v_mov_b32 v{aCt}, {FLB + 96}")
    a(f"v_mov_b32 v{one}, 1")
    for i in range(16):
        a(f"v_mov_b32 v{OO[0] + i}, 0")
        a(f"v_mov_b32 v{OO[1] + i}, 0")

    def rdKa(s_):
        a.ds(f"ds_read_b128 {v(Ka, 4)}, v{aKa} offset:{rec(s_)}", f"Ka{s_}")

    def rdKb(s_):
        a.ds(f"ds_read_b64 {v(Kb, 2)}, v{aKb} offset:{rec(s_)}", f"Kb{s_}")

    def rdV(s_, t):
        a.ds(f"ds_read_b128 {v(V2 if t else V1, 4)}, v{aV} offset:{rec(s_ + t) + t * 1536}", f"V{t}_{s_}")

    def qka(d, x=0):
        a(f"v_mfma_f32_32x32x16_bf16 {v(d, 16)}, {v(Ka, 4)}, {v(QA[x], 4)}, 0")

    def qkb(d, x=0):
        a(f"v_mfma_f32_32x32x8_bf16 {v(d, 16)}, {v(Kb, 2)}, {v(QB[x], 2)}, {v(d, 16)}")

    def pv(d, t, x=0):
        a(f"v_smfmac_f32_32x32x32_bf16 {v(OO[x], 16)}, {v(V2 if t else V1, 4)}, {v(d + 8 * t, 8)}, v{idx}")

    def halfmax(m, src):
        a(f"v_max3_f32 v{m}, v{src}, v{src + 1}, v{src + 2}")
        for k in range(3, 15, 2):
            a(f"v_max3_f32 v{m}, v{m}, v{src + k}, v{src + k + 1}")
        a(f"v_max_f32 v{m}, v{m}, v{src + 15}")

    def crosshalf(m, tmp):
        a(f"v_mov_b32 v{tmp}, v{m}")
        a(f"v_permlane32_swap_b32 v{m}, v{tmp}")
        a(f"v_max_f32 v{m}, v{m}, v{tmp}")

    a(f"""
    v_cmp_le_u32 s[50:51], 32, v0
    s_mul_i32 s{sT0}, s{sP}, {32 * 160}
    s_mul_i32 s{sT1}, s{sQ4}, 40
    s_add_u32 s{sT1}, s{sT1}, {QIMG}
    s_add_u32 s{sT0}, s{sT0}, s{sT1}
    v_mul_u32_u24 v{t2}, 160, v{vL32}
    v_add_u32 v{t0}, s{sT0}, v{t2}
    s_mul_i32 s{sT0}, s{sP}, {32 * 160}
    s_sub_u32 s{sT0}, {32 * 160}, s{sT0}
    s_add_u32 s{sT0}, s{sT0}, s{sT1}
    v_add_u32 v{t1}, s{sT0}, v{t2}
    v_lshl_add_u32 v{t2}, v{vH}, 4, v{t0}
    v_lshl_add_u32 v{t3}, v{vH}, 4, v{t1}
    """)
    a.wait_all()
    a("s_barrier")
    for x in range(2):
        for h in range(2):
            a.ds(f"ds_read_b64 {v(QA[x] + 2 * h, 2)}, v{(t2, t3)[x]} offset:{8 * h}", "k0")
        a.ds(f"ds_read_b64 {v(QB[x], 2)}, v{(t0, t1)[x]} offset:32", "k0")
    a.ds(f"ds_read_b128 {v(Ka, 4)}, v{aK0} offset:{rec(0)}", "k0")
    a.ds(f"ds_read_b64 {v(Kb, 2)}, v{aK0 + 1} offset:{rec(0)}", "k0")
    rdV(0, 0)
    a.wait(lg="k0")
    a("s_barrier")
    qka(S[1], 0)
    qka(S[2], 1)
    for x in range(2):
        a(f"v_cndmask_b32 v{QB[x]}, v{QB[x]}, 0, s[50:51]")
        a(f"v_cndmask_b32 v{QB[x] + 1}, v{QB[x] + 1}, 0, s[50:51]")
    qkb(S[1], 0)
    qkb(S[2], 1)
    rdKa(0)
    rdKb(0)
    for x in range(2):
        halfmax(t0, S[1 + x])
        crosshalf(t0, t1)
        a(f"v_cvt_pk_bf16_f32 v{t0}, -v{t0}, 0")
        a(f"v_cndmask_b32 v{QB[x]}, v{QB[x]}, v{t0}, s[50:51]")
    a.wait(lg="Kb0")
    qka(S[0], 0)
    qkb(S[0], 0)

    NT = 2 * NST
    queue = []
    late = []
    for t in range(NT):
        s_ = t // 2
        x = t % 2
        cur, nxt, prv = S[t % 3], S[(t + 1) % 3], S[(t + 2) % 3]
        sn = (t + 1) // 2
        relK = x == 0 and s_ + 1 < NST
        e = 0
        hold = t % 4 == 0
        g = t // 4
        for k, c in enumerate(pat):
            if hold and k == 1 and g > 0:
                a.ds(f"ds_read_b32 v{cnt}, v{aCt} offset:{4 * ((g - 1) % 2)}")
            if hold and k == BARPOS:
                a.wait_all()
                if g < 15:
                    a("s_mov_b64 exec, 1")
                    a.ds(f"ds_add_u32 v{aCt}, v{one} offset:{4 * (g % 2)}")
                    a("s_mov_b64 exec, -1")
                if g > 0:
                    a(f"v_readfirstlane_b32 s{sT0}, v{cnt}")
                    a(f"s_cmp_lt_u32 s{sT0}, {8 * ((g - 1) // 2 + 1)}")
                    a(f"s_cbranch_scc1 K2_slow{g}")
                    a.label(f"K2_go{g}")
                if t in (8, 24, 40, 56):
                    a.cmt("MARK%d" % (1 + t // 16))
                hold = False
                if g + 2 < 16:
                    late.extend(kv_ops(g + 2))
            if c == 'e':
                a(f"v_exp_f32 v{cur + e}, v{cur + e}")
                e += 1
            elif c == 'a' and t + 1 < NT:
                a.wait(lg=(f"Ka{sn}", f"Kb{sn}"))
                qka(nxt, 1 - x)
                if relK:
                    queue.append(lambda s_=s_: rdKa(s_ + 1))
            elif c == 'b' and t + 1 < NT:
                qkb(nxt, 1 - x)
                if relK:
                    queue.append(lambda s_=s_: rdKb(s_ + 1))
            elif c == '2':
                if t > 0:
                    a.wait(lg=(f"V1_{(t - 1) // 2}", f"V0_{s_}"))
                    pv(prv, 1, 1 - x)
                if x == 0:
                    queue.append(lambda s_=s_: rdV(s_, 1))
            elif c == '1':
                a.wait(lg=f"V0_{s_}")
                pv(cur, 0, x)
                if x == 1 and s_ + 1 < NST:
                    queue.append(lambda s_=s_: rdV(s_ + 1, 0))
            if queue and not hold:
                queue.pop(0)()
            elif late and c == 'e':
                late.pop(0)()
        assert e == 16 and not queue and not late
    pv(S[(NT - 1) % 3], 1, 1)
    a(f"v_mov_b32 v{t0}, 1")
    for g in range(3):
        a.ds(f"ds_write_b128 v{aE}, {v(OO[1] + 4 * g, 4)} offset:{1024 * g}")
    a.ds(f"ds_write_b32 v{aLx}, v{OO[1] + 12}")
    a.wait_all(vm=False)
    a.ds(f"ds_write_b32 v{aF}, v{t0}")
    spin_lds(a, "K2_spinA", aFp, t1, sT0, 1)
    for g in range(3):
        a.ds(f"ds_read_b128 {v(OO[1] + 4 * g, 4)}, v{aEp} offset:{1024 * g}", f"y{g}")
    a.ds(f"ds_read_b32 v{OO[1] + 12}, v{aLxp}", "y3")
    for k in range(13):
        a.wait(lg=f"y{k // 4}")
        a(f"v_add_f32 v{O + k}, v{O + k}, v{OO[1] + k}")
    a(f"v_add_f32 v{t2}, |v{O}|, |v{O + 1}|")
    a(f"v_add_f32 v{t3}, |v{O + 2}|, |v{O + 3}|")
    for k in range(4, 12, 2):
        a(f"v_add_f32 v{t2}, v{t2}, |v{O + k}|")
        a(f"v_add_f32 v{t3}, v{t3}, |v{O + k + 1}|")
    a(f"""
    v_add_f32 v{t2}, v{t2}, v{t3}
    v_cmp_nge_f32 vcc, {f32(2.0 ** 120)}, v{t2}
    s_mov_b64 s[52:53], vcc
    v_cmp_nge_f32 vcc, {f32(2.0 ** 64)}, v{O + 12}
    s_or_b64 s[52:53], s[52:53], vcc
    v_cmp_nle_f32 vcc, {f32(2.0 ** -64)}, v{O + 12}
    s_or_b64 vcc, vcc, s[52:53]
    s_cbranch_vccnz K2_fallback
    """)
    a.label("K2_norm")
    pk = S[0]
    a(f"v_rcp_f32 v{t2}, v{O + 12}")
    a(f"v_add_u32 v{og2}, 2048, v{og}")
    for k in range(12):
        a(f"v_mul_f32 v{O + k}, v{O + k}, v{t2}")
    for k in range(6):
        if k == 4:
            a("s_mov_b32 exec_hi, 0")
        a(f"v_cvt_pk_bf16_f32 v{pk + k}, v{O + 2 * k}, v{O + 2 * k + 1}")
        row = 8 * (k // 2) + 2 * (k % 2)
        a.ds(f"ds_write_b16 v{aIw}, v{pk + k} offset:{row * 64}")
        a.ds(f"ds_write_b16_d16_hi v{aIw}, v{pk + k} offset:{row * 64 + 64}")
    a("s_mov_b32 exec_hi, -1")
    a.wait_all(vm=False)
    d = S[1]
    a.ds(f"ds_read_b128 {v(d, 4)}, v{aIr}", "o0")
    a.ds(f"ds_read_b128 {v(d + 4, 4)}, v{aIr} offset:1024", "o1")
    a.wait(lg="o0")
    a(f"buffer_store_dwordx4 {v(d, 4)}, v{og}, s[{SWS}:{SWS + 3}], 0 offen {hs}")
    a.wait(lg="o1")
    a("s_mov_b64 exec, 0xffff")
    a(f"buffer_store_dwordx4 {v(d + 4, 4)}, v{og2}, s[{SWS}:{SWS + 3}], 0 offen {hs}")
    if not fused:
        a("s_endpgm")
    else:
        a(f"""
        s_mov_b64 exec, 1
        v_mov_b32 v{t0}, {FLB + 68}
        v_mov_b32 v{t1}, 1
        s_lshl_b32 s{sT0}, s{sI}, 5
        s_add_u32 s{sT0}, s{sT0}, s{sJ}
        s_lshl_b32 s{sT0}, s{sT0}, 2
        s_add_u32 s{sT0}, s{sT0}, {FLAGO}
        v_mov_b32 v{t3}, s{sT0}
        s_waitcnt vmcnt(0)
        ds_add_rtn_u32 v{t2}, v{t0}, v{t1}
        s_waitcnt lgkmcnt(0)
        v_cmp_eq_u32 vcc, 7, v{t2}
        s_and_b64 exec, exec, vcc
        s_cbranch_execz K2_nopub
        buffer_store_dword v{t1}, v{t3}, s[{SWS}:{SWS + 3}], 0 offen sc1
        """)
        a.label("K2_nopub")
        a("s_mov_b64 exec, -1")
        a.lg, a.vm = [], []
        final_pre(S[0])
        a("s_barrier")
        final_post(S[0], S[1])

    for g in range(1, 16):
        a.label(f"K2_slow{g}")
        spin_lds(a, f"K2_sp{g}", aCt, cnt, sT0, 8 * ((g - 1) // 2 + 1), 4 * ((g - 1) % 2))
        a(f"s_branch K2_go{g}")
    a.label("K2_fallback")
    m = t2
    gka, gkb, gv = OO[1], OO[1] + 1, OO[1] + 2
    a(f"""
    s_nop 7
    v_cndmask_b32 v{QB[0]}, v{QB[0]}, 0, s[50:51]
    v_add_u32 v{gka}, {WS_KV - KVB}, v{aK0}
    v_add_u32 v{gkb}, {WS_KV - KVB}, v{aK0 + 1}
    v_add_u32 v{gv}, {WS_KV - KVB}, v{aV0}
    v_mov_b32 v{m}, 0xff800000
    s_mov_b32 s57, 0
    """)
    for i in range(16):
        a(f"v_mov_b32 v{O + i}, 0")
    a.label("K2_fb1")
    for T in range(2):
        a(f"buffer_load_dwordx4 {v(Ka, 4)}, v{gka}, s[{SWS}:{SWS + 3}], s57 offen offset:{T * 1024}")
        a(f"buffer_load_dwordx2 {v(Kb, 2)}, v{gkb}, s[{SWS}:{SWS + 3}], s57 offen offset:{T * 512}")
        a("s_waitcnt vmcnt(0)")
        qka(S[0])
        qkb(S[0])
        halfmax(t3, S[0])
        a(f"v_max_f32 v{m}, v{m}, v{t3}")
    a(f"""
    s_add_u32 s57, s57, 6144
    s_cmp_lt_u32 s57, {32 * 6144}
    s_cbranch_scc1 K2_fb1
    """)
    crosshalf(m, t3)
    a("s_mov_b32 s57, 0")
    a.label("K2_fb2")
    a(f"s_add_u32 s58, s57, {6144 + 1536}")
    for T in range(2):
        a(f"buffer_load_dwordx4 {v(Ka, 4)}, v{gka}, s[{SWS}:{SWS + 3}], s57 offen offset:{T * 1024}")
        a(f"buffer_load_dwordx2 {v(Kb, 2)}, v{gkb}, s[{SWS}:{SWS + 3}], s57 offen offset:{T * 512}")
        a(f"buffer_load_dwordx4 {v(V1, 4)}, v{gv}, s[{SWS}:{SWS + 3}], s57 offen offset:{T * 768}")
        a(f"buffer_load_dwordx4 {v(V2, 4)}, v{gv}, s[{SWS}:{SWS + 3}], s58 offen offset:{T * 768}")
        a("s_waitcnt vmcnt(0)")
        qka(S[0])
        qkb(S[0])
        for e in range(16):
            a(f"v_sub_f32 v{S[0] + e}, v{S[0] + e}, v{m}")
        for e in range(16):
            a(f"v_exp_f32 v{S[0] + e}, v{S[0] + e}")
        pv(S[0], 0)
        pv(S[0], 1)
        a("s_nop 7")
    a(f"""
    s_add_u32 s57, s57, 6144
    s_cmp_lt_u32 s57, {32 * 6144}
    s_cbranch_scc1 K2_fb2
    s_nop 15
    s_branch K2_norm
    """)

    a.label("K2_eng")
    a.lg, a.vm = [], []
    V = Regs('v', 1)
    sBase, sT, sL = 35, 36, 37
    E = Engine(a, V, sQ4, sBase, sT, sL, sT0)
    bias, aC = V.alloc(), V.alloc()
    nv = max(nv, V.n)
    t0, t1, t2, t3 = E.t
    E.dma_addrs_L()
    a(f"""
    v_lshlrev_b32 v{t1}, 2, v0
    v_add_u32 v{t1}, {FLB + 64}, v{t1}
    v_mov_b32 v{aC}, {FLB + 64}
    v_mov_b32 v{t0}, 0
    s_mul_i32 s{sBase}, s{sQ4}, {RING}
    s_mov_b64 exec, 0xffff
    ds_write_b32 v{t1}, v{t0}
    s_mov_b64 exec, -1
    """)
    a(f"s_cmp_ge_u32 s{sIdx}, 27")
    a("s_cbranch_scc1 K2_wot")
    vm0, lg0 = list(a.vm), list(a.lg)
    a(f"""
    s_mul_i32 s{sT0}, s{sX}, 27
    s_add_u32 s{sT0}, s{sT0}, s{sIdx}
    s_lshr_b32 s{sA}, s{sT0}, 3
    s_and_b32 s{sB}, s{sT0}, 7
    s_lshl_b32 s{sT1}, s{sA}, 7
    """)
    E.dma_addrs_T(3456, sT1)
    a(f"""
    s_mul_i32 s{sT}, s{sQ4}, {32 * 3456}
    s_lshl_b32 s{sL}, s{sB}, 6
    s_add_u32 s{sL}, s{sL}, s{sQ4}
    s_mul_i32 s{sL}, s{sL}, {LUNIT}
    s_add_u32 s{sL}, s{sL}, {WS_HT}
    """)
    a("s_waitcnt lgkmcnt(0)")
    srd(a, SWS, 8, 9, WS_END)
    srd(a, SW1, 4, 5, 2048 * 3456)
    g1_ops = lambda: E.issue_ops(SW1, SWS, 4 * 32 * 3456, 4 * LUNIT)

    def run(ops):
        for op in ops:
            op()
    run(g1_ops())
    run(g1_ops())
    E.lds_addrs()
    a("s_barrier")
    a("s_barrier")
    run(g1_ops())
    srd(a, SB1, 6, 7, 3456)
    a(f"v_lshl_add_u32 v{t1}, v0, 1, s{sT1}")
    a.vmem(f"buffer_load_ushort v{bias}, v{t1}, s[{SB1}:{SB1 + 3}], 0 offen", "bias")
    E.first_reads(0)
    a(f"s_setprio {eprio[0]}")
    E.mpat = mpat[0]

    k0 = -2.0 * math.sqrt(2.0 / math.pi) * math.log2(math.e)
    k1 = k0 * 0.044715

    def count_up():
        a.wait_all()
        a("s_mov_b64 exec, 1")
        a(f"v_mov_b32 v{t0}, 1")
        a.ds(f"ds_add_u32 v{aC}, v{t0}")
        a("s_mov_b64 exec, -1")

    def g1_dump():
        a.cmt("MARK1")
        E.dump(True, RP1)
        a.wait(vm="bias")
        a(f"v_lshlrev_b32 v{bias}, 16, v{bias}")
        a(f"v_lshl_add_u32 v{t1}, v0, 2, s{sBase}")
        a.ds(f"ds_write_b32 v{t1}, v{bias} offset:{BIAS}")
        a.wait_all(vm=False)
        a("s_mov_b64 exec, 1")
        a(f"v_mov_b32 v{t0}, 1")
        a.ds(f"ds_add_u32 v{aC}, v{t0}")
        a("s_mov_b64 exec, -1")

    def g1_tasks():
        tl0, tb0, tl, hi = [E.C16[0] + i for i in range(4)]
        PB = [E.C32[0][0], E.C32[1][0]]
        BB = [E.T32[0][0], E.T32[0][0] + 8]
        Wk = E.T16[0]
        OUT = E.T32[0][0] + 16
        a(f"""
        v_lshrrev_b32 v{t0}, 4, v0
        v_lshlrev_b32 v{t0}, 1, v{t0}
        v_mov_b32 v{t3}, {GLUT}
        v_lshrrev_b32 v{t0}, v{t0}, v{t3}
        v_xor_b32 v{t0}, v{t0}, v0
        v_and_b32 v{t0}, 3, v{t0}
        v_lshlrev_b32 v{t0}, 5, v{t0}
        v_lshrrev_b32 v{t1}, 2, v0
        v_mul_u32_u24 v{tl0}, {RP1}, v{t1}
        v_add_u32 v{tl0}, v{tl0}, v{t0}
        v_add_u32 v{tb0}, s{sBase}, v{t0}
        s_mul_i32 s{sT1}, s{sB}, {AU_STRIDE}
        s_mul_i32 s57, s{sA}, {2 * LUNIT}
        s_add_u32 s{sT1}, s{sT1}, s57
        s_add_u32 s{sT1}, s{sT1}, {WS_AU}
        v_mov_b32 v{t3}, {f32(k0)}
        """)
        spin_lds(a, "K2_spinE", aC, t1, sT0, 4)

        def rd(r):
            p = PB[r % 2]
            a(f"""
            s_add_u32 s57, s{sQ4}, {4 * r}
            s_cmp_ge_u32 s57, 5
            s_cselect_b32 s58, 5, 0
            s_cselect_b32 s59, 128, 0
            s_sub_u32 s58, s57, s58
            s_mul_i32 s58, s58, {16 * RP1}
            s_add_u32 s58, s58, s59
            s_lshl_b32 s{60 + r}, s57, 10
            s_add_u32 s{60 + r}, s{60 + r}, s{sT1}
            v_add_u32 v{tl}, s58, v{tl0}
            v_add_u32 v{hi}, {2 * RING}, v{tl}
            v_add_u32 v{t2}, s59, v{tb0}
            """)
            for w in range(4):
                for k in range(2):
                    a.ds(f"ds_read_b128 {v(p + 8 * w + 4 * k, 4)}, v{tl if w < 2 else hi} offset:{(w % 2) * RING + 16 * k}", f"p{r}")
            for k in range(2):
                a.ds(f"ds_read_b128 {v(BB[r % 2] + 4 * k, 4)}, v{t2} offset:{BIAS + 16 * k}", f"p{r}")
        rd(0)
        for r in range(3):
            if r == 2:
                a(f"s_cmp_ge_u32 s{sQ4}, 2")
                a("s_cbranch_scc1 K2_t2skip")
            p, w = PB[r % 2], Wk
            a.wait(lg=f"p{r}")
            for j in range(8):
                a(f"v_add_f32 v{p + j}, v{p + j}, v{p + 8 + j}")
                a(f"v_add_f32 v{p + 16 + j}, v{p + 16 + j}, v{p + 24 + j}")
            for j in range(8):
                a(f"v_add_f32 v{p + j}, v{p + j}, v{BB[r % 2] + j}")
            for j in range(8):
                a(f"v_add_f32 v{w + 8 + j}, v{p + j}, v{p + 16 + j}")
            if r + 1 < 3:
                rd(r + 1)
            x = w + 8
            for j in range(8):
                a(f"v_mul_f32 v{w + j}, v{x + j}, v{x + j}")
            for j in range(8):
                a(f"v_fmamk_f32 v{w + j}, v{w + j}, {f32(k1)}, v{t3}")
            for j in range(8):
                a(f"v_mul_f32 v{w + j}, v{w + j}, v{x + j}")
            for j in range(8):
                a(f"v_exp_f32 v{w + j}, v{w + j}")
            for j in range(8):
                a(f"v_add_f32 v{w + j}, 1.0, v{w + j}")
            for j in range(8):
                a(f"v_rcp_f32 v{w + j}, v{w + j}")
            for j in range(8):
                a(f"v_mul_f32 v{w + j}, v{w + j}, v{x + j}")
            o = OUT + 4 * r
            for j in range(4):
                a(f"v_cvt_pk_bf16_f32 v{o + j}, v{w + 2 * j}, v{w + 2 * j + 1}")
            a.vmem(f"buffer_store_dwordx4 {v(o, 4)}, v{E.oL[0]}, s[{SWS}:{SWS + 3}], s{60 + r} offen {hs}", "ust")
        a.label("K2_t2skip")
        count_up()

    def publish(name, sflag):
        spin_lds(a, name, aC, t1, sT0, 8)
        a(f"""
        s_cmp_lg_u32 s{sQ4}, 0
        s_cbranch_scc1 {name}_np
        s_mov_b64 exec, 1
        v_mov_b32 v{t0}, 1
        v_mov_b32 v{t1}, s{sflag}
        buffer_store_dword v{t0}, v{t1}, s[{SWS}:{SWS + 3}], 0 offen sc1
        s_mov_b64 exec, -1
        """)
        a.label(name + "_np")

    for n in range(16):
        E.unit(n, True, n == 0, n + 1 < 16, g1_ops if n + 3 < 16 else None)
    a(f"s_setprio {eprio[1]}")
    g1_dump()
    g1_tasks()
    if not fused:
        a("s_endpgm")
    else:
        a(f"""
        s_lshl_b32 s57, s{sB}, 5
        s_add_u32 s57, s57, s{sA}
        s_lshl_b32 s57, s57, 2
        s_add_u32 s57, s57, {FLAGU}
        """)
        a.label("K2_merge")
        publish("K2_pubU", 57)
        a.lg, a.vm = [], []
        srd(a, SW1, 68, 69, 1728 * 4096)
        a(f"s_lshl_b32 s{sT1}, s{sI}, 7")
        E.dma_addrs_T(4096, sT1)
        a(f"""
        s_lshl_b32 s{sT}, s{sQ4}, 17
        s_mul_i32 s{sL}, s{sJ}, 74
        s_add_u32 s{sL}, s{sL}, s{sQ4}
        s_mul_i32 s{sL}, s{sL}, {LUNIT}
        s_add_u32 s{sL}, s{sL}, {WS_AU}
        """)

        def poll(name, base, nwords, ldsoff):
            a(f"""
            s_cmp_lg_u32 s{sQ4}, 0
            s_cbranch_scc1 {name}_w
            v_and_b32 v{t0}, {nwords - 1}, v0
            v_lshl_add_u32 v{t0}, v{t0}, 2, s{base}
            s_mov_b32 s63, 0x40000
            """)
            a.label(name)
            a(f"""
            buffer_load_dword v{t1}, v{t0}, s[{SWS}:{SWS + 3}], 0 offen sc1
            s_waitcnt vmcnt(0)
            v_cmp_ne_u32 vcc, 1, v{t1}
            s_cbranch_vccz {name}_ok
            s_sleep 2
            s_sub_u32 s63, s63, 1
            s_cbranch_scc0 {name}
            """)
            a.label(name + "_ok")
            a(f"""
            v_mov_b32 v{t1}, 1
            ds_write_b32 v{aC}, v{t1} offset:{ldsoff}
            """)
            a.label(name + "_w")
            a(f"v_add_u32 v{t2}, {ldsoff}, v{aC}")
            spin_lds(a, name + "_l", t2, t1, sT0, 1)

        N2, N3 = 14, 5
        NU = N2 + N3
        base_n = E.n_issued
        assert base_n == 16

        def ops():
            n = E.n_issued - base_n
            if n == N2 - 1:
                a(f"s_add_u32 s62, s{sL}, {2 * LUNIT}")
                a(f"s_cmp_ge_u32 s{sQ4}, 2")
                a(f"s_cselect_b32 s{sL}, 0x40000000, s{sL}")
            if n == N2:
                a(f"s_mov_b32 s{sL}, s62")
                a(f"s_mul_i32 s{sT1}, s{sI}, 81920")
                a(f"s_add_u32 s{sT1}, s{sT1}, {WS_OT}")
                E.dma_addrs_T(128, sT1)
                a(f"s_lshl_b32 s{sT}, s{sQ4}, 12")
            if n < N2:
                return E.issue_ops(SW1, SWS, 4 * 32 * 4096, 4 * LUNIT, modL=hl)
            return E.issue_ops(SWS, SWS, 4 * 4096, 4 * LUNIT, modT=hl, modL=hl)

        a(f"s_lshl_b32 s57, s{sJ}, 7")
        a(f"s_add_u32 s57, s57, {FLAGU}")
        poll("K2_pollU", 57, 32, 8)
        run(ops())
        run(ops())
        run(ops())
        a(f"s_setprio {eprio[2]}")
        E.first_reads(base_n)
        E.mpat = mpat[1]
        for n in range(N2):
            E.unit(base_n + n, False, n == 0, n + 1 < N2, ops if n + 3 < N2 else None)
            if n in (4, 9):
                a.cmt("MARK%d" % (8 if n == 4 else 9))
        a(f"s_setprio {eprio[3]}")
        E.mpat = None
        FR = E.T16[0]
        a(f"s_lshl_b32 s57, s{sI}, 7")
        a(f"s_add_u32 s57, s57, {FLAGO}")
        poll("K2_pollO", 57, 8, 12)
        a.lg, a.vm = [], []
        run(ops())
        run(ops())
        run(ops())
        E.first_reads(base_n + N2)
        for n in range(N2, NU):
            E.unit(base_n + n, False, False, n + 1 < NU, ops if n + 3 < NU else None)
        final_pre(FR)
        E.dump(False, RP2)
        a.wait_all(vm=False)
        a("s_barrier")
        final_post(FR, E.C32[0][0])

    a.label("K2_wot")
    a.lg, a.vm = lg0, vm0
    a("s_waitcnt lgkmcnt(0)")
    srd(a, SWS, 8, 9, WS_END)
    srd(a, SW1, 10, 11, 819200)
    a(f"""
    s_sub_u32 s{sT0}, s{sIdx}, 27
    s_lshl_b32 s{sT0}, s{sT0}, 2
    s_add_u32 s{sA}, s{sT0}, s{sQ4}
    s_mul_i32 s{sT}, s{sA}, {32 * 1280}
    s_mul_i32 s{sT1}, s{sX}, 160
    s_add_u32 s{sT}, s{sT}, s{sT1}
    s_mul_i32 s{sL}, s{sX}, 74
    s_add_u32 s{sL}, s{sL}, s{sA}
    s_add_u32 s{sL}, s{sL}, 54
    s_mul_i32 s{sL}, s{sL}, {LUNIT}
    s_add_u32 s{sL}, s{sL}, {WS_AU}
    """)
    a("s_setprio 0")
    a("s_barrier")
    a("s_barrier")
    for n in range(5):
        a(f"""
        v_add_u32 v{t0}, {64 * n}, v0
        v_mul_u32_u24 v{t1}, 205, v{t0}
        v_lshrrev_b32 v{t1}, 11, v{t1}
        v_mul_u32_u24 v{t2}, 10, v{t1}
        v_sub_u32 v{t2}, v{t0}, v{t2}
        v_mul_u32_u24 v{t1}, 1280, v{t1}
        v_lshl_add_u32 v{t1}, v{t2}, 4, v{t1}
        s_add_u32 m0, s{sBase}, {1024 * n}
        s_nop 0
        """)
        a.vmem(f"buffer_load_dwordx4 v{t1}, s[{SW1}:{SW1 + 3}], s{sT} offen lds", "wo")
    I, G = E.oT[0], E.oT[1]
    a(f"""
    v_and_b32 v{I}, 15, v0
    v_lshrrev_b32 v{G}, 4, v0
    v_lshrrev_b32 v{t0}, 2, v{I}
    v_lshl_add_u32 v{t1}, v{G}, 3, v{t0}
    v_mul_u32_u24 v{t1}, 160, v{t1}
    v_and_b32 v{t2}, 3, v{I}
    v_lshl_add_u32 v{t1}, v{t2}, 3, v{t1}
    v_add_u32 v{t1}, s{sBase}, v{t1}
    v_lshlrev_b32 v{t0}, 1, v{t0}
    v_mov_b32 v{t2}, {GLUT}
    v_lshrrev_b32 v{t0}, v{t0}, v{t2}
    v_xor_b32 v{t0}, v{t0}, v{G}
    v_and_b32 v{t0}, 3, v{t0}
    v_lshlrev_b32 v{t2}, 6, v{I}
    v_lshl_add_u32 v{t2}, v{t0}, 4, v{t2}
    v_add_u32 v{t3}, 4096, v{t2}
    """)
    a.wait(vm="wo")
    D = E.C32[0][0]
    for dq in range(5):
        for h in range(2):
            a.ds(f"ds_read_b64_tr_b16 {v(D + 4 * dq + 2 * h, 2)}, v{t1} offset:{32 * dq + 640 * h}", f"w{dq}")
    for dq in range(5):
        a.wait(lg=f"w{dq}")
        if dq < 4:
            a.vmem(f"buffer_store_dwordx4 {v(D + 4 * dq, 4)}, v{t2}, s[{SWS}:{SWS + 3}], s{sL} offen offset:{1024 * dq} {hs}", "x")
        else:
            a.vmem(f"buffer_store_dwordx4 {v(D + 4 * dq, 4)}, v{t3}, s[{SWS}:{SWS + 3}], s{sL} offen {hs}", "x")
    pf = []
    if pf2:
        srd(a, SW1, 68, 69, 1728 * 4096)
        a(f"""
        v_lshrrev_b32 v{t0}, 5, v0
        v_and_b32 v{t1}, 31, v0
        v_lshlrev_b32 v{t0}, 12, v{t0}
        v_lshl_add_u32 v{t0}, v{t1}, 4, v{t0}
        s_lshl_b32 s{sT}, s{sX}, 9
        s_lshl_b32 s{sT1}, s{sA}, 13
        s_add_u32 s{sT}, s{sT}, s{sT1}
        s_add_u32 m0, s{sBase}, {USZ}
        """)
        for n in range(44):
            def one(n=n):
                a.vmem(f"buffer_load_dwordx4 v{t0}, s[{SW1}:{SW1 + 3}], s{sT} offen lds", f"pf{n}")
                a(f"s_add_u32 s{sT}, s{sT}, {40 * 4096}")
                if n >= 12:
                    a.wait(vm=f"pf{n - 12}")
            pf.append(one)
    for f in pf:
        f()
    if fused:
        E.lds_addrs()
        count_up()
        count_up()
        a(f"""
        s_lshl_b32 s57, s{sX}, 5
        s_add_u32 s57, s57, s{sIdx}
        s_lshl_b32 s57, s57, 2
        s_add_u32 s57, s57, {FLAGU}
        s_branch K2_merge
        """)
    a.label("K2_end")
    a("s_endpgm")
    return a.L, nv, 76
```

```python
from asmlib import *
from layout import *
from k1 import srd
from engine import *

LDS_K3 = 4 * RING
RP2 = 336


def gen_k3(st=""):
    a = Asm()
    V = Regs('v', 1)
    sX, sIdx, sI, sJ, sW = 40, 41, 42, 43, 44
    SW2, SWS, SXX, SB2, SOUT = 20, 24, 28, 32, 36
    sBase, sT, sL, sT0, sT1 = 45, 46, 47, 48, 49
    E = Engine(a, V, sW, sBase, sT, sL, sT0)
    t0, t1, t2, t3 = E.t
    el = [V.alloc() for _ in range(3)]
    eg = [V.alloc() for _ in range(3)]
    nv = V.n
    a(f"""
    s_cmp_ge_u32 s2, 256
    s_cbranch_scc1 K3_end
    s_load_dwordx2 s[4:5], s[0:1], 0
    s_load_dwordx4 s[8:11], s[0:1], 64
    s_load_dwordx2 s[12:13], s[0:1], 80
    s_load_dwordx2 s[14:15], s[0:1], 96
    v_lshrrev_b32 v{t0}, 6, v0
    v_and_b32 v0, 63, v0
    s_and_b32 s{sX}, s2, 7
    v_readfirstlane_b32 s{sW}, v{t0}
    s_lshr_b32 s{sIdx}, s2, 3
    s_and_b32 s{sT0}, s{sIdx}, 3
    s_lshl_b32 s{sI}, s{sX}, 2
    s_add_u32 s{sI}, s{sI}, s{sT0}
    s_lshr_b32 s{sJ}, s{sIdx}, 2
    s_mul_i32 s{sBase}, s{sW}, {RING}
    s_lshl_b32 s{sT1}, s{sI}, 7
    """)
    E.dma_addrs_T(4096, sT1)
    E.dma_addrs_L()
    a(f"""
    s_lshl_b32 s{sT}, s{sW}, 17
    s_mul_i32 s{sL}, s{sJ}, 74
    s_add_u32 s{sL}, s{sL}, s{sW}
    s_mul_i32 s{sL}, s{sL}, {LUNIT}
    s_add_u32 s{sL}, s{sL}, {WS_AU}
    s_waitcnt lgkmcnt(0)
    """)
    srd(a, SWS, 14, 15, WS_END)
    srd(a, SW2, 8, 9, 1728 * 4096)
    N2, N3 = 14, 5
    NU = N2 + N3

    def ops():
        n = E.n_issued
        if n == N2 - 1:
            a(f"s_add_u32 s50, s{sL}, {2 * LUNIT}")
            a(f"s_cmp_ge_u32 s{sW}, 2")
            a(f"s_cselect_b32 s{sL}, 0x40000000, s{sL}")
        if n == N2:
            a(f"s_mov_b32 s{sL}, s50")
            a(f"s_mul_i32 s{sT1}, s{sI}, 81920")
            a(f"s_add_u32 s{sT1}, s{sT1}, {WS_OT}")
            E.dma_addrs_T(128, sT1)
            a(f"s_lshl_b32 s{sT}, s{sW}, 12")
        if n < N2:
            return E.issue_ops(SW2, SWS, 4 * 32 * 4096, 4 * LUNIT)
        return E.issue_ops(SWS, SWS, 4 * 4096, 4 * LUNIT)

    def issue():
        for op in ops():
            op()
    issue()
    issue()
    E.lds_addrs()
    issue()
    E.first_reads(0)
    for n in range(NU):
        E.unit(n, False, n == 0, n + 1 < NU, ops if n + 3 < NU else None)
        if n in (2, 6, 10, 13, 16):
            a.cmt("MARK%d" % {2: 2, 6: 3, 10: 4, 13: 5, 16: 6}[n])
        if n == NU - 4:
            srd(a, SXX, 4, 5, 2621440)
            srd(a, SB2, 10, 11, 4096)
            srd(a, SOUT, 12, 13, 2621440)
            a(f"""
            s_mul_i32 s50, s{sI}, {64 * 1280}
            s_mul_i32 s51, s{sJ}, 160
            s_add_u32 s50, s50, s51
            s_lshl_b32 s51, s{sI}, 7
            s_lshl_b32 s52, s{sW}, 6
            """)
            xr = [E.oT[0]]
    xr = [E.T32[0][0] + 4 * r for r in range(3)]
    b2 = [E.T32[0][0] + 12 + r for r in range(3)]
    for r in range(3):
        a(f"""
        v_add_u32 v{t0}, s52, v0
        v_add_u32 v{t0}, {256 * r}, v{t0}
        v_mul_u32_u24 v{t1}, 205, v{t0}
        v_lshrrev_b32 v{t1}, 11, v{t1}
        v_mul_u32_u24 v{t2}, 10, v{t1}
        v_sub_u32 v{t2}, v{t0}, v{t2}
        v_mul_u32_u24 v{el[r]}, {RP2}, v{t1}
        v_lshl_add_u32 v{el[r]}, v{t2}, 5, v{el[r]}
        v_mul_u32_u24 v{eg[r]}, 1280, v{t1}
        v_lshl_add_u32 v{eg[r]}, v{t2}, 4, v{eg[r]}
        v_lshlrev_b32 v{t1}, 1, v{t1}
        """)
        if r == 2:
            a(f"v_cmp_le_u32 vcc, 640, v{t0}")
            a(f"v_mov_b32 v{t2}, 0x40000000")
            a(f"v_cndmask_b32 v{eg[r]}, v{eg[r]}, v{t2}, vcc")
        a.vmem(f"buffer_load_dwordx4 {v(xr[r], 4)}, v{eg[r]}, s[{SXX}:{SXX + 3}], s50 offen", f"x{r}")
        a.vmem(f"buffer_load_ushort v{b2[r]}, v{t1}, s[{SB2}:{SB2 + 3}], s51 offen", f"x{r}")
    E.dump(False, RP2)
    a.wait_all(vm=False)
    a("s_barrier")
    P = [E.C32[0][0], E.C32[1][0]]
    xs = E.T16[0]
    hi = t3

    def rd(r):
        a(f"v_add_u32 v{hi}, {2 * RING}, v{el[r]}")
        for w in range(4):
            for k in range(2):
                a.ds(f"ds_read_b128 {v(P[r % 2] + 8 * w + 4 * k, 4)}, v{el[r] if w < 2 else hi} offset:{(w % 2) * RING + 16 * k}",
                     f"e{r}")
    rd(0)
    rd(1)
    for r in range(3):
        p = P[r % 2]
        a.wait(vm=f"x{r}")
        for e in range(4):
            a(f"v_lshlrev_b32 v{xs + 2 * e}, 16, v{xr[r] + e}")
            a(f"v_and_b32 v{xs + 2 * e + 1}, 0xffff0000, v{xr[r] + e}")
        a(f"v_lshlrev_b32 v{b2[r]}, 16, v{b2[r]}")
        for e in range(8):
            a(f"v_add_f32 v{xs + e}, v{xs + e}, v{b2[r]}")
        a.wait(lg=f"e{r}")
        for e in range(8):
            a(f"v_add_f32 v{p + e}, v{p + e}, v{p + 8 + e}")
            a(f"v_add_f32 v{p + 16 + e}, v{p + 16 + e}, v{p + 24 + e}")
        for e in range(8):
            a(f"v_add_f32 v{xs + e}, v{xs + e}, v{p + e}")
        for e in range(8):
            a(f"v_add_f32 v{xs + e}, v{xs + e}, v{p + 16 + e}")
        if r == 0:
            rd(2)
        for e in range(4):
            a(f"v_cvt_pk_bf16_f32 v{xr[r] + e}, v{xs + 2 * e}, v{xs + 2 * e + 1}")
        a.vmem(f"buffer_store_dwordx4 {v(xr[r], 4)}, v{eg[r]}, s[{SOUT}:{SOUT + 3}], s50 offen {st}", "o")
    a.label("K3_end")
    a("s_endpgm")
    return a.L, nv, 64
```

```python
import struct
WS_Q = 0
WS_HT = 0x280000
WS_KV = 0x500000
KV_BYTES = 33 * 6144
WS_AU = 0x600000
AU_STRIDE = 74 * 5120
WS_OT = 0x900000
WS_FLAG = 0xB80000
WS_END = 0xC00000
LUNIT = 5120
GLUT = 0x78

def g_of(row):
    return (GLUT >> (2 * ((row // 4) % 4))) & 3

def f32(x):
    return "0x%08x" % struct.unpack("<I", struct.pack("<f", x))[0]
```

```python
from asmlib import *
from layout import *
import math

XS = 12288
WSZ = 8192
NR = 7
XB = 0
WB = NR * XS
STAT = WB + NR * WSZ
LDS_K1 = STAT + 4 * 384
QIMG = WB
QP = 144
HIMG = WB + 96 * QP
HP = 208


def srd(a, d, lo, hi, size, off=0):
    if off:
        a(f"s_add_u32 s{d}, s{lo}, {off}")
        a(f"s_addc_u32 s{d + 1}, s{hi}, 0")
    else:
        a(f"s_mov_b32 s{d}, s{lo}")
        a(f"s_mov_b32 s{d + 1}, s{hi}")
    a(f"s_mov_b32 s{d + 2}, {size}")
    a(f"s_mov_b32 s{d + 3}, 0x20000")


def bf16r(a, d, x):
    a(f"v_cvt_pk_bf16_f32 v{d}, v{x}, v{x}")
    a(f"v_and_b32 v{d}, 0xffff0000, v{d}")


def gen_k1(st="" ):
    a = Asm()
    V = Regs('v', 1)
    sT, sRB, sCB, sW = 16, 17, 18, 19
    SX, SW, SQ, SH, SKV = 20, 24, 28, 32, 36
    sKC, sOX, sOW, sWST, sMX, sMW, sT0, sT1, sRH, sCK = 40, 41, 42, 43, 44, 45, 46, 47, 48, 49
    t0, t1, t2, t3 = [V.alloc() for _ in range(4)]
    vXo0, vXo1, vWo = V.alloc(), V.alloc(), V.alloc()
    vXa = [[V.alloc() for _ in range(2)] for _ in range(2)]
    vSa = [V.alloc() for _ in range(2)]
    vWa = V.alloc()
    vI, vG = V.alloc(), V.alloc()
    ones = V.alloc(4, 4)
    XF = [[V.alloc(4, 4) for _ in range(6)] for _ in range(2)]
    WF = [[V.alloc(4, 4) for _ in range(2)] for _ in range(2)]
    SF = [[V.alloc(2) for _ in range(3)] for _ in range(2)]
    acc = [V.alloc(4, 4) for _ in range(3)]
    cs = V.alloc(4, 4)
    su = [V.alloc() for _ in range(3)]
    sq = [V.alloc() for _ in range(3)]
    tmp = V.alloc(32, 4)
    nv = V.n

    a(f"""
    s_cmp_ge_u32 s2, 256
    s_cbranch_scc1 K1_end
    s_load_dwordx8 s[4:11], s[0:1], 0
    s_load_dwordx2 s[14:15], s[0:1], 96
    v_lshrrev_b32 v{t0}, 6, v0
    v_and_b32 v0, 63, v0
    s_and_b32 s{sT}, s2, 7
    v_readfirstlane_b32 s{sW}, v{t0}
    s_lshl_b32 s{sT}, s{sT}, 5
    s_lshr_b32 s{sRB}, s2, 3
    s_add_u32 s{sT}, s{sT}, s{sRB}
    s_cmp_ge_u32 s{sT}, 242
    s_cbranch_scc1 K1_end
    s_mul_i32 s{sRB}, s{sT}, 745
    s_lshr_b32 s{sRB}, s{sRB}, 13
    s_mul_i32 s{sCB}, s{sRB}, 11
    s_sub_u32 s{sCB}, s{sT}, s{sCB}
    s_lshr_b32 s{sRH}, s{sW}, 2
    s_and_b32 s{sCK}, s{sW}, 3
    """)
    a(f"""
    v_lshrrev_b32 v{t0}, 3, v0
    v_and_b32 v{t1}, 7, v0
    s_mul_i32 s{sT0}, s{sW}, 12
    v_add_u32 v{t2}, s{sT0}, v{t0}
    v_bfe_u32 v{t3}, v{t2}, 1, 3
    v_xor_b32 v{t3}, v{t3}, v{t1}
    s_mul_i32 s{sT1}, s{sRB}, 96
    v_add_u32 v{t2}, s{sT1}, v{t2}
    v_mul_u32_u24 v{t2}, 1280, v{t2}
    v_lshl_add_u32 v{vXo0}, v{t3}, 4, v{t2}
    v_xor_b32 v{vXo1}, 64, v{vXo0}
    v_add_u32 v{vXo1}, 10240, v{vXo1}
    s_mul_i32 s{sMX}, s{sW}, 1536
    s_lshl_b32 s{sMW}, s{sW}, 10
    s_add_u32 s{sMW}, s{sMW}, {WB}
    v_and_b32 v{vI}, 15, v0
    v_lshrrev_b32 v{vG}, 4, v0
    s_cmp_eq_u32 s{sCB}, 10
    s_cbranch_scc1 K1_kv
    """)

    def issue(stage_slot, role):
        slot = stage_slot % NR
        a(f"s_lshl_b32 s{sOX}, s{sKC}, 7")
        a(f"s_mul_i32 s{sOW}, s{sKC}, {81920 if role == 'Q' else 2560}")
        a(f"s_add_u32 m0, s{sMX}, {XB + slot * XS}")
        a(f"s_add_u32 s{sKC}, s{sKC}, 1")
        a.vmem(f"buffer_load_dwordx4 v{vXo0}, s[{SX}:{SX + 3}], s{sOX} offen lds", f"st{stage_slot}")
        a(f"s_add_u32 m0, s{sMX}, {XB + slot * XS + 1024}")
        a("s_mov_b32 exec_hi, 0")
        a.vmem(f"buffer_load_dwordx4 v{vXo1}, s[{SX}:{SX + 3}], s{sOX} offen lds", f"st{stage_slot}")
        a("s_mov_b32 exec_hi, -1")
        a(f"s_add_u32 m0, s{sMW}, {slot * WSZ}")
        a(f"s_cmp_eq_u32 s{sKC}, 10")
        a.vmem(f"buffer_load_dwordx4 v{vWo}, s[{SW}:{SW + 3}], s{sOW} offen lds", f"st{stage_slot}")
        a(f"s_cselect_b32 s{sKC}, 0, s{sKC}")

    def lds_addrs(role):
        a(f"""
        v_lshrrev_b32 v{t0}, 1, v{vI}
        v_xor_b32 v{t0}, v{t0}, v{vG}
        s_mul_i32 s{sT0}, s{sRH}, {48 * 128}
        v_lshlrev_b32 v{t1}, 7, v{vI}
        v_add_u32 v{t1}, s{sT0}, v{t1}
        v_lshl_add_u32 v{vXa[0][0]}, v{t0}, 4, v{t1}
        v_xor_b32 v{vXa[0][1]}, 64, v{vXa[0][0]}
        v_add_u32 v{vXa[1][0]}, {5 * XS}, v{vXa[0][0]}
        v_add_u32 v{vXa[1][1]}, {5 * XS}, v{vXa[0][1]}
        v_lshlrev_b32 v{t0}, 3, v0
        v_add_u32 v{vSa[0]}, s{sMX}, v{t0}
        v_add_u32 v{vSa[1]}, {5 * XS}, v{vSa[0]}
        """)
        a(f"""
        v_lshrrev_b32 v{t0}, 2, v{vI}
        v_lshl_add_u32 v{t0}, v{vG}, 3, v{t0}
        v_bfe_u32 v{t1}, v{vI}, 1, 1
        v_and_b32 v{t2}, 1, v{vG}
        v_lshlrev_b32 v{t2}, 1, v{t2}
        """)
        if role == 'Q':
            a(f"""
            v_bfe_u32 v{t3}, v{vI}, 3, 1
            v_lshl_or_b32 v{t2}, v{t3}, 2, v{t2}
            s_lshl_b32 s{sT0}, s{sCK}, 1
            v_add_u32 v{t1}, s{sT0}, v{t1}
            v_xor_b32 v{t1}, v{t1}, v{t2}
            v_lshlrev_b32 v{t0}, 7, v{t0}
            v_lshl_add_u32 v{t0}, v{t1}, 4, v{t0}
            v_add_u32 v{t0}, {WB}, v{t0}
            """)
        else:
            a(f"""
            s_and_b32 s{sT0}, s{sCK}, 1
            s_lshl_b32 s{sT0}, s{sT0}, 1
            v_add_u32 v{t1}, s{sT0}, v{t1}
            v_xor_b32 v{t1}, v{t1}, v{t2}
            v_lshlrev_b32 v{t0}, 6, v{t0}
            v_lshl_add_u32 v{t0}, v{t1}, 4, v{t0}
            s_lshr_b32 s{sT0}, s{sCK}, 1
            s_lshl_b32 s{sT0}, s{sT0}, 12
            s_add_u32 s{sT0}, s{sT0}, {WB}
            v_add_u32 v{t0}, s{sT0}, v{t0}
            """)
        a(f"""
        v_and_b32 v{t1}, 1, v{vI}
        v_lshl_add_u32 v{vWa}, v{t1}, 3, v{t0}
        """)
        for i in range(4):
            a(f"v_mov_b32 v{ones + i}, 0x3f803f80")
        for i in range(3):
            a(f"v_mov_b32 v{su[i]}, 0")
            a(f"v_mov_b32 v{sq[i]}, 0")

    def reads(i, role):
        slot = i % NR
        b = i % 2
        st_, off = (0, slot * XS) if slot < 5 else (1, (slot - 5) * XS)
        ksd, hd = (4096, 512) if role == 'Q' else (2048, 256)
        for ks in range(2):
            for h in range(2):
                a.ds(f"ds_read_b64_tr_b16 {v(WF[b][ks] + 2 * h, 2)}, v{vWa} offset:{slot * WSZ + ks * ksd + h * hd}")
            for r in range(3):
                a.ds(f"ds_read_b128 {v(XF[b][ks * 3 + r], 4)}, v{vXa[st_][ks]} offset:{off + r * 2048}")
        for n in range(3):
            a.ds(f"ds_read_b64 {v(SF[b][n], 2)}, v{vSa[st_]} offset:{off + n * 512}")

    def compute(i, role):
        b = i % 2
        dots = []
        for n in range(3):
            for e in range(2):
                dots.append(f"v_dot2c_f32_bf16 v{su[n]}, v{SF[b][n] + e}, v{ones}")
                dots.append(f"v_dot2c_f32_bf16 v{sq[n]}, v{SF[b][n] + e}, v{SF[b][n] + e}")
        for ks in range(2):
            first = (i == 0 and ks == 0)
            for r in range(4):
                d = acc[r] if r < 3 else cs
                x = XF[b][ks * 3 + r] if r < 3 else ones
                w = WF[b][ks]
                A, B = (x, w) if role == 'V' else (w, x)
                c = "0" if first else v(d, 4)
                a(f"v_mfma_f32_16x16x32_bf16 {v(d, 4)}, {v(A, 4)}, {v(B, 4)}, {c}")
        for dd in dots:
            a(dd)

    def mainloop(role):
        for i in range(10):
            a.wait(vm=f"st{i}")
            a("s_barrier")
            if i in (0, 1, 2, 4, 6, 8, 9):
                a.cmt("MARK%d" % {0: 2, 1: 3, 2: 4, 4: 5, 6: 6, 8: 7, 9: 8}[i])
            if 1 <= i <= 3:
                issue(i + 6, role)
            reads(i, role)
            if i > 0:
                compute(i - 1, role)
            a.wait_all(vm=False)
        compute(9, role)

    def stats(role):
        for sh in (8, 4, 2, 1):
            for n in range(3):
                a(f"v_add_f32_dpp v{su[n]}, v{su[n]}, v{su[n]} row_ror:{sh} row_mask:0xf bank_mask:0xf")
                a(f"v_add_f32_dpp v{sq[n]}, v{sq[n]}, v{sq[n]} row_ror:{sh} row_mask:0xf bank_mask:0xf")
        m, e, mb, r1, m2, x1, x2, r2 = [tmp + i for i in range(8)]
        a(f"""
        v_cmp_eq_u32 vcc, 1, v{vI}
        v_cndmask_b32 v{m}, v{su[0]}, v{su[1]}, vcc
        v_cndmask_b32 v{e}, v{sq[0]}, v{sq[1]}, vcc
        v_cmp_eq_u32 vcc, 2, v{vI}
        v_cndmask_b32 v{m}, v{m}, v{su[2]}, vcc
        v_cndmask_b32 v{e}, v{e}, v{sq[2]}, vcc
        v_mul_f32 v{m}, {f32(1.0 / 640)}, v{m}
        v_mul_f32 v{e}, {f32(1.0 / 640)}, v{e}
        v_fma_f32 v{e}, -v{m}, v{m}, v{e}
        v_max_f32 v{e}, 0, v{e}
        """)
        bf16r(a, mb, m)
        bf16r(a, x1, e)
        a(f"v_add_f32 v{x1}, {f32(1e-5)}, v{x1}")
        bf16r(a, x1, x1)
        a(f"v_sqrt_f32 v{x1}, v{x1}")
        bf16r(a, x1, x1)
        a(f"v_rcp_f32 v{r1}, v{x1}")
        a(f"v_sub_f32 v{m2}, v{m}, v{mb}")
        a(f"v_mul_f32 v{m2}, v{m2}, v{r1}")
        bf16r(a, m2, m2)
        a(f"v_mul_f32 v{x2}, v{e}, v{r1}")
        a(f"v_mul_f32 v{x2}, v{x2}, v{r1}")
        bf16r(a, x2, x2)
        a(f"v_add_f32 v{x2}, {f32(1e-5)}, v{x2}")
        bf16r(a, x2, x2)
        a(f"v_sqrt_f32 v{x2}, v{x2}")
        bf16r(a, x2, x2)
        a(f"v_rcp_f32 v{r2}, v{x2}")
        A1, B1, G, H = [tmp + 8 + i for i in range(4)]
        a(f"v_mul_f32 v{B1}, -v{mb}, v{r1}")
        a(f"v_mul_f32 v{G}, v{r1}, v{r2}")
        a(f"v_sub_f32 v{H}, v{B1}, v{m2}")
        a(f"v_mul_f32 v{H}, v{H}, v{r2}")
        if role == 'Q':
            c = f32(math.log2(math.e) / math.sqrt(20.0))
            a(f"v_mul_f32 v{A1}, {c}, v{r1}")
            a(f"v_mul_f32 v{B1}, {c}, v{B1}")
        else:
            a(f"v_mov_b32 v{A1}, v{r1}")
        a(f"""
        v_lshl_add_u32 v{t0}, v{vI}, 2, v{vG}
        s_mul_i32 s{sT0}, s{sW}, 48
        s_add_u32 s{sT0}, s{sT0}, {STAT}
        v_lshl_add_u32 v{t0}, v{t0}, 2, s{sT0}
        v_cmp_gt_u32 vcc, 3, v{vI}
        s_and_saveexec_b64 s[50:51], vcc
        """)
        for k, r in enumerate((A1, B1, G, H)):
            a.ds(f"ds_write_b32 v{t0}, v{r} offset:{k * 384}")
        a("s_mov_b64 exec, s[50:51]")
        a.wait_all(vm=False)
        a("s_barrier")

    a(f"""
    v_lshrrev_b32 v{t0}, 3, v0
    s_lshl_b32 s{sT0}, s{sW}, 3
    v_add_u32 v{t2}, s{sT0}, v{t0}
    v_bfe_u32 v{t3}, v{t0}, 1, 1
    v_lshlrev_b32 v{t3}, 2, v{t3}
    s_and_b32 s{sT0}, s{sW}, 1
    s_lshl_b32 s{sT0}, s{sT0}, 1
    v_or_b32 v{t3}, s{sT0}, v{t3}
    v_xor_b32 v{t3}, v{t3}, v{t1}
    v_mul_u32_u24 v{t2}, 1280, v{t2}
    v_lshl_add_u32 v{t2}, v{t3}, 4, v{t2}
    s_lshl_b32 s{sT0}, s{sCB}, 7
    v_add_u32 v{vWo}, s{sT0}, v{t2}
    s_add_u32 s{sKC}, s{sCB}, 1
    s_cmp_eq_u32 s{sKC}, 10
    s_cselect_b32 s{sKC}, 0, s{sKC}
    s_waitcnt lgkmcnt(0)
    """)
    srd(a, SX, 4, 5, 2621440)
    srd(a, SW, 6, 7, 819200)
    for i in range(NR):
        issue(i, 'Q')
    srd(a, SQ, 14, 15, 2621440, WS_Q)
    srd(a, SH, 14, 15, 2621440, WS_HT)
    lds_addrs('Q')
    mainloop('Q')
    stats('Q')
    pa = tmp
    a(f"""
    s_mul_i32 s{sT0}, s{sRH}, {48 * 4}
    s_add_u32 s{sT0}, s{sT0}, {STAT}
    v_lshl_add_u32 v{t0}, v{vI}, 2, s{sT0}
    """)
    for i in range(3):
        a.ds(f"ds_read_b32 v{pa + 2 * i}, v{t0} offset:{i * 64}", f"pa{i}")
        a.ds(f"ds_read_b32 v{pa + 2 * i + 1}, v{t0} offset:{384 + i * 64}", f"pa{i}")
    hx = tmp + 8
    hg = XF[0][0]
    assert XF[0][5] + 4 - hg == 24
    lastslot = 9 % NR
    a(f"""
    v_lshrrev_b32 v{t1}, 2, v{vI}
    s_mul_i32 s{sT0}, s{sW}, 12
    v_add_u32 v{t1}, s{sT0}, v{t1}
    v_bfe_u32 v{t2}, v{vI}, 1, 1
    v_lshl_add_u32 v{t2}, v{vG}, 1, v{t2}
    v_and_b32 v{t3}, 1, v{vI}
    v_lshlrev_b32 v{t3}, 3, v{t3}
    """)
    ad = tmp + 14
    for n in range(3):
        a(f"""
        v_add_u32 v{ad}, {4 * n}, v{t1}
        v_bfe_u32 v{ad + 1}, v{ad}, 1, 3
        v_xor_b32 v{ad + 1}, v{ad + 1}, v{t2}
        v_lshl_add_u32 v{ad}, v{ad}, 7, v{t3}
        v_lshl_add_u32 v{ad + 2 + n}, v{ad + 1}, 4, v{ad}
        """)
        a.ds(f"ds_read_b64_tr_b16 {v(hx + 2 * n, 2)}, v{ad + 2 + n} offset:{XB + lastslot * XS}", f"hx{n}")
    a(f"""
    s_mul_i32 s{sT0}, s{sW}, 48
    s_add_u32 s{sT0}, s{sT0}, {STAT + 768}
    v_mov_b32 v{ad}, s{sT0}
    """)
    for n in range(3):
        a.ds(f"ds_read_b128 {v(hg + 4 * n, 4)}, v{ad} offset:{16 * n}", f"hx{n}")
        a.ds(f"ds_read_b128 {v(hg + 12 + 4 * n, 4)}, v{ad} offset:{384 + 16 * n}", f"hx{n}")
    a(f"""
    s_mul_i32 s{sT0}, s{sRH}, {48 * QP}
    s_lshl_b32 s{sT1}, s{sCK}, 5
    s_add_u32 s{sT0}, s{sT0}, s{sT1}
    s_add_u32 s{sT0}, s{sT0}, {QIMG}
    v_mul_u32_u24 v{t0}, {QP}, v{vI}
    v_lshl_add_u32 v{t0}, v{vG}, 3, v{t0}
    v_add_u32 v{t0}, s{sT0}, v{t0}
    """)
    o = tmp + 20
    for i in range(3):
        a.wait(lg=f"pa{i}")
        for j in range(4):
            a(f"v_mul_f32 v{acc[i] + j}, v{acc[i] + j}, v{pa + 2 * i}")
            a(f"v_fmac_f32 v{acc[i] + j}, v{cs + j}, v{pa + 2 * i + 1}")
        a(f"v_cvt_pk_bf16_f32 v{o + 2 * i}, v{acc[i]}, v{acc[i] + 1}")
        a(f"v_cvt_pk_bf16_f32 v{o + 2 * i + 1}, v{acc[i] + 2}, v{acc[i] + 3}")
        a.ds(f"ds_write_b64 v{t0}, {v(o + 2 * i, 2)} offset:{i * 16 * QP}")
    a(f"""
    s_mul_i32 s{sT0}, s{sW}, 24
    s_add_u32 s{sT0}, s{sT0}, {HIMG}
    v_mul_u32_u24 v{t1}, {HP}, v0
    v_add_u32 v{t1}, s{sT0}, v{t1}
    """)
    w4 = XF[1][0]
    for n in range(3):
        a.wait(lg=f"hx{n}")
        for e in range(2):
            a(f"v_lshlrev_b32 v{w4 + 2 * e}, 16, v{hx + 2 * n + e}")
            a(f"v_and_b32 v{w4 + 2 * e + 1}, 0xffff0000, v{hx + 2 * n + e}")
        for j in range(4):
            a(f"v_fma_f32 v{w4 + j}, v{w4 + j}, v{hg + 4 * n + j}, v{hg + 12 + 4 * n + j}")
        a(f"v_cvt_pk_bf16_f32 v{o + 6 + 2 * n}, v{w4}, v{w4 + 1}")
        a(f"v_cvt_pk_bf16_f32 v{o + 6 + 2 * n + 1}, v{w4 + 2}, v{w4 + 3}")
        a.ds(f"ds_write_b64 v{t1}, {v(o + 6 + 2 * n, 2)} offset:{8 * n}")
    ql, qg, hl0, hg0, hl1, hg1, c0, c1 = [XF[1][1] + i for i in range(8)]
    a(f"""
    v_lshrrev_b32 v{t0}, 3, v0
    v_and_b32 v{t1}, 7, v0
    s_mul_i32 s{sT0}, s{sW}, 12
    v_add_u32 v{t0}, s{sT0}, v{t0}
    v_mul_u32_u24 v{ql}, {QP}, v{t0}
    v_lshl_add_u32 v{ql}, v{t1}, 4, v{ql}
    v_add_u32 v{ql}, {QIMG}, v{ql}
    s_mul_i32 s{sT1}, s{sRB}, 96
    v_add_u32 v{t0}, s{sT1}, v{t0}
    v_mul_u32_u24 v{qg}, 1280, v{t0}
    v_lshl_add_u32 v{qg}, v{t1}, 4, v{qg}
    s_lshl_b32 s{sT0}, s{sCB}, 7
    v_add_u32 v{qg}, s{sT0}, v{qg}
    s_lshl_b32 s{sT0}, s{sW}, 3
    s_lshl_b32 s52, s{sCB}, 6
    s_mul_i32 s53, s{sRB}, 192
    """)
    for (hl, hgl, c, add) in ((hl0, hg0, c0, 0), (hl1, hg1, c1, 64)):
        a(f"""
        v_add_u32 v{t0}, {add}, v0
        v_mul_u32_u24 v{t1}, 43, v{t0}
        v_lshrrev_b32 v{t1}, 9, v{t1}
        v_mul_u32_u24 v{t2}, 12, v{t1}
        v_sub_u32 v{t2}, v{t0}, v{t2}
        v_add_u32 v{t1}, s{sT0}, v{t1}
        v_mul_u32_u24 v{hl}, {HP}, v{t1}
        v_lshl_add_u32 v{hl}, v{t2}, 4, v{hl}
        v_add_u32 v{hl}, {HIMG}, v{hl}
        v_add_u32 v{t1}, s52, v{t1}
        v_lshlrev_b32 v{hgl}, 12, v{t1}
        v_lshl_add_u32 v{c}, v{t2}, 4, s53
        v_add_u32 v{hgl}, v{hgl}, v{c}
        """)
        a(f"v_cmp_le_u32 vcc, 4096, v{c}")
        a(f"v_cndmask_b32 v{hgl}, v{hgl}, v{ones}, vcc")
    a.wait_all(vm=False)
    a("s_barrier")
    d = XF[0][0]
    a.ds(f"ds_read_b128 {v(d, 4)}, v{ql}", "a")
    a.ds(f"ds_read_b128 {v(d + 4, 4)}, v{ql} offset:{8 * QP}", "b")
    a.ds(f"ds_read_b128 {v(d + 8, 4)}, v{hl0}", "c")
    a.ds(f"ds_read_b128 {v(d + 12, 4)}, v{hl1}", "d")
    a(f"v_add_u32 v{t0}, 10240, v{qg}")
    a.wait(lg="a")
    a(f"buffer_store_dwordx4 {v(d, 4)}, v{qg}, s[{SQ}:{SQ + 3}], 0 offen {st}")
    a.wait(lg="c")
    a(f"buffer_store_dwordx4 {v(d + 8, 4)}, v{hg0}, s[{SH}:{SH + 3}], 0 offen {st}")
    a.wait(lg="d")
    a("s_mov_b32 exec_hi, 0")
    a(f"buffer_store_dwordx4 {v(d + 4, 4)}, v{t0}, s[{SQ}:{SQ + 3}], 0 offen {st}")
    a(f"buffer_store_dwordx4 {v(d + 12, 4)}, v{hg1}, s[{SH}:{SH + 3}], 0 offen {st}")
    a("s_endpgm")

    a.lg, a.vm = [], []
    a.label("K1_kv")
    a(f"""
    v_lshrrev_b32 v{t0}, 2, v0
    v_and_b32 v{t1}, 3, v0
    v_bfe_u32 v{t3}, v{t0}, 3, 1
    v_lshlrev_b32 v{t3}, 1, v{t3}
    v_xor_b32 v{t3}, v{t3}, v{t1}
    s_lshl_b32 s{sT0}, s{sCK}, 4
    v_add_u32 v{t0}, s{sT0}, v{t0}
    v_mul_u32_u24 v{t0}, 40, v{t0}
    v_lshl_add_u32 v{vWo}, v{t3}, 4, v{t0}
    s_mov_b32 s{sKC}, 0
    s_waitcnt lgkmcnt(0)
    s_cmp_eq_u32 s{sRH}, 0
    s_cselect_b32 s6, s8, s10
    s_cselect_b32 s7, s9, s11
    """)
    srd(a, SX, 4, 5, 2621440)
    srd(a, SW, 6, 7, 25600)
    for i in range(NR):
        issue(i, 'K')
    srd(a, SKV, 14, 15, KV_BYTES, WS_KV)
    lds_addrs('K')
    a(f"s_cmp_ge_u32 s{sCK}, 2")
    a("s_cbranch_scc1 K1_v")
    vm_save = list(a.vm)

    def tb_off(i, sd, stile, st_):
        a(f"""
        s_mul_i32 s{sT0}, s{sRB}, 6
        s_mul_i32 s{sT1}, s{sRH}, 3
        s_add_u32 s{sT0}, s{sT0}, s{sT1}
        s_add_u32 s{sT0}, s{sT0}, {i}
        s_lshr_b32 s{sT1}, s{sT0}, 2
        s_mul_i32 s{sd}, s{sT1}, 6144
        s_bfe_u32 s{sT1}, s{sT0}, 0x10001
        s_mul_i32 s{sT1}, s{sT1}, s{stile}
        s_add_u32 s{sd}, s{sd}, s{sT1}
        s_and_b32 s{sT1}, s{sT0}, 1
        s_mul_i32 s{sT1}, s{sT1}, s{st_}
        s_add_u32 s{sd}, s{sd}, s{sT1}
        """)

    mainloop('K')
    stats('K')
    a(f"""
    s_mul_i32 s{sT0}, s{sRH}, {48 * 4}
    s_add_u32 s{sT0}, s{sT0}, {STAT}
    v_lshl_add_u32 v{t0}, v{vI}, 2, s{sT0}
    """)
    for i in range(3):
        a.ds(f"ds_read_b32 v{pa + 2 * i}, v{t0} offset:{i * 64}", f"pa{i}")
        a.ds(f"ds_read_b32 v{pa + 2 * i + 1}, v{t0} offset:{384 + i * 64}", f"pa{i}")
    a(f"""
    v_lshrrev_b32 v{t1}, 1, v{vG}
    v_lshl_add_u32 v{t1}, v{t1}, 5, v{vI}
    v_and_b32 v{t2}, 1, v{vG}
    v_lshlrev_b32 v{t2}, 3, v{t2}
    v_lshl_add_u32 v{t1}, v{t1}, 4, v{t2}
    v_lshlrev_b32 v{t2}, 8, v{vG}
    v_lshl_add_u32 v{t2}, v{vI}, 3, v{t2}
    v_add_u32 v{t2}, 2048, v{t2}
    v_cmp_le_u32 vcc, 2, v{vG}
    v_cndmask_b32 v{t2}, v{t2}, v{ones}, vcc
    s_mov_b32 s54, 512
    s_mov_b32 s55, 128
    s_cmp_eq_u32 s{sCK}, 0
    s_cselect_b64 vcc, -1, 0
    s_cselect_b32 s54, 1024, s54
    s_cselect_b32 s55, 256, s55
    v_cndmask_b32 v{t1}, v{t2}, v{t1}, vcc
    v_cmp_eq_u32 s[56:57], 1, v{vG}
    s_andn2_b64 s[56:57], s[56:57], vcc
    v_mov_b32 v{t2}, 0x3f80
    v_mov_b32 v{t3}, 0
    """)
    for i in range(3):
        tb_off(i, 58, 54, 55)
        a.wait(lg=f"pa{i}")
        for j in range(4):
            a(f"v_mul_f32 v{acc[i] + j}, v{acc[i] + j}, v{pa + 2 * i}")
            a(f"v_fmac_f32 v{acc[i] + j}, v{cs + j}, v{pa + 2 * i + 1}")
        a(f"v_cvt_pk_bf16_f32 v{o + 2 * i}, v{acc[i]}, v{acc[i] + 1}")
        a(f"v_cvt_pk_bf16_f32 v{o + 2 * i + 1}, v{acc[i] + 2}, v{acc[i] + 3}")
        a(f"v_cndmask_b32 v{o + 2 * i}, v{o + 2 * i}, v{t2}, s[56:57]")
        a(f"v_cndmask_b32 v{o + 2 * i + 1}, v{o + 2 * i + 1}, v{t3}, s[56:57]")
        a(f"buffer_store_dwordx2 {v(o + 2 * i, 2)}, v{t1}, s[{SKV}:{SKV + 3}], s58 offen {st}")
    a("s_endpgm")

    a.lg, a.vm = [], vm_save
    a.label("K1_v")
    mainloop2_role = 'V'

    def reads_v(i):
        reads(i, 'K')
    for i in range(10):
        a.wait(vm=f"st{i}")
        a("s_barrier")
        if 1 <= i <= 3:
            issue(i + 6, 'K')
        reads(i, 'K')
        if i > 0:
            compute(i - 1, 'V')
        a.wait_all(vm=False)
    compute(9, 'V')
    stats('V')
    pv = XF[0][0]
    a(f"""
    s_mul_i32 s{sT0}, s{sRH}, {48 * 4}
    s_add_u32 s{sT0}, s{sT0}, {STAT}
    v_lshl_add_u32 v{t0}, v{vG}, 4, s{sT0}
    """)
    for i in range(3):
        a.ds(f"ds_read_b128 {v(pv + 8 * i, 4)}, v{t0} offset:{i * 64}", f"pa{i}")
        a.ds(f"ds_read_b128 {v(pv + 8 * i + 4, 4)}, v{t0} offset:{384 + i * 64}", f"pa{i}")
    a(f"""
    v_lshrrev_b32 v{t1}, 1, v{vG}
    v_mul_u32_u24 v{t1}, 24, v{t1}
    v_add_u32 v{t1}, v{t1}, v{vI}
    s_sub_u32 s{sT0}, s{sCK}, 2
    s_lshl_b32 s{sT0}, s{sT0}, 4
    v_add_u32 v{t3}, s{sT0}, v{vI}
    v_add_u32 v{t1}, s{sT0}, v{t1}
    v_and_b32 v{t2}, 1, v{vG}
    v_lshlrev_b32 v{t2}, 3, v{t2}
    v_lshl_add_u32 v{t1}, v{t1}, 4, v{t2}
    v_add_u32 v{t1}, 3072, v{t1}
    v_cmp_le_u32 vcc, 24, v{t3}
    v_cndmask_b32 v{t1}, v{t1}, v{ones}, vcc
    v_cmp_le_u32 s[56:57], 20, v{t3}
    v_cmp_eq_u32 vcc, 20, v{t3}
    v_cndmask_b32 v{t3}, 0, v{ones}, vcc
    s_mov_b32 s54, 1536
    s_mov_b32 s55, 768
    """)
    for i in range(3):
        tb_off(i, 58, 54, 55)
        a.wait(lg=f"pa{i}")
        for j in range(4):
            a(f"v_mul_f32 v{acc[i] + j}, v{acc[i] + j}, v{pv + 8 * i + j}")
            a(f"v_fmac_f32 v{acc[i] + j}, v{cs + j}, v{pv + 8 * i + 4 + j}")
        a(f"v_cvt_pk_bf16_f32 v{o + 2 * i}, v{acc[i]}, v{acc[i] + 1}")
        a(f"v_cvt_pk_bf16_f32 v{o + 2 * i + 1}, v{acc[i] + 2}, v{acc[i] + 3}")
        a(f"v_cndmask_b32 v{o + 2 * i}, v{o + 2 * i}, v{t3}, s[56:57]")
        a(f"v_cndmask_b32 v{o + 2 * i + 1}, v{o + 2 * i + 1}, v{t3}, s[56:57]")
        a(f"buffer_store_dwordx2 {v(o + 2 * i, 2)}, v{t1}, s[{SKV}:{SKV + 3}], s58 offen {st}")
    a.label("K1_end")
    a("s_endpgm")
    return a.L, nv, 64
```

```python
import sys
from asmlib import *
import k1, k2, k3
NAME = "parallel_sum__grouped_kv_mqa__mixer_token_mlp__prompt"
STAMP_OFF = 0x1000000
NMARK = 12
def stamp(L, ki):
    pre = ["    s_memrealtime s[80:81]", "    s_memtime s[82:83]", "    v_lshrrev_b32 v1, 6, v0", "    s_nop 1",
           "    v_readfirstlane_b32 s101, v1"] + [f"    s_mov_b32 s{88 + k}, 0" for k in range(NMARK)]
    post = f"""    s_waitcnt vmcnt(0) lgkmcnt(0)
    s_memrealtime s[84:85]
    s_memtime s[86:87]
    s_load_dwordx2 s[78:79], s[0:1], 96
    s_lshl_b32 s100, s2, 4
    s_add_u32 s100, s100, s101
    s_lshl_b32 s100, s100, 6
    s_add_u32 s100, s100, {STAMP_OFF + ki * 0x80000}
    s_mov_b64 exec, 1
    s_waitcnt lgkmcnt(0)
    v_mov_b32 v1, s100
    v_mov_b32 v4, s80
    v_mov_b32 v5, s84
    v_mov_b32 v6, s82
    v_mov_b32 v7, s86
    global_store_dwordx4 v1, v[4:7], s[78:79]""".split("\n")
    for g in range(3):
        post += [f"    v_mov_b32 v{8 + 4 * g + k}, s{88 + 4 * g + k}" for k in range(4)]
        post += [f"    global_store_dwordx4 v1, v[{8 + 4 * g}:{11 + 4 * g}], s[78:79] offset:{16 + 16 * g}"]
    post += ["    s_endpgm"]
    out = list(pre)
    for ln in L:
        if ln.strip() == "s_endpgm":
            out += post
        elif ln.strip().startswith("; MARK"):
            k = int(ln.strip()[6:])
            out += ["    s_memtime s[76:77]", "    s_waitcnt lgkmcnt(0)", f"    s_mov_b32 s{88 + k}, s76"]
        else:
            out.append(ln)
    return out

def build(opts=None):
    opts = opts or {}
    ks = [("k1_kernel", k1.gen_k1(opts.get("st1", ""), **opts.get("k1", {})), k1.LDS_K1, 768),
          ("k2_kernel", k2.gen_k2(opts.get("st2", ""), **opts.get("k2", {})), k2.LDS_K2, 768),
          ("k3_kernel", k3.gen_k3(opts.get("st3", ""), **opts.get("k3", {})), k3.LDS_K3, 256)]
    if opts.get("k2", {}).get("fused", True):
        ks = ks[:2]
    head = open("cdna_kernels/%s.s.ref" % NAME).read().split("; Override launch")[0]
    out = head
    for i in range(opts.get("pre_empty", 0)):
        out += f"; @launch kernel=empty_kernel grid=(256,1,1) block=(512,1,1) lds=0\n"
    for n, _, lds, blk in [ks[i] for i in opts.get("order", range(len(ks)))]:
        out += f"; @launch kernel={n} grid=(256,1,1) block=({blk},1,1) lds={lds}\n"
    for i in range(opts.get("empty", 0)):
        out += f"; @launch kernel=empty_kernel grid=(256,1,1) block=(512,1,1) lds=0\n"
    out += '.amdgcn_target "amdgcn-amd-amdhsa--gfx950"\n.text\n'
    descs = ""
    if opts.get("empty", 0) or opts.get("pre_empty", 0):
        ks.append(("empty_kernel", (["    s_endpgm"], 8, 16), 0, 512))
    for ki, (n, (L, nv, ns), lds, blk) in enumerate(ks):
        if opts.get("stamp"):
            L = stamp(L, ki)
            ns = 102; nv = max(nv, 24)
        t, d, nn = kernel_text(n, L, nv, ns)
        print(f"{n}: {len(L)} lines, vgpr {nv}, nops inserted {nn}", file=sys.stderr)
        out += t
        descs += ".p2align 6\n" + d
    out += 'K2_text_end:\n.section .rodata,"a"\n.p2align 6\nK_desc:\n' + descs
    return out
if __name__ == "__main__":
    path = sys.argv[1] if len(sys.argv) > 1 else "cdna_kernels/%s.s" % NAME
    opts = eval(sys.argv[2]) if len(sys.argv) > 2 else {}
    open(path, "w").write(build(opts))
```

```python
from asmlib import *
from layout import *
import math

XS = 12288
WSZ = 8192
NR = 5
XB = 0
WB = NR * XS
STAT = WB + NR * WSZ
QIMG = STAT + 4 * 384
QP = 144
HIMG = QIMG + 96 * QP
HP = 208
LDS_K1 = HIMG + 64 * HP


def srd(a, d, lo, hi, size, off=0):
    if off:
        a(f"s_add_u32 s{d}, s{lo}, {off}")
        a(f"s_addc_u32 s{d + 1}, s{hi}, 0")
    else:
        a(f"s_mov_b32 s{d}, s{lo}")
        a(f"s_mov_b32 s{d + 1}, s{hi}")
    a(f"s_mov_b32 s{d + 2}, {size}")
    a(f"s_mov_b32 s{d + 3}, 0x20000")


def bf16r(a, d, x):
    a(f"v_cvt_pk_bf16_f32 v{d}, v{x}, v{x}")
    a(f"v_and_b32 v{d}, 0xffff0000, v{d}")


def gen_k1(st="", pf1=True, lprio=3, NPRE=4, pfc=2):
    a = Asm()
    V = Regs('v', 1)
    sT, sRB, sCB, sW = 16, 17, 18, 19
    SX, SW, SW2, SQ, SH, SKV = 20, 24, 28, 32, 36, 40
    sKC, sOX, sOW, sMX, sMW, sT0, sT1, sRH, sCK = 44, 45, 46, 47, 48, 49, 50, 51, 52
    t0, t1, t2, t3 = [V.alloc() for _ in range(4)]
    vI, vG = V.alloc(), V.alloc()
    ones = V.alloc(4, 4)
    ql, qg, hl, hg = [V.alloc() for _ in range(4)]
    base = V.n
    vXa = [V.alloc() for _ in range(2)]
    vWa, vPa, vQw = V.alloc(), V.alloc(), V.alloc()
    XF = [[V.alloc(4, 4) for _ in range(6)] for _ in range(2)]
    WF = [[V.alloc(4, 4) for _ in range(2)] for _ in range(2)]
    acc = [V.alloc(4, 4) for _ in range(3)]
    cs = V.alloc(4, 4)
    tmp = V.alloc(16, 4)
    nv = V.n
    V.n = base
    vXo = [V.alloc() for _ in range(3)]
    vWo = [V.alloc() for _ in range(2)]
    vSw, vHw, vGa, vPf = [V.alloc() for _ in range(4)]
    vSa = [V.alloc(), V.alloc()]
    vHa = [V.alloc() for _ in range(6)]
    SF = [V.alloc(16, 4) for _ in range(2)]
    GR = [V.alloc(4, 4) for _ in range(2)]
    SU = [V.alloc(4, 4) for _ in range(2)]
    lt = V.alloc(16, 4)
    hx = V.alloc(12, 4)
    hG = V.alloc(48, 4)
    nv = max(nv, V.n)

    a(f"""
    s_cmp_ge_u32 s2, 256
    s_cbranch_scc1 K1_end
    s_load_dwordx8 s[4:11], s[0:1], 0
    s_load_dwordx2 s[14:15], s[0:1], 96
    s_load_dwordx2 s[68:69], s[0:1], 48
    v_lshrrev_b32 v{t0}, 6, v0
    v_and_b32 v0, 63, v0
    s_and_b32 s{sT}, s2, 7
    v_readfirstlane_b32 s{sW}, v{t0}
    s_lshl_b32 s{sT}, s{sT}, 5
    s_lshr_b32 s{sRB}, s2, 3
    s_add_u32 s{sT}, s{sT}, s{sRB}
    s_cmp_ge_u32 s{sT}, 242
    s_cbranch_scc1 K1_zero
    s_mul_i32 s{sRB}, s{sT}, 745
    s_lshr_b32 s{sRB}, s{sRB}, 13
    s_mul_i32 s{sCB}, s{sRB}, 11
    s_sub_u32 s{sCB}, s{sT}, s{sCB}
    s_and_b32 s{sCK}, s{sW}, 3
    s_lshr_b32 s{sRH}, s{sW}, 2
    s_cmp_lt_u32 s{sW}, 8
    s_cbranch_scc1 K1_comp
    """)

    def store_addrs():
        a(f"""
        v_lshrrev_b32 v{t0}, 3, v0
        v_and_b32 v{t1}, 7, v0
        s_lshl_b32 s{sT0}, s{sW}, 3
        v_add_u32 v{t0}, s{sT0}, v{t0}
        v_mul_u32_u24 v{ql}, {QP}, v{t0}
        v_lshl_add_u32 v{ql}, v{t1}, 4, v{ql}
        v_add_u32 v{ql}, {QIMG}, v{ql}
        s_mul_i32 s{sT1}, s{sRB}, 96
        v_add_u32 v{t0}, s{sT1}, v{t0}
        v_mul_u32_u24 v{qg}, 1280, v{t0}
        v_lshl_add_u32 v{qg}, v{t1}, 4, v{qg}
        s_lshl_b32 s{sT0}, s{sCB}, 7
        v_add_u32 v{qg}, s{sT0}, v{qg}
        s_lshl_b32 s{sT0}, s{sCB}, 2
        s_add_u32 s{sT0}, s{sT0}, s{sCK}
        s_mul_i32 s{sT1}, s{sT0}, 205
        s_lshr_b32 s{sT1}, s{sT1}, 10
        s_mul_i32 s53, s{sT1}, 5
        s_sub_u32 s53, s{sT0}, s53
        s_mul_i32 s54, s{sRB}, 3
        s_add_u32 s54, s54, s{sRH}
        s_lshl_b32 s{sT1}, s{sT1}, 6
        s_add_u32 s{sT1}, s{sT1}, s54
        s_mul_i32 s{sT1}, s{sT1}, {LUNIT}
        s_lshl_b32 s53, s53, 10
        s_add_u32 s{sT1}, s{sT1}, s53
        s_cmp_ge_u32 s54, 64
        s_cselect_b32 s{sT1}, 0x40000000, s{sT1}
        v_lshl_add_u32 v{hg}, v0, 4, s{sT1}
        v_lshlrev_b32 v{t0}, 1, v{vG}
        v_mov_b32 v{t1}, {GLUT}
        v_lshrrev_b32 v{t0}, v{t0}, v{t1}
        v_xor_b32 v{t0}, v{t0}, v0
        v_and_b32 v{t0}, 3, v{t0}
        v_lshrrev_b32 v{t1}, 2, v0
        s_lshl_b32 s{sT0}, s{sCK}, 4
        v_add_u32 v{t1}, s{sT0}, v{t1}
        v_mul_u32_u24 v{hl}, {HP}, v{t1}
        v_lshl_add_u32 v{hl}, v{t0}, 4, v{hl}
        s_lshl_b32 s{sT0}, s{sRH}, 6
        s_add_u32 s{sT0}, s{sT0}, {HIMG}
        v_add_u32 v{hl}, s{sT0}, v{hl}
        """)

    def final_store(d):
        a.wait_all(vm=False)
        a("s_barrier")
        a.ds(f"ds_read_b128 {v(d, 4)}, v{ql}", "a")
        a.ds(f"ds_read_b128 {v(d + 4, 4)}, v{hl}", "b")
        a.wait(lg="a")
        a(f"buffer_store_dwordx4 {v(d, 4)}, v{qg}, s[{SQ}:{SQ + 3}], 0 offen {st}")
        a.wait(lg="b")
        a(f"buffer_store_dwordx4 {v(d + 4, 4)}, v{hg}, s[{SH}:{SH + 3}], 0 offen {st}")
        a("s_endpgm")

    a(f"""
    s_setprio {lprio}
    v_lshrrev_b32 v{t0}, 3, v0
    v_and_b32 v{t1}, 7, v0
    s_mul_i32 s{sT0}, s{sCK}, 24
    v_add_u32 v{t2}, s{sT0}, v{t0}
    v_bfe_u32 v{t3}, v{t2}, 1, 3
    v_xor_b32 v{t3}, v{t3}, v{t1}
    s_mul_i32 s{sT1}, s{sRB}, 96
    v_add_u32 v{t2}, s{sT1}, v{t2}
    v_mul_u32_u24 v{t2}, 1280, v{t2}
    v_lshl_add_u32 v{vXo[0]}, v{t3}, 4, v{t2}
    v_xor_b32 v{vXo[1]}, 64, v{vXo[0]}
    v_add_u32 v{vXo[1]}, 10240, v{vXo[1]}
    v_add_u32 v{vXo[2]}, 20480, v{vXo[0]}
    s_mul_i32 s{sMX}, s{sCK}, 3072
    s_cmp_eq_u32 s{sCB}, 10
    s_cbranch_scc1 K1_lkv
    """)

    def issue(stg, role):
        slot = stg % NR
        tag = f"st{stg}"
        a(f"s_lshl_b32 s{sOX}, s{sKC}, 7")
        a(f"s_add_u32 m0, s{sMX}, {XB + slot * XS}")
        a(f"s_mul_i32 s{sOW}, s{sKC}, {81920 if role == 'Q' else 2560}")
        for e in range(3):
            a.vmem(f"buffer_load_dwordx4 v{vXo[e]}, s[{SX}:{SX + 3}], s{sOX} offen lds", tag)
            if e < 2:
                a(f"s_add_u32 m0, s{sMX}, {XB + slot * XS + 1024 * (e + 1)}")
            else:
                a(f"s_add_u32 m0, s{sMW}, {slot * WSZ}")
            a(f"s_add_u32 s{sKC}, s{sKC}, 1" if e == 0 else "s_nop 0")
        a.vmem(f"buffer_load_dwordx4 v{vWo[0]}, s[{SW}:{SW + 3}], s{sOW} offen lds", tag)
        a(f"s_add_u32 m0, s{sMW}, {slot * WSZ + (1024 if role == 'Q' else 4096)}")
        a(f"s_cmp_eq_u32 s{sKC}, 10")
        if role == 'Q':
            a.vmem(f"buffer_load_dwordx4 v{vWo[1]}, s[{SW}:{SW + 3}], s{sOW} offen lds", tag)
        else:
            a.vmem(f"buffer_load_dwordx4 v{vWo[0]}, s[{SW2}:{SW2 + 3}], s{sOW} offen lds", tag)
        a(f"s_cselect_b32 s{sKC}, 0, s{sKC}")

    def loader(role):
        a.lg, a.vm = [], []
        for i in range(NPRE):
            issue(i, role)
        a(f"""
        v_and_b32 v{vI}, 15, v0
        v_lshrrev_b32 v{vG}, 4, v0
        s_mul_i32 s{sT0}, s{sCK}, 24
        v_add_u32 v{t0}, s{sT0}, v{vI}
        v_bfe_u32 v{t1}, v{t0}, 1, 3
        v_xor_b32 v{t1}, v{t1}, v{vG}
        v_lshlrev_b32 v{t0}, 7, v{t0}
        v_lshl_add_u32 v{vSa[0]}, v{t1}, 4, v{t0}
        v_xor_b32 v{vSa[1]}, 64, v{vSa[0]}
        """)
        for i in range(4):
            a(f"v_mov_b32 v{ones + i}, 0x3f803f80")

        def late_setup():
            a(f"""
            v_lshrrev_b32 v{t0}, 2, v{vI}
            v_cmp_eq_u32 s[56:57], v{t0}, v{vG}
            v_xor_b32 v{t0}, 2, v{t0}
            v_cmp_eq_u32 s[58:59], v{t0}, v{vG}
            v_cmp_gt_u32 vcc, 8, v{vI}
            s_and_b64 s[58:59], s[58:59], vcc
            s_or_b64 s[60:61], s[56:57], s[58:59]
            v_add_u32 v{t0}, 16, v{vI}
            v_cndmask_b32 v{t0}, v{vI}, v{t0}, s[58:59]
            s_mul_i32 s{sT0}, s{sCK}, 96
            s_add_u32 s{sT0}, s{sT0}, {STAT}
            v_lshl_add_u32 v{vSw}, v{t0}, 2, s{sT0}
            v_and_b32 v{t0}, 3, v{vI}
            v_cmp_eq_u32 s[62:63], 1, v{t0}
            v_cmp_eq_u32 s[64:65], 2, v{t0}
            v_cmp_eq_u32 s[66:67], 3, v{t0}
            """)
            if role != 'Q':
                return
            srd(a, SQ, 14, 15, 2621440, WS_Q)
            srd(a, SH, 14, 15, 2621440, WS_HT)
            a(f"""
            s_add_u32 s{sT0}, s{sT0}, 768
            v_mov_b32 v{vGa}, s{sT0}
            v_lshrrev_b32 v{t1}, 2, v{vI}
            s_mul_i32 s{sT0}, s{sCK}, 24
            v_add_u32 v{t1}, s{sT0}, v{t1}
            v_bfe_u32 v{t2}, v{vI}, 1, 1
            v_lshl_add_u32 v{t2}, v{vG}, 1, v{t2}
            v_and_b32 v{t3}, 1, v{vI}
            v_lshlrev_b32 v{t3}, 3, v{t3}
            """)
            for n in range(6):
                a(f"""
                v_add_u32 v{lt}, {4 * n}, v{t1}
                v_bfe_u32 v{lt + 1}, v{lt}, 1, 3
                v_xor_b32 v{lt + 1}, v{lt + 1}, v{t2}
                v_lshl_add_u32 v{lt}, v{lt}, 7, v{t3}
                v_lshl_add_u32 v{vHa[n]}, v{lt + 1}, 4, v{lt}
                """)
            a(f"""
            s_mul_i32 s{sT0}, s{sCK}, 48
            s_add_u32 s{sT0}, s{sT0}, {HIMG}
            v_mul_u32_u24 v{vHw}, {HP}, v0
            v_add_u32 v{vHw}, s{sT0}, v{vHw}
            """)
            store_addrs()

        def prefetch_w1():
            a(f"""
            v_mul_u32_u24 v{t0}, 205, v0
            v_lshrrev_b32 v{t0}, 10, v{t0}
            v_mul_u32_u24 v{t1}, 5, v{t0}
            v_sub_u32 v{t1}, v0, v{t1}
            v_mul_u32_u24 v{t0}, 3456, v{t0}
            v_lshl_add_u32 v{vPf}, v{t1}, 7, v{t0}
            s_and_b32 s{sT0}, s2, 7
            s_mul_i32 s{sT0}, s{sT0}, 27
            s_lshr_b32 s{sT0}, s{sT0}, 3
            s_lshl_b32 s{sT0}, s{sT0}, 7
            s_lshr_b32 s{sT1}, s2, 3
            s_lshl_b32 s{sT1}, s{sT1}, 2
            s_add_u32 s{sT1}, s{sT1}, s{sCK}
            s_mul_i32 s{sT1}, s{sT1}, {16 * 3456}
            s_add_u32 s70, s{sT0}, s{sT1}
            s_add_u32 s71, s70, {8 * 3456}
            """)
            srd(a, 72, 68, 69, 2048 * 3456)
            a("s_mov_b32 exec_hi, 0xff")
            a.vmem(f"buffer_load_dword v{t2}, v{vPf}, s[72:75], s70 offen", "pf")
            a.vmem(f"buffer_load_dword v{t3}, v{vPf}, s[72:75], s71 offen", "pf")
            a("s_mov_b32 exec_hi, -1")

        late_setup()
        for i in range(10):
            a.wait(vm=f"st{i}")
            a("s_barrier")
            if i in (0, 1, 2, 4, 6, 8, 9):
                a.cmt("MARK%d" % {0: 2, 1: 3, 2: 4, 4: 5, 6: 6, 8: 7, 9: 8}[i])
            if i + NPRE < 10:
                issue(i + NPRE, role)
            f = SF[i % 2]
            for blk in range(2):
                for ks in range(2):
                    a.ds(f"ds_read_b128 {v(f + 8 * blk + 4 * ks, 4)}, v{vSa[blk ^ ks]} offset:{XB + (i % NR) * XS + blk * 1024}", f"s{i}")
            if i == 9 and role == 'Q':
                for n in range(6):
                    a.ds(f"ds_read_b64_tr_b16 {v(hx + 2 * n, 2)}, v{vHa[n]} offset:{XB + (9 % NR) * XS}", "hx")

            def stat_mm(i):
                f = SF[i % 2]
                for ks in range(2):
                    for blk in range(2):
                        x = v(f + 8 * blk + 4 * ks, 4)
                        z = i == 0 and ks == 0
                        a(f"v_mfma_f32_16x16x32_bf16 {v(GR[blk], 4)}, {x}, {x}, {'0' if z else v(GR[blk], 4)}")
                        a(f"v_mfma_f32_16x16x32_bf16 {v(SU[blk], 4)}, {v(ones, 4)}, {x}, {'0' if z else v(SU[blk], 4)}")
            if i > 0:
                stat_mm(i - 1)
            if i == 10 - NPRE and pf1:
                prefetch_w1()
            a.wait(lg=f"s{i}")
        stat_mm(9)
        su, sq = [lt + 12, lt + 13], [lt + 14, lt + 15]
        for blk in range(2):
            a(f"v_cndmask_b32 v{sq[blk]}, v{GR[blk]}, v{GR[blk] + 1}, s[62:63]")
            a(f"v_cndmask_b32 v{sq[blk]}, v{sq[blk]}, v{GR[blk] + 2}, s[64:65]")
            a(f"v_cndmask_b32 v{sq[blk]}, v{sq[blk]}, v{GR[blk] + 3}, s[66:67]")
        a(f"v_mov_b32_dpp v{su[1]}, v{SU[1]} row_ror:8 row_mask:0xf bank_mask:0xf")
        a(f"v_mov_b32_dpp v{su[0]}, v{sq[1]} row_ror:8 row_mask:0xf bank_mask:0xf")
        m, e_, mb, r1, m2, x1, x2, r2, A1, B1, G, H = [lt + i for i in range(12)]
        a(f"""
        v_cndmask_b32 v{m}, v{SU[0]}, v{su[1]}, s[58:59]
        v_cndmask_b32 v{e_}, v{sq[0]}, v{su[0]}, s[58:59]
        v_mul_f32 v{m}, {f32(1.0 / 640)}, v{m}
        v_mul_f32 v{e_}, {f32(1.0 / 640)}, v{e_}
        v_fma_f32 v{e_}, -v{m}, v{m}, v{e_}
        v_max_f32 v{e_}, 0, v{e_}
        """)
        bf16r(a, x1, e_)
        bf16r(a, mb, m)
        a(f"v_add_f32 v{x1}, {f32(1e-5)}, v{x1}")
        bf16r(a, x1, x1)
        a(f"v_sqrt_f32 v{x1}, v{x1}")
        a(f"v_sub_f32 v{m2}, v{m}, v{mb}")
        bf16r(a, x1, x1)
        a(f"v_rcp_f32 v{r1}, v{x1}")
        a("s_mov_b64 exec, s[60:61]")
        a(f"v_mul_f32 v{B1}, -v{mb}, v{r1}")
        if role == 'Q':
            c = f32(math.log2(math.e) / math.sqrt(20.0))
            a(f"v_mul_f32 v{A1}, {c}, v{r1}")
            a(f"v_mul_f32 v{G}, {c}, v{B1}")
            a.ds(f"ds_write_b32 v{vSw}, v{A1}")
            a.ds(f"ds_write_b32 v{vSw}, v{G} offset:384")
        else:
            a.ds(f"ds_write_b32 v{vSw}, v{r1}")
            a.ds(f"ds_write_b32 v{vSw}, v{B1} offset:384")
            a.wait_all(vm=False)
            a("s_barrier")
            a("s_endpgm")
            return
        a(f"v_mul_f32 v{x2}, v{e_}, v{r1}")
        a(f"v_mul_f32 v{m2}, v{m2}, v{r1}")
        a(f"v_mul_f32 v{x2}, v{x2}, v{r1}")
        a.wait_all(vm=False)
        a("s_barrier")
        bf16r(a, x2, x2)
        bf16r(a, m2, m2)
        a(f"v_add_f32 v{x2}, {f32(1e-5)}, v{x2}")
        bf16r(a, x2, x2)
        a(f"v_sqrt_f32 v{x2}, v{x2}")
        a(f"v_sub_f32 v{H}, v{B1}, v{m2}")
        bf16r(a, x2, x2)
        a(f"v_rcp_f32 v{r2}, v{x2}")
        a(f"v_mul_f32 v{G}, v{r1}, v{r2}")
        a(f"v_mul_f32 v{H}, v{H}, v{r2}")
        a.ds(f"ds_write_b32 v{vSw}, v{G} offset:768")
        a.ds(f"ds_write_b32 v{vSw}, v{H} offset:1152")
        a("s_mov_b64 exec, -1")
        ux = SF[0]
        assert SF[1] == SF[0] + 16
        for k in range(12):
            a(f"v_lshlrev_b32 v{ux + 2 * k}, 16, v{hx + k}")
            a(f"v_and_b32 v{ux + 2 * k + 1}, 0xffff0000, v{hx + k}")
        a.wait_all(vm=False)
        for n in range(6):
            a.ds(f"ds_read_b128 {v(hG + 4 * n, 4)}, v{vGa} offset:{16 * n}", f"g{n}")
            a.ds(f"ds_read_b128 {v(hG + 24 + 4 * n, 4)}, v{vGa} offset:{384 + 16 * n}", f"g{n}")
        for n in range(6):
            a.wait(lg=f"g{n}")
            for j in range(4):
                a(f"v_fma_f32 v{ux + 4 * n + j}, v{ux + 4 * n + j}, v{hG + 4 * n + j}, v{hG + 24 + 4 * n + j}")
            a(f"v_cvt_pk_bf16_f32 v{hx + 2 * n}, v{ux + 4 * n}, v{ux + 4 * n + 1}")
            a(f"v_cvt_pk_bf16_f32 v{hx + 2 * n + 1}, v{ux + 4 * n + 2}, v{ux + 4 * n + 3}")
            if n % 2:
                a.ds(f"ds_write_b128 v{vHw}, {v(hx + 2 * n - 2, 4)} offset:{8 * (n - 1)}")
        final_store(lt)

    a(f"""
    v_bfe_u32 v{t3}, v{t0}, 1, 1
    v_lshlrev_b32 v{t3}, 2, v{t3}
    v_xor_b32 v{t3}, v{t3}, v{t1}
    s_lshl_b32 s{sT0}, s{sCK}, 4
    v_add_u32 v{t2}, s{sT0}, v{t0}
    v_mul_u32_u24 v{t2}, 1280, v{t2}
    v_lshl_add_u32 v{t2}, v{t3}, 4, v{t2}
    s_lshl_b32 s{sT0}, s{sCB}, 7
    v_add_u32 v{vWo[0]}, s{sT0}, v{t2}
    v_xor_b32 v{vWo[1]}, 32, v{vWo[0]}
    v_add_u32 v{vWo[1]}, 10240, v{vWo[1]}
    s_lshl_b32 s{sMW}, s{sCK}, 11
    s_add_u32 s{sMW}, s{sMW}, {WB}
    s_add_u32 s{sKC}, s{sCB}, 1
    s_cmp_eq_u32 s{sKC}, 10
    s_cselect_b32 s{sKC}, 0, s{sKC}
    s_waitcnt lgkmcnt(0)
    """)
    srd(a, SX, 4, 5, 2621440)
    srd(a, SW, 6, 7, 819200)
    loader('Q')

    a.label("K1_lkv")
    a(f"""
    v_lshrrev_b32 v{t0}, 2, v0
    v_and_b32 v{t1}, 3, v0
    v_bfe_u32 v{t3}, v{t0}, 3, 1
    v_lshlrev_b32 v{t3}, 1, v{t3}
    v_xor_b32 v{t3}, v{t3}, v{t1}
    s_lshl_b32 s{sT0}, s{sCK}, 4
    v_add_u32 v{t0}, s{sT0}, v{t0}
    v_mul_u32_u24 v{t0}, 40, v{t0}
    v_lshl_add_u32 v{vWo[0]}, v{t3}, 4, v{t0}
    s_lshl_b32 s{sMW}, s{sCK}, 10
    s_add_u32 s{sMW}, s{sMW}, {WB}
    s_mov_b32 s{sKC}, 0
    s_waitcnt lgkmcnt(0)
    """)
    srd(a, SX, 4, 5, 2621440)
    srd(a, SW, 8, 9, 25600)
    srd(a, SW2, 10, 11, 25600)
    loader('K')

    a.label("K1_comp")
    if pfc:
        a("s_getpc_b64 s[70:71]")
        a.label("K1_pc")
        a(f"""
        s_lshl_b32 s{sT0}, s{sW}, 13
        v_lshl_add_u32 v{t0}, v0, 7, s{sT0}
        v_min_u32 v{t0}, K2_text_end-k1_kernel-4, v{t0}
        s_sub_u32 s72, s70, K1_pc-k1_kernel
        s_subb_u32 s73, s71, 0
        global_load_dword v{tmp + 15}, v{t0}, s[72:73]
        """)
        if pfc > 1:
            a("s_getpc_b64 s[70:71]")
            a("s_add_u32 s70, s70, K_desc@rel32@lo+4")
            a("s_addc_u32 s71, s71, K_desc@rel32@hi+12")
            a(f"v_mov_b32 v{t0}, 64")
            a(f"global_load_dword v{tmp + 14}, v{t0}, s[70:71]")
    a(f"""
    v_and_b32 v{vI}, 15, v0
    v_lshrrev_b32 v{vG}, 4, v0
    v_lshrrev_b32 v{t0}, 1, v{vI}
    v_xor_b32 v{t0}, v{t0}, v{vG}
    s_mul_i32 s{sT0}, s{sRH}, {48 * 128}
    v_lshlrev_b32 v{t1}, 7, v{vI}
    v_add_u32 v{t1}, s{sT0}, v{t1}
    v_lshl_add_u32 v{vXa[0]}, v{t0}, 4, v{t1}
    v_xor_b32 v{vXa[1]}, 64, v{vXa[0]}
    v_lshrrev_b32 v{t0}, 2, v{vI}
    v_lshl_add_u32 v{t0}, v{vG}, 3, v{t0}
    v_bfe_u32 v{t1}, v{vI}, 1, 1
    v_and_b32 v{t2}, 1, v{vG}
    v_lshlrev_b32 v{t2}, 1, v{t2}
    s_cmp_eq_u32 s{sCB}, 10
    s_cbranch_scc1 K1_ckv
    """)

    def reads(i, role):
        slot = i % NR
        b = i % 2
        ksd, hd = (4096, 512) if role == 'Q' else (2048, 256)
        for ks in range(2):
            for h in range(2):
                a.ds(f"ds_read_b64_tr_b16 {v(WF[b][ks] + 2 * h, 2)}, v{vWa} offset:{slot * WSZ + ks * ksd + h * hd}")
            for r in range(3):
                a.ds(f"ds_read_b128 {v(XF[b][ks * 3 + r], 4)}, v{vXa[ks]} offset:{XB + slot * XS + r * 2048}")

    def compute(i, role):
        b = i % 2
        for ks in range(2):
            first = (i == 0 and ks == 0)
            for r in range(4):
                d = acc[r] if r < 3 else cs
                x = XF[b][ks * 3 + r] if r < 3 else ones
                w = WF[b][ks]
                A, B = (x, w) if role == 'V' else (w, x)
                c = "0" if first else v(d, 4)
                a(f"v_mfma_f32_16x16x32_bf16 {v(d, 4)}, {v(A, 4)}, {v(B, 4)}, {c}")

    def mainloop(role):
        a.lg, a.vm = [], []
        for i in range(10):
            a("s_barrier")
            if i in (0, 1, 2, 4, 6, 8, 9):
                a.cmt("MARK%d" % {0: 2, 1: 3, 2: 4, 4: 5, 6: 6, 8: 7, 9: 8}[i])
            reads(i, 'Q' if role == 'Q' else 'K')
            if i > 0:
                compute(i - 1, role)
            a.wait_all(vm=False)
        compute(9, role)
        a("s_barrier")

    def set_ones():
        for i in range(4):
            a(f"v_mov_b32 v{ones + i}, 0x3f803f80")

    pa = tmp
    o = tmp + 8

    def scale_qk(i):
        a.wait(lg=f"pa{i}")
        for j in range(4):
            a(f"v_mul_f32 v{acc[i] + j}, v{acc[i] + j}, v{pa + 2 * i}")
        for j in range(4):
            a(f"v_fmac_f32 v{acc[i] + j}, v{cs + j}, v{pa + 2 * i + 1}")
        a(f"v_cvt_pk_bf16_f32 v{o + 2 * i}, v{acc[i]}, v{acc[i] + 1}")
        a(f"v_cvt_pk_bf16_f32 v{o + 2 * i + 1}, v{acc[i] + 2}, v{acc[i] + 3}")

    def read_pa():
        for i in range(3):
            a.ds(f"ds_read_b32 v{pa + 2 * i}, v{vPa} offset:{i * 64}", f"pa{i}")
            a.ds(f"ds_read_b32 v{pa + 2 * i + 1}, v{vPa} offset:{384 + i * 64}", f"pa{i}")

    a(f"""
    v_bfe_u32 v{t3}, v{vI}, 3, 1
    v_lshl_or_b32 v{t2}, v{t3}, 2, v{t2}
    s_lshl_b32 s{sT0}, s{sCK}, 1
    v_add_u32 v{t1}, s{sT0}, v{t1}
    v_xor_b32 v{t1}, v{t1}, v{t2}
    v_lshlrev_b32 v{t0}, 7, v{t0}
    v_lshl_add_u32 v{t0}, v{t1}, 4, v{t0}
    v_add_u32 v{t0}, {WB}, v{t0}
    v_and_b32 v{t1}, 1, v{vI}
    v_lshl_add_u32 v{vWa}, v{t1}, 3, v{t0}
    s_mul_i32 s{sT0}, s{sRH}, {48 * 4}
    s_add_u32 s{sT0}, s{sT0}, {STAT}
    v_lshl_add_u32 v{vPa}, v{vI}, 2, s{sT0}
    s_mul_i32 s{sT0}, s{sRH}, {48 * QP}
    s_lshl_b32 s{sT1}, s{sCK}, 5
    s_add_u32 s{sT0}, s{sT0}, s{sT1}
    s_add_u32 s{sT0}, s{sT0}, {QIMG}
    v_mul_u32_u24 v{t0}, {QP}, v{vI}
    v_lshl_add_u32 v{t0}, v{vG}, 3, v{t0}
    v_add_u32 v{vQw}, s{sT0}, v{t0}
    """)
    store_addrs()
    set_ones()
    a("s_waitcnt lgkmcnt(0)")
    srd(a, SQ, 14, 15, 2621440, WS_Q)
    srd(a, SH, 14, 15, 2621440, WS_HT)
    mainloop('Q')
    read_pa()
    for i in range(3):
        scale_qk(i)
        a.ds(f"ds_write_b64 v{vQw}, {v(o + 2 * i, 2)} offset:{i * 16 * QP}")
    final_store(XF[0][0])

    a.label("K1_ckv")
    a(f"""
    s_and_b32 s{sT0}, s{sCK}, 1
    s_lshl_b32 s{sT0}, s{sT0}, 1
    v_add_u32 v{t1}, s{sT0}, v{t1}
    v_xor_b32 v{t1}, v{t1}, v{t2}
    v_lshlrev_b32 v{t0}, 6, v{t0}
    v_lshl_add_u32 v{t0}, v{t1}, 4, v{t0}
    s_lshr_b32 s{sT0}, s{sCK}, 1
    s_lshl_b32 s{sT0}, s{sT0}, 12
    s_add_u32 s{sT0}, s{sT0}, {WB}
    v_add_u32 v{t0}, s{sT0}, v{t0}
    v_and_b32 v{t1}, 1, v{vI}
    v_lshl_add_u32 v{vWa}, v{t1}, 3, v{t0}
    s_waitcnt lgkmcnt(0)
    """)
    set_ones()
    srd(a, SKV, 14, 15, KV_BYTES, WS_KV)

    def tb_off(i, sd, stile, st_):
        a(f"""
        s_mul_i32 s{sT0}, s{sRB}, 6
        s_mul_i32 s{sT1}, s{sRH}, 3
        s_add_u32 s{sT0}, s{sT0}, s{sT1}
        s_add_u32 s{sT0}, s{sT0}, {i}
        s_lshr_b32 s{sT1}, s{sT0}, 2
        s_mul_i32 s{sd}, s{sT1}, 6144
        s_cmp_ge_u32 s{sT1}, 32
        s_cselect_b32 s{sd}, 0x40000000, s{sd}
        s_bfe_u32 s{sT1}, s{sT0}, 0x10001
        s_mul_i32 s{sT1}, s{sT1}, s{stile}
        s_add_u32 s{sd}, s{sd}, s{sT1}
        s_and_b32 s{sT1}, s{sT0}, 1
        s_mul_i32 s{sT1}, s{sT1}, s{st_}
        s_add_u32 s{sd}, s{sd}, s{sT1}
        """)

    a(f"s_cmp_ge_u32 s{sCK}, 2")
    a("s_cbranch_scc1 K1_v")
    a(f"""
    s_mul_i32 s{sT0}, s{sRH}, {48 * 4}
    s_add_u32 s{sT0}, s{sT0}, {STAT}
    v_lshl_add_u32 v{vPa}, v{vI}, 2, s{sT0}
    v_lshrrev_b32 v{t1}, 1, v{vG}
    v_lshl_add_u32 v{t1}, v{t1}, 5, v{vI}
    v_and_b32 v{t2}, 1, v{vG}
    v_lshlrev_b32 v{t2}, 3, v{t2}
    v_lshl_add_u32 v{t1}, v{t1}, 4, v{t2}
    v_lshlrev_b32 v{t2}, 8, v{vG}
    v_lshl_add_u32 v{t2}, v{vI}, 3, v{t2}
    v_add_u32 v{t2}, 2048, v{t2}
    v_cmp_le_u32 vcc, 2, v{vG}
    v_cndmask_b32 v{t2}, v{t2}, v{ones}, vcc
    s_mov_b32 s54, 512
    s_mov_b32 s55, 128
    s_cmp_eq_u32 s{sCK}, 0
    s_cselect_b64 vcc, -1, 0
    s_cselect_b32 s54, 1024, s54
    s_cselect_b32 s55, 256, s55
    v_cndmask_b32 v{t1}, v{t2}, v{t1}, vcc
    v_cmp_eq_u32 s[56:57], 1, v{vG}
    s_andn2_b64 s[56:57], s[56:57], vcc
    v_mov_b32 v{t2}, 0x3f80
    v_mov_b32 v{t3}, 0
    """)
    for i in range(3):
        tb_off(i, 58 + i, 54, 55)
    mainloop('K')
    read_pa()
    for i in range(3):
        scale_qk(i)
        a(f"v_cndmask_b32 v{o + 2 * i}, v{o + 2 * i}, v{t2}, s[56:57]")
        a(f"v_cndmask_b32 v{o + 2 * i + 1}, v{o + 2 * i + 1}, v{t3}, s[56:57]")
        a(f"buffer_store_dwordx2 {v(o + 2 * i, 2)}, v{t1}, s[{SKV}:{SKV + 3}], s{58 + i} offen {st}")
    a("s_endpgm")

    a.label("K1_v")
    a(f"""
    s_mul_i32 s{sT0}, s{sRH}, {48 * 4}
    s_add_u32 s{sT0}, s{sT0}, {STAT}
    v_lshl_add_u32 v{vPa}, v{vG}, 4, s{sT0}
    v_lshrrev_b32 v{t1}, 1, v{vG}
    v_mul_u32_u24 v{t1}, 24, v{t1}
    v_add_u32 v{t1}, v{t1}, v{vI}
    s_sub_u32 s{sT0}, s{sCK}, 2
    s_lshl_b32 s{sT0}, s{sT0}, 4
    v_add_u32 v{t3}, s{sT0}, v{vI}
    v_add_u32 v{t1}, s{sT0}, v{t1}
    v_and_b32 v{t2}, 1, v{vG}
    v_lshlrev_b32 v{t2}, 3, v{t2}
    v_lshl_add_u32 v{t1}, v{t1}, 4, v{t2}
    v_add_u32 v{t1}, 3072, v{t1}
    v_cmp_le_u32 vcc, 24, v{t3}
    v_cndmask_b32 v{t1}, v{t1}, v{ones}, vcc
    v_cmp_le_u32 s[56:57], 20, v{t3}
    v_cmp_eq_u32 vcc, 20, v{t3}
    v_cndmask_b32 v{t3}, 0, v{ones}, vcc
    s_mov_b32 s54, 768
    s_mov_b32 s55, {6144 + 1536}
    """)
    for i in range(3):
        tb_off(i, 58 + i, 54, 55)
    mainloop('V')
    pv = XF[0][0]
    for i in range(3):
        a.ds(f"ds_read_b128 {v(pv + 8 * i, 4)}, v{vPa} offset:{i * 64}", f"pa{i}")
        a.ds(f"ds_read_b128 {v(pv + 8 * i + 4, 4)}, v{vPa} offset:{384 + i * 64}", f"pa{i}")
    for i in range(3):
        a.wait(lg=f"pa{i}")
        for j in range(4):
            a(f"v_mul_f32 v{acc[i] + j}, v{acc[i] + j}, v{pv + 8 * i + j}")
        for j in range(4):
            a(f"v_fmac_f32 v{acc[i] + j}, v{cs + j}, v{pv + 8 * i + 4 + j}")
        a(f"v_cvt_pk_bf16_f32 v{o + 2 * i}, v{acc[i]}, v{acc[i] + 1}")
        a(f"v_cvt_pk_bf16_f32 v{o + 2 * i + 1}, v{acc[i] + 2}, v{acc[i] + 3}")
        a(f"v_cndmask_b32 v{o + 2 * i}, v{o + 2 * i}, v{t3}, s[56:57]")
        a(f"v_cndmask_b32 v{o + 2 * i + 1}, v{o + 2 * i + 1}, v{t3}, s[56:57]")
        a(f"buffer_store_dwordx2 {v(o + 2 * i, 2)}, v{t1}, s[{SKV}:{SKV + 3}], s{58 + i} offen {st}")
    a("s_endpgm")
    a.label("K1_zero")
    a(f"""
    s_cmp_lg_u32 s{sT}, 242
    s_cbranch_scc1 K1_end
    s_lshl_b32 s{sT0}, s{sW}, 10
    v_lshl_add_u32 v{t0}, v0, 4, s{sT0}
    s_waitcnt lgkmcnt(0)
    """)
    srd(a, SKV, 14, 15, 8192, WS_FLAG)
    for i in range(4):
        a(f"v_mov_b32 v{ones + i}, 0")
    a(f"buffer_store_dwordx4 {v(ones, 4)}, v{t0}, s[{SKV}:{SKV + 3}], 0 offen")
    a.label("K1_end")
    a("s_endpgm")
    return a.L, nv, 76
```

```python
from asmlib import *
from layout import *

USZ = 9216
RING = 3 * USZ


class Engine:
    def __init__(self, a, V, sW4, sBase, sT, sL, sTmp):
        self.a = a
        self.sW4, self.sBase, self.sT, self.sL, self.sTmp = sW4, sBase, sT, sL, sTmp
        self.oT = [V.alloc() for _ in range(4)]
        self.oL = [V.alloc(), V.alloc()]
        self.aT32 = [V.alloc(), V.alloc()]
        self.aT16 = [V.alloc() for _ in range(4)]
        self.aL32 = [V.alloc(), V.alloc()]
        self.aL16 = V.alloc()
        self.t = [V.alloc() for _ in range(4)]
        self.C32 = [[V.alloc(16, 4) for _ in range(2)] for _ in range(2)]
        self.C16 = [V.alloc(4, 4) for _ in range(4)]
        self.T32 = [[V.alloc(4, 4) for _ in range(2)] for _ in range(2)]
        self.L32 = [[V.alloc(4, 4) for _ in range(2)] for _ in range(2)]
        self.T16 = [V.alloc(4, 4) for _ in range(4)]
        self.L16 = V.alloc(4, 4)
        self.n_issued = 0
        self.mpat = None

    def dma_addrs_T(self, pitch, sCol):
        a = self.a
        t0, t1, t2, _ = self.t
        a(f"""
        v_lshrrev_b32 v{t0}, 3, v0
        v_and_b32 v{t1}, 7, v0
        v_bfe_u32 v{t2}, v{t0}, 1, 1
        v_lshlrev_b32 v{t2}, 2, v{t2}
        v_xor_b32 v{t1}, v{t1}, v{t2}
        v_mul_u32_u24 v{t0}, {pitch}, v{t0}
        v_lshl_add_u32 v{t0}, v{t1}, 4, v{t0}
        v_add_u32 v{self.oT[0]}, s{sCol}, v{t0}
        v_xor_b32 v{self.oT[1]}, 32, v{self.oT[0]}
        v_add_u32 v{self.oT[1]}, {8 * pitch}, v{self.oT[1]}
        v_add_u32 v{self.oT[2]}, {16 * pitch}, v{self.oT[0]}
        v_add_u32 v{self.oT[3]}, {16 * pitch}, v{self.oT[1]}
        """)

    def dma_addrs_L(self):
        self.a(f"v_lshlrev_b32 v{self.oL[0]}, 4, v0")
        self.a(f"v_add_u32 v{self.oL[1]}, 4096, v{self.oL[0]}")

    def lds_addrs(self):
        a = self.a
        t0, t1, t2, t3 = self.t
        I, G = self.T16[0], self.T16[0] + 1
        H, R = self.T16[0] + 2, self.T16[0] + 3
        a(f"""
        v_and_b32 v{I}, 15, v0
        v_lshrrev_b32 v{G}, 4, v0
        v_lshrrev_b32 v{H}, 5, v0
        v_and_b32 v{R}, 31, v0
        v_lshrrev_b32 v{t0}, 2, v{I}
        v_and_b32 v{t3}, 1, v{I}
        v_lshl_add_u32 v{t3}, v{t3}, 3, s{self.sBase}
        v_lshl_add_u32 v{t1}, v{H}, 3, v{t0}
        v_lshl_add_u32 v{self.aT32[0]}, v{t1}, 7, v{t3}
        v_lshl_add_u32 v{t1}, v{G}, 3, v{t0}
        v_lshl_add_u32 v{self.aT16[0]}, v{t1}, 7, v{t3}
        v_bfe_u32 v{t1}, v{I}, 3, 1
        v_lshlrev_b32 v{t1}, 2, v{t1}
        v_bfe_u32 v{t2}, v{I}, 1, 1
        v_and_b32 v{t3}, 1, v{G}
        v_lshl_add_u32 v{t0}, v{t3}, 1, v{t2}
        v_lshl_or_b32 v{self.aL16}, v{H}, 1, v{t1}
        v_xor_b32 v{t0}, v{t0}, v{self.aL16}
        v_lshl_add_u32 v{self.aT32[0]}, v{t0}, 4, v{self.aT32[0]}
        v_xor_b32 v{self.aT32[1]}, 64, v{self.aT32[0]}
        v_lshl_or_b32 v{self.aL16}, v{t3}, 1, v{t1}
        v_xor_b32 v{t0}, v{t2}, v{self.aL16}
        v_lshl_add_u32 v{self.aT16[0]}, v{t0}, 4, v{self.aT16[0]}
        v_xor_b32 v{self.aT16[1]}, 32, v{self.aT16[0]}
        v_xor_b32 v{self.aT16[2]}, 64, v{self.aT16[0]}
        v_xor_b32 v{self.aT16[3]}, 96, v{self.aT16[0]}
        s_add_u32 s{self.sTmp}, s{self.sBase}, 4096
        v_mov_b32 v{t3}, {GLUT}
        v_bfe_u32 v{t0}, v{I}, 2, 2
        v_lshlrev_b32 v{t0}, 1, v{t0}
        v_lshrrev_b32 v{t0}, v{t0}, v{t3}
        v_and_b32 v{t0}, 3, v{t0}
        v_xor_b32 v{t1}, v{t0}, v{H}
        v_lshl_add_u32 v{t2}, v{R}, 6, s{self.sTmp}
        v_lshl_add_u32 v{self.aL32[0]}, v{t1}, 4, v{t2}
        v_xor_b32 v{self.aL32[1]}, 32, v{self.aL32[0]}
        v_xor_b32 v{t1}, v{t0}, v{G}
        v_lshl_add_u32 v{t2}, v{I}, 6, s{self.sTmp}
        v_lshl_add_u32 v{self.aL16}, v{t1}, 4, v{t2}
        v_add_u32 v{self.aL16}, 4096, v{self.aL16}
        """)

    def ops_T(self, n, ST, stepT, mod=""):
        a = self.a
        o = (n % 3) * USZ

        def T(r):
            a(f"s_add_u32 m0, s{self.sBase}, {o + r * 1024}")
            a("s_nop 0")
            a.vmem(f"buffer_load_dwordx4 v{self.oT[r]}, s[{ST}:{ST + 3}], s{self.sT} offen {mod} lds", f"u{n}")
            if r == 3:
                a(f"s_add_u32 s{self.sT}, s{self.sT}, {stepT}")
        return [lambda r=r: T(r) for r in range(4)]

    def ops_L(self, n, SL, stepL, mod=""):
        a = self.a
        o = (n % 3) * USZ

        def L(r):
            if r == 0:
                a(f"s_add_u32 m0, s{self.sBase}, {o + 4096}")
                a("s_nop 0")
            if r < 4:
                a.vmem(f"buffer_load_dwordx4 v{self.oL[0]}, s[{SL}:{SL + 3}], s{self.sL} offen offset:{r * 1024} {mod} lds", f"u{n}")
            else:
                a(f"s_add_u32 m0, s{self.sBase}, {o + 8192}")
                a("s_nop 0")
                a.vmem(f"buffer_load_dwordx4 v{self.oL[1]}, s[{SL}:{SL + 3}], s{self.sL} offen {mod} lds", f"u{n}")
                a(f"s_add_u32 s{self.sL}, s{self.sL}, {stepL}")
        return [lambda r=r: L(r) for r in range(5)]

    def issue_ops(self, ST, SL, stepT, stepL, modT="", modL=""):
        n = self.n_issued
        self.n_issued += 1
        return self.ops_T(n, ST, stepT, modT) + self.ops_L(n, SL, stepL, modL)

    def issue(self, *args, **kw):
        for op in self.issue_ops(*args, **kw):
            op()

    def rdT32(self, n, ks, b):
        o = (n % 3) * USZ
        for h in range(2):
            self.a.ds(f"ds_read_b64_tr_b16 {v(self.T32[ks][b] + 2 * h, 2)}, v{self.aT32[b]} offset:{o + ks * 2048 + h * 512}",
                      f"T{ks}{b}_{n}")

    def rdL32(self, n, ks, b):
        o = (n % 3) * USZ
        self.a.ds(f"ds_read_b128 {v(self.L32[ks][b], 4)}, v{self.aL32[ks]} offset:{o + b * 2048}", f"L{ks}{b}_{n}")

    def rdT16(self, n, q):
        o = (n % 3) * USZ
        for h in range(2):
            self.a.ds(f"ds_read_b64_tr_b16 {v(self.T16[q] + 2 * h, 2)}, v{self.aT16[q]} offset:{o + h * 512}", f"t{q}_{n}")

    def rdL16(self, n):
        o = (n % 3) * USZ
        self.a.ds(f"ds_read_b128 {v(self.L16, 4)}, v{self.aL16} offset:{o}", f"l_{n}")

    def first_reads(self, n):
        self.a.wait(vm=f"u{n}")
        for ks in range(2):
            self.rdT32(n, ks, 0)
            self.rdL32(n, ks, 0)
            self.rdL32(n, ks, 1)
            self.rdT32(n, ks, 1)
        self.rdL16(n)
        for q in range(4):
            self.rdT16(n, q)

    def unit(self, n, t_is_a, zero, has_next, issue_fn):
        a = self.a
        dm = issue_fn() if issue_fn else []
        cntr = [0]

        def mm(T, L, C, k, z, tags):
            a.wait(lg=tags)
            A, B = (T, L) if t_is_a else (L, T)
            op = "v_mfma_f32_32x32x16_bf16" if k == 16 else "v_mfma_f32_16x16x32_bf16"
            hi = self.mpat and self.mpat[cntr[0] % len(self.mpat)] == '1'
            cntr[0] += 1
            if hi:
                a("s_setprio 1")
            a(f"{op} {v(C, k)}, {v(A, 4)}, {v(B, 4)}, {'0' if z else v(C, k)}")
            if hi:
                a("s_setprio 0")

        def d(k=1):
            for _ in range(k):
                if dm:
                    a.wait(lg=[f"t3_{n}"])
                    dm.pop(0)()
        nx = n + 1
        for ks in range(2):
            z = zero and ks == 0
            mm(self.T32[ks][0], self.L32[ks][0], self.C32[0][0], 16, z, [f"T{ks}0_{n}", f"L{ks}0_{n}"])
            if ks:
                d()
            mm(self.T32[ks][0], self.L32[ks][1], self.C32[0][1], 16, z, [f"L{ks}1_{n}"])
            if has_next:
                if ks == 0:
                    a.wait(vm=f"u{nx}")
                self.rdT32(nx, ks, 0)
            mm(self.T32[ks][1], self.L32[ks][0], self.C32[1][0], 16, z, [f"T{ks}1_{n}"])
            if has_next:
                self.rdL32(nx, ks, 0)
            d()
            mm(self.T32[ks][1], self.L32[ks][1], self.C32[1][1], 16, z, [])
            if has_next:
                self.rdL32(nx, ks, 1)
                self.rdT32(nx, ks, 1)
            d()
        for q in range(4):
            mm(self.T16[q], self.L16, self.C16[q], 4, zero, [f"t{q}_{n}", f"l_{n}"])
            if has_next:
                if q == 3:
                    self.rdL16(nx)
                self.rdT16(nx, q)
            d()
        while dm:
            d()

    def dump(self, t_is_a, pitch):
        a = self.a
        t0, t1, t2, t3 = self.t
        a(f"""
        v_and_b32 v{t0}, 31, v0
        v_lshrrev_b32 v{t1}, 5, v0
        v_mul_u32_u24 v{t0}, {pitch}, v{t0}
        v_lshl_add_u32 v{t0}, v{t1}, 4, v{t0}
        v_add_u32 v{t0}, s{self.sBase}, v{t0}
        v_and_b32 v{t2}, 15, v0
        v_lshrrev_b32 v{t1}, 4, v0
        v_mul_u32_u24 v{t2}, {pitch}, v{t2}
        v_lshl_add_u32 v{t2}, v{t1}, 4, v{t2}
        v_add_u32 v{t2}, s{self.sBase}, v{t2}
        """)
        for tb in range(2):
            for lb in range(2):
                col, row = (lb, tb) if t_is_a else (tb, lb)
                for g in range(4):
                    a.ds(f"ds_write_b128 v{t0}, {v(self.C32[tb][lb] + 4 * g, 4)} offset:{col * 32 * pitch + row * 128 + g * 32}")
        for q in range(4):
            off = (64 * pitch + q * 64) if t_is_a else (q * 16 * pitch + 256)
            a.ds(f"ds_write_b128 v{t2}, {v(self.C16[q], 4)} offset:{off}")
```

```python
from asmlib import *
from layout import *
import math

XS = 12288
WSZ = 8192
NR = 5
XB = 0
WB = NR * XS
STAT = WB + NR * WSZ
QIMG = STAT + 4 * 384
QP = 144
HIMG = QIMG + 96 * QP
HP = 208
LDS_K1 = HIMG + 64 * HP


def srd(a, d, lo, hi, size, off=0):
    if off:
        a(f"s_add_u32 s{d}, s{lo}, {off}")
        a(f"s_addc_u32 s{d + 1}, s{hi}, 0")
    else:
        a(f"s_mov_b32 s{d}, s{lo}")
        a(f"s_mov_b32 s{d + 1}, s{hi}")
    a(f"s_mov_b32 s{d + 2}, {size}")
    a(f"s_mov_b32 s{d + 3}, 0x20000")


def bf16r(a, d, x):
    a(f"v_cvt_pk_bf16_f32 v{d}, v{x}, v{x}")
    a(f"v_and_b32 v{d}, 0xffff0000, v{d}")


def gen_k1(st="", pf1=False, lprio=3, NPRE=4, pfc=0, late=7, merged=False):
    a = Asm()
    done = "s_branch P1_done" if merged else "s_endpgm"
    if merged:
        st = "sc1"
    V = Regs('v', 1)
    sT, sRB, sCB, sW = 16, 17, 18, 19
    SX, SW, SW2, SQ, SH, SKV = 20, 24, 28, 32, 36, 40
    sKC, sOX, sOW, sMX, sMW, sT0, sT1, sRH, sCK = 44, 45, 46, 47, 48, 49, 50, 51, 52
    t0, t1, t2, t3 = [V.alloc() for _ in range(4)]
    vI, vG = V.alloc(), V.alloc()
    ones = V.alloc(4, 4)
    ql, qg, hl, hg = [V.alloc() for _ in range(4)]
    base = V.n
    vXa, vWb, vEx, vEp = [V.alloc() for _ in range(4)]
    vWa, vPa, vQw = V.alloc(), V.alloc(), V.alloc()
    cHa = [V.alloc(), V.alloc()]
    cHw, cGa = V.alloc(), V.alloc()
    chx = V.alloc(4, 4)
    XF = [[V.alloc(4, 4) for _ in range(3)] for _ in range(2)]
    WF = [[V.alloc(4, 4) for _ in range(2)] for _ in range(2)]
    acc = [V.alloc(4, 4) for _ in range(3)]
    cs = V.alloc(4, 4)
    oth = [V.alloc(4, 4) for _ in range(4)]
    big = V.alloc(24, 4)
    tmp = V.alloc(16, 4)
    nv = V.n
    V.n = base
    vXo = [V.alloc() for _ in range(3)]
    vWo = [V.alloc() for _ in range(2)]
    vSw, vHw, vGa, vPf = [V.alloc() for _ in range(4)]
    vSa = [V.alloc(), V.alloc()]
    vHa = [V.alloc() for _ in range(2)]
    SF = [V.alloc(16, 4) for _ in range(2)]
    GR = [V.alloc(4, 4) for _ in range(2)]
    SU = [V.alloc(4, 4) for _ in range(2)]
    lt = V.alloc(16, 4)
    hx = V.alloc(4, 4)
    hG = V.alloc(16, 4)
    nv = max(nv, V.n)

    a(f"""
    s_cmp_ge_u32 s2, 256
    s_cbranch_scc1 K1_end
    s_load_dwordx8 s[4:11], s[0:1], 0
    s_load_dwordx2 s[14:15], s[0:1], 96
    s_load_dwordx2 s[68:69], s[0:1], 48
    s_load_dwordx2 s[12:13], s[0:1], 88
    v_lshrrev_b32 v{t0}, 6, v0
    v_and_b32 v0, 63, v0
    s_and_b32 s{sT}, s2, 7
    v_readfirstlane_b32 s{sW}, v{t0}
    s_mul_i32 s{sT}, s{sT}, 121
    s_add_u32 s{sCB}, s{sT}, 124
    s_lshr_b32 s{sCB}, s{sCB}, 2
    s_add_u32 s{sT}, s{sT}, 3
    s_lshr_b32 s{sT}, s{sT}, 2
    s_lshr_b32 s{sRB}, s2, 3
    s_add_u32 s{sT}, s{sT}, s{sRB}
    s_cmp_ge_u32 s{sT}, s{sCB}
    s_cbranch_scc1 K1_zero
    s_mul_i32 s{sRB}, s{sT}, 745
    s_lshr_b32 s{sRB}, s{sRB}, 13
    s_mul_i32 s{sCB}, s{sRB}, 11
    s_sub_u32 s{sCB}, s{sT}, s{sCB}
    s_and_b32 s{sCK}, s{sW}, 3
    s_lshr_b32 s{sRH}, s{sW}, 2
    s_cmp_lt_u32 s{sW}, 8
    s_cbranch_scc1 K1_comp
    """)

    def store_addrs():
        a(f"""
        v_lshrrev_b32 v{t0}, 3, v0
        v_and_b32 v{t1}, 7, v0
        s_lshl_b32 s{sT0}, s{sW}, 3
        v_add_u32 v{t0}, s{sT0}, v{t0}
        v_mul_u32_u24 v{ql}, {QP}, v{t0}
        v_lshl_add_u32 v{ql}, v{t1}, 4, v{ql}
        v_add_u32 v{ql}, {QIMG}, v{ql}
        s_mul_i32 s{sT1}, s{sRB}, 96
        v_add_u32 v{t0}, s{sT1}, v{t0}
        v_mul_u32_u24 v{qg}, 1280, v{t0}
        v_lshl_add_u32 v{qg}, v{t1}, 4, v{qg}
        s_lshl_b32 s{sT0}, s{sCB}, 7
        v_add_u32 v{qg}, s{sT0}, v{qg}
        s_lshl_b32 s{sT0}, s{sCB}, 2
        s_add_u32 s{sT0}, s{sT0}, s{sCK}
        s_mul_i32 s{sT1}, s{sT0}, 205
        s_lshr_b32 s{sT1}, s{sT1}, 10
        s_mul_i32 s53, s{sT1}, 5
        s_sub_u32 s53, s{sT0}, s53
        s_mul_i32 s54, s{sRB}, 3
        s_add_u32 s54, s54, s{sRH}
        s_lshl_b32 s{sT1}, s{sT1}, 6
        s_add_u32 s{sT1}, s{sT1}, s54
        s_mul_i32 s{sT1}, s{sT1}, {LUNIT}
        s_lshl_b32 s53, s53, 10
        s_add_u32 s{sT1}, s{sT1}, s53
        s_cmp_ge_u32 s54, 64
        s_cselect_b32 s{sT1}, 0x40000000, s{sT1}
        v_lshl_add_u32 v{hg}, v0, 4, s{sT1}
        v_lshlrev_b32 v{t0}, 1, v{vG}
        v_mov_b32 v{t1}, {GLUT}
        v_lshrrev_b32 v{t0}, v{t0}, v{t1}
        v_xor_b32 v{t0}, v{t0}, v0
        v_and_b32 v{t0}, 3, v{t0}
        v_lshrrev_b32 v{t1}, 2, v0
        s_lshl_b32 s{sT0}, s{sCK}, 4
        v_add_u32 v{t1}, s{sT0}, v{t1}
        v_mul_u32_u24 v{hl}, {HP}, v{t1}
        v_lshl_add_u32 v{hl}, v{t0}, 4, v{hl}
        s_lshl_b32 s{sT0}, s{sRH}, 6
        s_add_u32 s{sT0}, s{sT0}, {HIMG}
        v_add_u32 v{hl}, s{sT0}, v{hl}
        """)

    def h_addrs(vHa, vHw, vGa, tt):
        a(f"""
        s_lshl_b32 s{sT0}, s{sW}, 5
        s_add_u32 s{sT0}, s{sT0}, {STAT + 768}
        v_mov_b32 v{vGa}, s{sT0}
        v_lshrrev_b32 v{t1}, 2, v{vI}
        s_lshl_b32 s{sT0}, s{sW}, 3
        v_add_u32 v{t1}, s{sT0}, v{t1}
        v_bfe_u32 v{t2}, v{vI}, 1, 1
        v_lshl_add_u32 v{t2}, v{vG}, 1, v{t2}
        v_and_b32 v{t3}, 1, v{vI}
        v_lshlrev_b32 v{t3}, 3, v{t3}
        """)
        for n in range(2):
            a(f"""
            v_add_u32 v{tt}, {4 * n}, v{t1}
            v_bfe_u32 v{tt + 1}, v{tt}, 1, 3
            v_xor_b32 v{tt + 1}, v{tt + 1}, v{t2}
            v_lshl_add_u32 v{tt}, v{tt}, 7, v{t3}
            v_lshl_add_u32 v{vHa[n]}, v{tt + 1}, 4, v{tt}
            """)
        a(f"""
        s_lshl_b32 s{sT0}, s{sW}, 4
        s_add_u32 s{sT0}, s{sT0}, {HIMG}
        v_mul_u32_u24 v{vHw}, {HP}, v0
        v_add_u32 v{vHw}, s{sT0}, v{vHw}
        """)

    def h_read(vHa, hx):
        for n in range(2):
            a.ds(f"ds_read_b64_tr_b16 {v(hx + 2 * n, 2)}, v{vHa[n]} offset:{XB + (9 % NR) * XS}", "hx")

    def h_gh(vGa, hG):
        for n in range(2):
            a.ds(f"ds_read_b128 {v(hG + 4 * n, 4)}, v{vGa} offset:{16 * n}", "gh")
            a.ds(f"ds_read_b128 {v(hG + 8 + 4 * n, 4)}, v{vGa} offset:{384 + 16 * n}", "gh")

    def h_unpack(hx, ux):
        for k in range(4):
            a(f"v_lshlrev_b32 v{ux + 2 * k}, 16, v{hx + k}")
            a(f"v_and_b32 v{ux + 2 * k + 1}, 0xffff0000, v{hx + k}")

    def h_finish(vHw, hx, ux, hG):
        a.wait(lg="gh")
        for j in range(0, 8, 2):
            a(f"v_pk_fma_f32 {v(ux + j, 2)}, {v(ux + j, 2)}, {v(hG + j, 2)}, {v(hG + 8 + j, 2)}")
        for k in range(4):
            a(f"v_cvt_pk_bf16_f32 v{hx + k}, v{ux + 2 * k}, v{ux + 2 * k + 1}")
        a.ds(f"ds_write_b128 v{vHw}, {v(hx, 4)}")

    def final_store(d):
        a.wait_all(vm=False)
        a("s_barrier")
        a.ds(f"ds_read_b128 {v(d, 4)}, v{ql}", "a")
        a.ds(f"ds_read_b128 {v(d + 4, 4)}, v{hl}", "b")
        a.wait(lg="a")
        a(f"buffer_store_dwordx4 {v(d, 4)}, v{qg}, s[{SQ}:{SQ + 3}], 0 offen {st}")
        a.wait(lg="b")
        a(f"buffer_store_dwordx4 {v(d + 4, 4)}, v{hg}, s[{SH}:{SH + 3}], 0 offen {st}")
        a(done)

    a(f"""
    s_setprio {lprio}
    v_lshrrev_b32 v{t0}, 3, v0
    v_and_b32 v{t1}, 7, v0
    s_mul_i32 s{sT0}, s{sCK}, 24
    v_add_u32 v{t2}, s{sT0}, v{t0}
    v_bfe_u32 v{t3}, v{t2}, 1, 3
    v_xor_b32 v{t3}, v{t3}, v{t1}
    s_mul_i32 s{sT1}, s{sRB}, 96
    v_add_u32 v{t2}, s{sT1}, v{t2}
    v_mul_u32_u24 v{t2}, 1280, v{t2}
    v_lshl_add_u32 v{vXo[0]}, v{t3}, 4, v{t2}
    v_xor_b32 v{vXo[1]}, 64, v{vXo[0]}
    v_add_u32 v{vXo[1]}, 10240, v{vXo[1]}
    v_add_u32 v{vXo[2]}, 20480, v{vXo[0]}
    s_mul_i32 s{sMX}, s{sCK}, 3072
    s_cmp_eq_u32 s{sCB}, 10
    s_cbranch_scc1 K1_lkv
    """)

    def issue(stg, role):
        slot = stg % NR
        tag = f"st{stg}"
        a(f"s_lshl_b32 s{sOX}, s{sKC}, 7")
        a(f"s_add_u32 m0, s{sMX}, {XB + slot * XS}")
        a(f"s_mul_i32 s{sOW}, s{sKC}, {81920 if role == 'Q' else 2560}")
        for e in range(3):
            a.vmem(f"buffer_load_dwordx4 v{vXo[e]}, s[{SX}:{SX + 3}], s{sOX} offen lds", tag)
            if e < 2:
                a(f"s_add_u32 m0, s{sMX}, {XB + slot * XS + 1024 * (e + 1)}")
            else:
                a(f"s_add_u32 m0, s{sMW}, {slot * WSZ}")
            a(f"s_add_u32 s{sKC}, s{sKC}, 1" if e == 0 else "s_nop 0")
        a.vmem(f"buffer_load_dwordx4 v{vWo[0]}, s[{SW}:{SW + 3}], s{sOW} offen lds", tag)
        a(f"s_add_u32 m0, s{sMW}, {slot * WSZ + (1024 if role == 'Q' else 4096)}")
        a(f"s_cmp_eq_u32 s{sKC}, 10")
        if role == 'Q':
            a.vmem(f"buffer_load_dwordx4 v{vWo[1]}, s[{SW}:{SW + 3}], s{sOW} offen lds", tag)
        else:
            a.vmem(f"buffer_load_dwordx4 v{vWo[0]}, s[{SW2}:{SW2 + 3}], s{sOW} offen lds", tag)
        a(f"s_cselect_b32 s{sKC}, 0, s{sKC}")

    def loader(role):
        a.lg, a.vm = [], []
        for i in range(NPRE):
            issue(i, role)
        a(f"""
        v_and_b32 v{vI}, 15, v0
        v_lshrrev_b32 v{vG}, 4, v0
        s_mul_i32 s{sT0}, s{sCK}, 24
        v_add_u32 v{t0}, s{sT0}, v{vI}
        v_bfe_u32 v{t1}, v{t0}, 1, 3
        v_xor_b32 v{t1}, v{t1}, v{vG}
        v_lshlrev_b32 v{t0}, 7, v{t0}
        v_lshl_add_u32 v{vSa[0]}, v{t1}, 4, v{t0}
        v_xor_b32 v{vSa[1]}, 64, v{vSa[0]}
        """)
        for i in range(4):
            a(f"v_mov_b32 v{ones + i}, 0x3f803f80")

        def late_setup():
            a(f"""
            v_lshrrev_b32 v{t0}, 2, v{vI}
            v_cmp_eq_u32 s[56:57], v{t0}, v{vG}
            v_xor_b32 v{t0}, 2, v{t0}
            v_cmp_eq_u32 s[58:59], v{t0}, v{vG}
            v_cmp_gt_u32 vcc, 8, v{vI}
            s_and_b64 s[58:59], s[58:59], vcc
            s_or_b64 s[60:61], s[56:57], s[58:59]
            v_add_u32 v{t0}, 16, v{vI}
            v_cndmask_b32 v{t0}, v{vI}, v{t0}, s[58:59]
            s_mul_i32 s{sT0}, s{sCK}, 96
            s_add_u32 s{sT0}, s{sT0}, {STAT}
            v_lshl_add_u32 v{vSw}, v{t0}, 2, s{sT0}
            v_and_b32 v{t0}, 3, v{vI}
            v_cmp_eq_u32 s[62:63], 1, v{t0}
            v_cmp_eq_u32 s[64:65], 2, v{t0}
            v_cmp_eq_u32 s[66:67], 3, v{t0}
            """)
            if role != 'Q':
                return
            srd(a, SQ, 14, 15, 2621440, WS_Q)
            srd(a, SH, 14, 15, 2621440, WS_HT)
            h_addrs(vHa, vHw, vGa, lt)
            store_addrs()

        def prefetch_w1():
            a(f"""
            v_mul_u32_u24 v{t0}, 205, v0
            v_lshrrev_b32 v{t0}, 10, v{t0}
            v_mul_u32_u24 v{t1}, 5, v{t0}
            v_sub_u32 v{t1}, v0, v{t1}
            v_mul_u32_u24 v{t0}, 3456, v{t0}
            v_lshl_add_u32 v{vPf}, v{t1}, 7, v{t0}
            s_and_b32 s{sT0}, s2, 7
            s_mul_i32 s{sT0}, s{sT0}, 27
            s_lshr_b32 s{sT0}, s{sT0}, 3
            s_lshl_b32 s{sT0}, s{sT0}, 7
            s_lshr_b32 s{sT1}, s2, 3
            s_lshl_b32 s{sT1}, s{sT1}, 2
            s_add_u32 s{sT1}, s{sT1}, s{sCK}
            s_mul_i32 s{sT1}, s{sT1}, {16 * 3456}
            s_add_u32 s70, s{sT0}, s{sT1}
            s_add_u32 s71, s70, {8 * 3456}
            """)
            srd(a, 72, 68, 69, 2048 * 3456)
            a("s_mov_b32 exec_hi, 0xff")
            a.vmem(f"buffer_load_dword v{t2}, v{vPf}, s[72:75], s70 offen", "pf")
            a.vmem(f"buffer_load_dword v{t3}, v{vPf}, s[72:75], s71 offen", "pf")
            a("s_mov_b32 exec_hi, -1")

        if late < 0:
            late_setup()
        for i in range(10):
            a.wait(vm=f"st{i}")
            a("s_barrier")
            if i in (0, 1, 5, 9):
                a.cmt("MARK%d" % {0: 2, 1: 3, 5: 5, 9: 8}[i])
            if i + NPRE < 10:
                issue(i + NPRE, role)
            f = SF[i % 2]
            for blk in range(2):
                for ks in range(2):
                    a.ds(f"ds_read_b128 {v(f + 8 * blk + 4 * ks, 4)}, v{vSa[blk ^ ks]} offset:{XB + (i % NR) * XS + blk * 1024}", f"s{i}")
            if i == 9 and role == 'Q':
                h_read(vHa, hx)

            def stat_mm(i):
                f = SF[i % 2]
                for ks in range(2):
                    for blk in range(2):
                        x = v(f + 8 * blk + 4 * ks, 4)
                        z = i == 0 and ks == 0
                        a(f"v_mfma_f32_16x16x32_bf16 {v(GR[blk], 4)}, {x}, {x}, {'0' if z else v(GR[blk], 4)}")
                        a(f"v_mfma_f32_16x16x32_bf16 {v(SU[blk], 4)}, {v(ones, 4)}, {x}, {'0' if z else v(SU[blk], 4)}")
            if i > 0:
                stat_mm(i - 1)
            if i == 8 and merged:
                a("v_mov_b32 v151, 0")
                a.vmem("global_load_dword v150, v151, s[12:13] sc1", "dbg")
            if i == late:
                late_setup()
            if i == 10 - NPRE and pf1:
                prefetch_w1()
            a.wait(lg=f"s{i}")
        stat_mm(9)
        su, sq = [lt + 12, lt + 13], [lt + 14, lt + 15]
        for blk in range(2):
            a(f"v_cndmask_b32 v{sq[blk]}, v{GR[blk]}, v{GR[blk] + 1}, s[62:63]")
            a(f"v_cndmask_b32 v{sq[blk]}, v{sq[blk]}, v{GR[blk] + 2}, s[64:65]")
            a(f"v_cndmask_b32 v{sq[blk]}, v{sq[blk]}, v{GR[blk] + 3}, s[66:67]")
        a(f"v_mov_b32_dpp v{su[1]}, v{SU[1]} row_ror:8 row_mask:0xf bank_mask:0xf")
        a(f"v_mov_b32_dpp v{su[0]}, v{sq[1]} row_ror:8 row_mask:0xf bank_mask:0xf")
        m, e_, mb, r1, m2, x1, x2, r2, A1, B1, G, H = [lt + i for i in range(12)]
        a(f"""
        v_cndmask_b32 v{m}, v{SU[0]}, v{su[1]}, s[58:59]
        v_cndmask_b32 v{e_}, v{sq[0]}, v{su[0]}, s[58:59]
        v_mul_f32 v{m}, {f32(1.0 / 640)}, v{m}
        v_mul_f32 v{e_}, {f32(1.0 / 640)}, v{e_}
        v_fma_f32 v{e_}, -v{m}, v{m}, v{e_}
        v_max_f32 v{e_}, 0, v{e_}
        """)
        bf16r(a, x1, e_)
        bf16r(a, mb, m)
        a(f"v_add_f32 v{x1}, {f32(1e-5)}, v{x1}")
        bf16r(a, x1, x1)
        a(f"v_sqrt_f32 v{x1}, v{x1}")
        a(f"v_sub_f32 v{m2}, v{m}, v{mb}")
        bf16r(a, x1, x1)
        a(f"v_rcp_f32 v{r1}, v{x1}")
        a("s_mov_b64 exec, s[60:61]")
        a(f"v_mul_f32 v{B1}, -v{mb}, v{r1}")
        if role == 'Q':
            c = f32(math.log2(math.e) / math.sqrt(20.0))
            a(f"v_mul_f32 v{A1}, {c}, v{r1}")
            a(f"v_mul_f32 v{G}, {c}, v{B1}")
            a.ds(f"ds_write_b32 v{vSw}, v{A1}")
            a.ds(f"ds_write_b32 v{vSw}, v{G} offset:384")
        else:
            a.ds(f"ds_write_b32 v{vSw}, v{r1}")
            a.ds(f"ds_write_b32 v{vSw}, v{B1} offset:384")
            a.wait_all(vm=False)
            a("s_barrier")
            a(done)
            return
        a(f"v_mul_f32 v{x2}, v{e_}, v{r1}")
        a(f"v_mul_f32 v{m2}, v{m2}, v{r1}")
        a(f"v_mul_f32 v{x2}, v{x2}, v{r1}")
        bf16r(a, x2, x2)
        bf16r(a, m2, m2)
        a(f"v_add_f32 v{x2}, {f32(1e-5)}, v{x2}")
        bf16r(a, x2, x2)
        a(f"v_sqrt_f32 v{x2}, v{x2}")
        a(f"v_sub_f32 v{H}, v{B1}, v{m2}")
        bf16r(a, x2, x2)
        a(f"v_rcp_f32 v{r2}, v{x2}")
        a(f"v_mul_f32 v{G}, v{r1}, v{r2}")
        a(f"v_mul_f32 v{H}, v{H}, v{r2}")
        a.ds(f"ds_write_b32 v{vSw}, v{G} offset:768")
        a.ds(f"ds_write_b32 v{vSw}, v{H} offset:1152")
        a("s_mov_b64 exec, -1")
        a.wait_all(vm=False)
        a("s_barrier")
        h_gh(vGa, hG)
        h_unpack(hx, SF[0])
        h_finish(vHw, hx, SF[0], hG)
        final_store(lt)

    a(f"""
    v_bfe_u32 v{t3}, v{t0}, 1, 1
    v_lshlrev_b32 v{t3}, 2, v{t3}
    v_xor_b32 v{t3}, v{t3}, v{t1}
    s_lshl_b32 s{sT0}, s{sCK}, 4
    v_add_u32 v{t2}, s{sT0}, v{t0}
    v_mul_u32_u24 v{t2}, 1280, v{t2}
    v_lshl_add_u32 v{t2}, v{t3}, 4, v{t2}
    s_lshl_b32 s{sT0}, s{sCB}, 7
    v_add_u32 v{vWo[0]}, s{sT0}, v{t2}
    v_xor_b32 v{vWo[1]}, 32, v{vWo[0]}
    v_add_u32 v{vWo[1]}, 10240, v{vWo[1]}
    s_lshl_b32 s{sMW}, s{sCK}, 11
    s_add_u32 s{sMW}, s{sMW}, {WB}
    s_add_u32 s{sKC}, s{sCB}, 1
    s_cmp_eq_u32 s{sKC}, 10
    s_cselect_b32 s{sKC}, 0, s{sKC}
    s_waitcnt lgkmcnt(0)
    """)
    srd(a, SX, 4, 5, 2621440)
    srd(a, SW, 6, 7, 819200)
    loader('Q')

    a.label("K1_lkv")
    a(f"""
    v_lshrrev_b32 v{t0}, 2, v0
    v_and_b32 v{t1}, 3, v0
    v_bfe_u32 v{t3}, v{t0}, 3, 1
    v_lshlrev_b32 v{t3}, 1, v{t3}
    v_xor_b32 v{t3}, v{t3}, v{t1}
    s_lshl_b32 s{sT0}, s{sCK}, 4
    v_add_u32 v{t0}, s{sT0}, v{t0}
    v_mul_u32_u24 v{t0}, 40, v{t0}
    v_lshl_add_u32 v{vWo[0]}, v{t3}, 4, v{t0}
    s_lshl_b32 s{sMW}, s{sCK}, 10
    s_add_u32 s{sMW}, s{sMW}, {WB}
    s_mov_b32 s{sKC}, 0
    s_waitcnt lgkmcnt(0)
    """)
    srd(a, SX, 4, 5, 2621440)
    srd(a, SW, 8, 9, 25600)
    srd(a, SW2, 10, 11, 25600)
    loader('K')

    a.label("K1_comp")
    if pfc:
        a("s_getpc_b64 s[70:71]")
        a.label("K1_pc")
        a(f"""
        s_lshr_b32 s72, s2, 3
        s_lshl_b32 s72, s72, 3
        s_add_u32 s72, s72, s{sW}
        s_lshl_b32 s72, s72, 8
        s_min_u32 s72, s72, K2_text_end-k1_kernel-256
        s_sub_u32 s70, s70, K1_pc-k1_kernel
        s_subb_u32 s71, s71, 0
        s_add_u32 s70, s70, s72
        s_addc_u32 s71, s71, 0
        s_load_dword s72, s[70:71], 0
        s_load_dword s73, s[70:71], 64
        s_load_dword s74, s[70:71], 128
        s_load_dword s75, s[70:71], 192
        """)
    a(f"""
    v_and_b32 v{vI}, 15, v0
    v_lshrrev_b32 v{vG}, 4, v0
    v_lshrrev_b32 v{t0}, 1, v{vI}
    v_xor_b32 v{t0}, v{t0}, v{vG}
    s_mul_i32 s{sT0}, s{sRH}, {48 * 128}
    v_lshlrev_b32 v{t1}, 7, v{vI}
    v_add_u32 v{t1}, s{sT0}, v{t1}
    v_lshl_add_u32 v{vXa}, v{t0}, 4, v{t1}
    s_and_b32 s55, s{sCK}, 1
    s_lshl_b32 s{sT0}, s55, 6
    v_xor_b32 v{vXa}, s{sT0}, v{vXa}
    s_lshl_b32 s{sT0}, s{sW}, 12
    v_lshl_add_u32 v{vEx}, v0, 4, s{sT0}
    v_xor_b32 v{vEp}, 4096, v{vEx}
    v_lshrrev_b32 v{t0}, 2, v{vI}
    v_lshl_add_u32 v{t0}, v{vG}, 3, v{t0}
    v_bfe_u32 v{t1}, v{vI}, 1, 1
    v_and_b32 v{t2}, 1, v{vG}
    v_lshlrev_b32 v{t2}, 1, v{t2}
    s_cmp_eq_u32 s{sCB}, 10
    s_cbranch_scc1 K1_ckv
    """)

    def reads(i, role):
        slot = i % NR
        b = i % 2
        hd = 512 if role == 'Q' else 256
        out = []
        for h in range(2):
            out.append(f"ds_read_b64_tr_b16 {v(WF[b][0] + 2 * h, 2)}, v{vWa} offset:{slot * WSZ + h * hd}")
        for r in range(3):
            out.append(f"ds_read_b128 {v(XF[b][r], 4)}, v{vXa} offset:{XB + slot * XS + r * 2048}")
        for h in range(2):
            out.append(f"ds_read_b64_tr_b16 {v(WF[b][1] + 2 * h, 2)}, v{vWb} offset:{slot * WSZ + h * hd}")
        return out

    def compute(i, role):
        b = i % 2
        out = []
        for c_ in (1, 0):
            for r in range(4):
                d = oth[r] if c_ else (acc[r] if r < 3 else cs)
                x = XF[b][r] if r < 3 else ones
                w = WF[b][c_]
                A, B = (x, w) if role == 'V' else (w, x)
                out.append(f"v_mfma_f32_16x16x32_bf16 {v(d, 4)}, {v(A, 4)}, {v(B, 4)}, {'0' if i == 0 else v(d, 4)}")
        return out

    def mainloop(role, pre_last=None):
        a.lg, a.vm = [], []
        for i in range(10):
            a("s_barrier")
            if i in (0, 1, 5, 9):
                a.cmt("MARK%d" % {0: 2, 1: 3, 5: 5, 9: 8}[i])
            rd = reads(i, 'Q' if role == 'Q' else 'K')
            mm = compute(i - 1, role) if i > 0 else []
            while rd or mm:
                if mm:
                    a(mm.pop(0))
                if rd:
                    a.ds(rd.pop(0), "r")
            if i == 9 and pre_last:
                pre_last()
            a.wait(lg="r")
        for m_ in compute(9, role):
            a(m_)
        for r in range(4):
            a.ds(f"ds_write_b128 v{vEx}, {v(oth[r], 4)} offset:{1024 * r}")
        a.wait_all(vm=False)
        a("s_barrier")
        for r in (3, 0, 1, 2):
            a.ds(f"ds_read_b128 {v(oth[r], 4)}, v{vEp} offset:{1024 * r}", f"x{r}")

    def merge(r):
        d = acc[r] if r < 3 else cs
        a.wait(lg=f"x{r}")
        for j in range(0, 4, 2):
            a(f"v_pk_add_f32 {v(d + j, 2)}, {v(d + j, 2)}, {v(oth[r] + j, 2)}")

    def set_ones():
        for i in range(4):
            a(f"v_mov_b32 v{ones + i}, 0x3f803f80")

    pa = tmp
    o = tmp + 8

    def scale_qk(i):
        if i == 0:
            merge(3)
        merge(i)
        a.wait(lg=f"pa{i}")
        for j in range(0, 4, 2):
            a(f"v_pk_mul_f32 {v(acc[i] + j, 2)}, {v(acc[i] + j, 2)}, {v(pa + 2 * i, 2)} op_sel_hi:[1,0]")
        for j in range(0, 4, 2):
            a(f"v_pk_fma_f32 {v(acc[i] + j, 2)}, {v(cs + j, 2)}, {v(pa + 2 * i, 2)}, {v(acc[i] + j, 2)} op_sel:[0,1,0]")
        a(f"v_cvt_pk_bf16_f32 v{o + 2 * i}, v{acc[i]}, v{acc[i] + 1}")
        a(f"v_cvt_pk_bf16_f32 v{o + 2 * i + 1}, v{acc[i] + 2}, v{acc[i] + 3}")

    def read_pa():
        for i in range(3):
            a.ds(f"ds_read_b32 v{pa + 2 * i}, v{vPa} offset:{i * 64}", f"pa{i}")
            a.ds(f"ds_read_b32 v{pa + 2 * i + 1}, v{vPa} offset:{384 + i * 64}", f"pa{i}")

    a(f"""
    v_bfe_u32 v{t3}, v{vI}, 3, 1
    v_lshl_or_b32 v{t2}, v{t3}, 2, v{t2}
    s_lshl_b32 s{sT0}, s{sCK}, 1
    v_add_u32 v{t1}, s{sT0}, v{t1}
    v_xor_b32 v{t1}, v{t1}, v{t2}
    v_lshlrev_b32 v{t0}, 7, v{t0}
    v_lshl_add_u32 v{t0}, v{t1}, 4, v{t0}
    v_add_u32 v{t0}, {WB}, v{t0}
    v_and_b32 v{t1}, 1, v{vI}
    v_lshl_add_u32 v{vWa}, v{t1}, 3, v{t0}
    s_lshl_b32 s{sT0}, s55, 12
    v_add_u32 v{vWa}, s{sT0}, v{vWa}
    v_xor_b32 v{vWb}, 32, v{vWa}
    s_mul_i32 s{sT0}, s{sRH}, {48 * 4}
    s_add_u32 s{sT0}, s{sT0}, {STAT}
    v_lshl_add_u32 v{vPa}, v{vI}, 2, s{sT0}
    s_mul_i32 s{sT0}, s{sRH}, {48 * QP}
    s_lshl_b32 s{sT1}, s{sCK}, 5
    s_add_u32 s{sT0}, s{sT0}, s{sT1}
    s_add_u32 s{sT0}, s{sT0}, {QIMG}
    v_mul_u32_u24 v{t0}, {QP}, v{vI}
    v_lshl_add_u32 v{t0}, v{vG}, 3, v{t0}
    v_add_u32 v{vQw}, s{sT0}, v{t0}
    """)
    store_addrs()
    h_addrs(cHa, cHw, cGa, tmp)
    set_ones()
    a("s_waitcnt lgkmcnt(0)")
    srd(a, SQ, 14, 15, 2621440, WS_Q)
    srd(a, SH, 14, 15, 2621440, WS_HT)
    mainloop('Q', lambda: h_read(cHa, chx))
    read_pa()
    h_gh(cGa, big)
    h_unpack(chx, big + 16)
    for i in range(3):
        scale_qk(i)
        a.ds(f"ds_write_b64 v{vQw}, {v(o + 2 * i, 2)} offset:{i * 16 * QP}")
    h_finish(cHw, chx, big + 16, big)
    final_store(big)

    a.label("K1_ckv")
    a(f"""
    s_and_b32 s{sT0}, s{sCK}, 1
    s_lshl_b32 s{sT0}, s{sT0}, 1
    v_add_u32 v{t1}, s{sT0}, v{t1}
    v_xor_b32 v{t1}, v{t1}, v{t2}
    v_lshlrev_b32 v{t0}, 6, v{t0}
    v_lshl_add_u32 v{t0}, v{t1}, 4, v{t0}
    s_lshr_b32 s{sT0}, s{sCK}, 1
    s_lshl_b32 s{sT0}, s{sT0}, 12
    s_add_u32 s{sT0}, s{sT0}, {WB}
    v_add_u32 v{t0}, s{sT0}, v{t0}
    v_and_b32 v{t1}, 1, v{vI}
    v_lshl_add_u32 v{vWa}, v{t1}, 3, v{t0}
    s_lshl_b32 s{sT0}, s55, 11
    v_add_u32 v{vWa}, s{sT0}, v{vWa}
    v_xor_b32 v{vWb}, 32, v{vWa}
    s_waitcnt lgkmcnt(0)
    """)
    set_ones()
    srd(a, SKV, 14, 15, KV_BYTES, WS_KV)

    def tb_off(i, sd, stile, st_):
        a(f"""
        s_mul_i32 s{sT0}, s{sRB}, 6
        s_mul_i32 s{sT1}, s{sRH}, 3
        s_add_u32 s{sT0}, s{sT0}, s{sT1}
        s_add_u32 s{sT0}, s{sT0}, {i}
        s_lshr_b32 s{sT1}, s{sT0}, 2
        s_mul_i32 s{sd}, s{sT1}, 6144
        s_cmp_ge_u32 s{sT1}, 32
        s_cselect_b32 s{sd}, 0x40000000, s{sd}
        s_bfe_u32 s{sT1}, s{sT0}, 0x10001
        s_mul_i32 s{sT1}, s{sT1}, s{stile}
        s_add_u32 s{sd}, s{sd}, s{sT1}
        s_and_b32 s{sT1}, s{sT0}, 1
        s_mul_i32 s{sT1}, s{sT1}, s{st_}
        s_add_u32 s{sd}, s{sd}, s{sT1}
        """)

    a(f"s_cmp_ge_u32 s{sCK}, 2")
    a("s_cbranch_scc1 K1_v")
    a(f"""
    s_mul_i32 s{sT0}, s{sRH}, {48 * 4}
    s_add_u32 s{sT0}, s{sT0}, {STAT}
    v_lshl_add_u32 v{vPa}, v{vI}, 2, s{sT0}
    v_lshrrev_b32 v{t1}, 1, v{vG}
    v_lshl_add_u32 v{t1}, v{t1}, 5, v{vI}
    v_and_b32 v{t2}, 1, v{vG}
    v_lshlrev_b32 v{t2}, 3, v{t2}
    v_lshl_add_u32 v{t1}, v{t1}, 4, v{t2}
    v_lshlrev_b32 v{t2}, 8, v{vG}
    v_lshl_add_u32 v{t2}, v{vI}, 3, v{t2}
    v_add_u32 v{t2}, 2048, v{t2}
    v_cmp_le_u32 vcc, 2, v{vG}
    v_cndmask_b32 v{t2}, v{t2}, v{ones}, vcc
    s_mov_b32 s54, 512
    s_mov_b32 s55, 128
    s_cmp_eq_u32 s{sCK}, 0
    s_cselect_b64 vcc, -1, 0
    s_cselect_b32 s54, 1024, s54
    s_cselect_b32 s55, 256, s55
    v_cndmask_b32 v{t1}, v{t2}, v{t1}, vcc
    v_cmp_eq_u32 s[56:57], 1, v{vG}
    s_andn2_b64 s[56:57], s[56:57], vcc
    v_mov_b32 v{t2}, 0x3f80
    v_mov_b32 v{t3}, 0
    """)
    for i in range(3):
        tb_off(i, 58 + i, 54, 55)
    mainloop('K')
    read_pa()
    for i in range(3):
        scale_qk(i)
        a(f"v_cndmask_b32 v{o + 2 * i}, v{o + 2 * i}, v{t2}, s[56:57]")
        a(f"v_cndmask_b32 v{o + 2 * i + 1}, v{o + 2 * i + 1}, v{t3}, s[56:57]")
        a(f"buffer_store_dwordx2 {v(o + 2 * i, 2)}, v{t1}, s[{SKV}:{SKV + 3}], s{58 + i} offen {st}")
    a(done)

    a.label("K1_v")
    a(f"""
    s_mul_i32 s{sT0}, s{sRH}, {48 * 4}
    s_add_u32 s{sT0}, s{sT0}, {STAT}
    v_lshl_add_u32 v{vPa}, v{vG}, 4, s{sT0}
    v_lshrrev_b32 v{t1}, 1, v{vG}
    v_mul_u32_u24 v{t1}, 24, v{t1}
    v_add_u32 v{t1}, v{t1}, v{vI}
    s_sub_u32 s{sT0}, s{sCK}, 2
    s_lshl_b32 s{sT0}, s{sT0}, 4
    v_add_u32 v{t3}, s{sT0}, v{vI}
    v_add_u32 v{t1}, s{sT0}, v{t1}
    v_and_b32 v{t2}, 1, v{vG}
    v_lshlrev_b32 v{t2}, 3, v{t2}
    v_lshl_add_u32 v{t1}, v{t1}, 4, v{t2}
    v_add_u32 v{t1}, 3072, v{t1}
    v_cmp_le_u32 vcc, 24, v{t3}
    v_cndmask_b32 v{t1}, v{t1}, v{ones}, vcc
    v_cmp_le_u32 s[56:57], 20, v{t3}
    v_cmp_eq_u32 vcc, 20, v{t3}
    v_cndmask_b32 v{t3}, 0, v{ones}, vcc
    s_mov_b32 s54, 768
    s_mov_b32 s55, {6144 + 1536}
    """)
    for i in range(3):
        tb_off(i, 58 + i, 54, 55)
    mainloop('V')
    pv = big
    for i in range(3):
        a.ds(f"ds_read_b128 {v(pv + 8 * i, 4)}, v{vPa} offset:{i * 64}", f"pa{i}")
        a.ds(f"ds_read_b128 {v(pv + 8 * i + 4, 4)}, v{vPa} offset:{384 + i * 64}", f"pa{i}")
    for i in range(3):
        if i == 0:
            merge(3)
        merge(i)
        a.wait(lg=f"pa{i}")
        for j in range(4):
            a(f"v_mul_f32 v{acc[i] + j}, v{acc[i] + j}, v{pv + 8 * i + j}")
        for j in range(4):
            a(f"v_fmac_f32 v{acc[i] + j}, v{cs + j}, v{pv + 8 * i + 4 + j}")
        a(f"v_cvt_pk_bf16_f32 v{o + 2 * i}, v{acc[i]}, v{acc[i] + 1}")
        a(f"v_cvt_pk_bf16_f32 v{o + 2 * i + 1}, v{acc[i] + 2}, v{acc[i] + 3}")
        a(f"v_cndmask_b32 v{o + 2 * i}, v{o + 2 * i}, v{t3}, s[56:57]")
        a(f"v_cndmask_b32 v{o + 2 * i + 1}, v{o + 2 * i + 1}, v{t3}, s[56:57]")
        a(f"buffer_store_dwordx2 {v(o + 2 * i, 2)}, v{t1}, s[{SKV}:{SKV + 3}], s{58 + i} offen {st}")
    a(done)
    a.label("K1_zero")
    a(f"""
    s_cmp_lg_u32 s2, 255
    s_cbranch_scc1 P1_idle
    s_lshl_b32 s{sT0}, s{sW}, 10
    v_lshl_add_u32 v{t0}, v0, 4, s{sT0}
    s_waitcnt lgkmcnt(0)
    """)
    srd(a, SKV, 14, 15, FLAG_BYTES, WS_FLAG)
    assert FLAGA - WS_FLAG == 12288
    for i in range(4):
        a(f"v_mov_b32 v{ones + i}, 0")
    a(f"buffer_store_dwordx4 {v(ones, 4)}, v{t0}, s[{SKV}:{SKV + 3}], 0 offen {st}")
    if merged:
        for i in range(4):
            a(f"v_cmp_le_u32 vcc, {(242 - i + 3) // 4}, v0")
            a(f"v_cndmask_b32 v{XF[0][0] + i}, 0, 1, vcc")
        for k in range(1, 4):
            a(f"s_mov_b32 s{sT1}, {12288 * k}")
            a(f"buffer_store_dwordx4 {v(XF[0][0], 4)}, v{t0}, s[{SKV}:{SKV + 3}], s{sT1} offen {st}")
    if merged:
        a(f"""
        s_waitcnt vmcnt(0)
        s_barrier
        s_cmp_lg_u32 s{sW}, 8
        s_cbranch_scc1 P1_idle
        v_mov_b32 v151, 0
        v_mov_b32 v150, 1
        global_store_dword v151, v150, s[12:13] sc1
        """)
    a.label("P1_idle")
    a(f"""
    s_waitcnt lgkmcnt(0)
    v_lshlrev_b32 v{t0}, 4, v0
    s_and_b32 s{sT0}, s2, 7
    s_mul_i32 s{sT0}, s{sT0}, 27
    s_lshr_b32 s{sT0}, s{sT0}, 3
    s_lshl_b32 s{sT0}, s{sT0}, 7
    s_lshr_b32 s{sT1}, s2, 3
    s_sub_u32 s{sT1}, 31, s{sT1}
    s_mul_i32 s{sT1}, s{sT1}, {512 if merged else 1024}
    s_add_u32 s{sT1}, s{sT1}, s{sW}
    s_mul_i32 s{sT1}, s{sT1}, 3456
    s_add_u32 s{sT0}, s{sT0}, s{sT1}
    s_lshl_b32 m0, s{sW}, 10
    s_mov_b32 exec_hi, 0xff
    """)
    srd(a, 72, 68, 69, 2048 * 3456)
    a.lg, a.vm = [], []
    for n in range(43 if merged else 86):
        a.vmem(f"buffer_load_dwordx4 v{t0}, s[72:75], s{sT0} offen lds", f"p{n}")
        a(f"s_add_u32 s{sT0}, s{sT0}, {12 * 3456}")
        if n >= 12:
            a.wait(vm=f"p{n - 12}")
    a("s_mov_b32 exec_hi, -1")
    a("s_waitcnt vmcnt(0)")
    if not merged:
        a.label("K1_end")
        a("s_endpgm")
        return a.L, nv, 76
    a("s_barrier")

    def cleared(name):
        a("s_mov_b32 s63, 0x40000")
        a.label(name)
        a(f"""
        v_readfirstlane_b32 s{sT0}, v150
        s_cmp_lg_u32 s{sT0}, 0
        s_cbranch_scc1 {name}_x
        global_load_dword v150, v151, s[12:13] sc1
        s_sleep 2
        s_sub_u32 s63, s63, 1
        s_waitcnt vmcnt(0)
        s_cbranch_scc0 {name}
        """)
        a.label(name + "_x")
    def_pos = None
    a(f"""
    s_cmp_lg_u32 s{sW}, 8
    s_cbranch_scc1 P2_entry
    v_mov_b32 v150, 0
    v_mov_b32 v151, 0
    s_waitcnt lgkmcnt(0)
    """)
    cleared("P1_ci")
    a("s_branch P2_entry")
    a.label("K1_end")
    a("s_endpgm")
    a.label("P1_done")
    a(f"""
    s_mov_b64 exec, -1
    v_mov_b32 v151, 0
    s_waitcnt vmcnt(0) lgkmcnt(0)
    s_barrier
    s_cmp_lg_u32 s{sW}, 8
    s_cbranch_scc1 P2_entry
    """)
    cleared("P1_cd")
    a(f"""
    s_lshl_b32 s{sT0}, s{sT}, 2
    s_add_u32 s{sT0}, s{sT0}, {FLAGA}
    v_lshl_add_u32 v151, v0, 10, s{sT0}
    v_mov_b32 v150, 1
    s_mov_b32 exec_hi, 0
    global_store_dword v151, v150, s[14:15] sc1
    s_mov_b32 exec_hi, -1
    """)
    a.label("P2_entry")
    a("s_waitcnt lgkmcnt(0)")
    return a.L, max(nv, 152), 76
```

```python
from asmlib import *
from layout import *
from k1 import srd
from engine import *
import math

KVB = 4 * RING
KVG = 4 * 6144
FLB = KVB + 2 * KVG
LXB = FLB + 256
LDS_K2 = LXB + 2048
RP1 = 272
BIAS = 80 * RP1
NST = 32
QIMG = KVB + 4 * 6144


def rec(r):
    return ((r - 1) % 8) * 6144


def spin_lds(a, name, vaddr, vt, st, want, off=0, nap=1):
    a("s_mov_b32 s63, 0x100000")
    a(f"s_branch {name}_c") if False else None
    a.label(name)
    a(f"""
    ds_read_b32 v{vt}, v{vaddr} offset:{off}
    s_waitcnt lgkmcnt(0)
    v_readfirstlane_b32 s{st}, v{vt}
    s_cmp_ge_u32 s{st}, {want}
    s_cbranch_scc1 {name}_x
    {"s_sleep %d" % nap if nap else ""}
    s_sub_u32 s63, s63, 1
    s_cbranch_scc0 {name}
    """)
    a.label(name + "_x")
    a.lg = []


RP2 = 336


def gen_k2(st="", BARPOS=4, pat="aeeeebeeee2eeee1eeee", eprio=(0, 1, 0, 0),
           fused=True, pf2=True, aprio=(0, 0), mpat=(None, None), nap=4, hs="sc1", hl="", merged=False, deep=1):
    a = Asm()
    sX, sIdx, sI, sJ, sA, sB, sW = 24, 25, 26, 27, 28, 29, 30
    SW1, SWS, SB1 = 12, 16, 20
    sT0, sT1, sP, sQ4 = 31, 32, 33, 34
    if not merged:
        a("""
        s_cmp_ge_u32 s2, 256
        s_cbranch_scc1 K2_end
        s_setprio 3
        v_lshrrev_b32 v1, 6, v0
        v_and_b32 v0, 63, v0
        s_nop 0
        v_readfirstlane_b32 s19, v1
        """)
    a(f"""
    s_load_dwordx2 s[8:9], s[0:1], 96
    s_load_dwordx4 s[4:7], s[0:1], 48
    s_load_dwordx2 s[10:11], s[0:1], 32
    s_load_dwordx2 s[64:65], s[0:1], 0
    s_load_dwordx4 s[68:71], s[0:1], 64
    s_load_dwordx2 s[66:67], s[0:1], 80
    s_mov_b32 s{sW}, s19
    s_and_b32 s{sX}, s2, 7
    s_lshr_b32 s{sIdx}, s2, 3
    s_and_b32 s{sQ4}, s{sW}, 3
    s_and_b32 s{sT0}, s{sIdx}, 3
    s_lshl_b32 s{sI}, s{sX}, 2
    s_add_u32 s{sI}, s{sI}, s{sT0}
    s_lshr_b32 s{sJ}, s{sIdx}, 2
    s_cmp_ge_u32 s{sW}, 8
    s_cbranch_scc1 K2_eng
    """)
    SXX, SB2, SOUT = 40, 44, 52

    def final_pre(R):
        t0, t1, t2, el, eg, b2 = [R + i for i in range(6)]
        xr = R + 8
        srd(a, SXX, 64, 65, 2621440)
        srd(a, SB2, 70, 71, 4096)
        srd(a, SOUT, 66, 67, 2621440)
        a(f"""
        s_mul_i32 s48, s{sI}, {64 * 1280}
        s_mul_i32 s49, s{sJ}, 160
        s_add_u32 s48, s48, s49
        s_lshl_b32 s49, s{sI}, 7
        s_lshl_b32 s56, s{sW}, 6
        v_add_u32 v{t0}, s56, v0
        v_mul_u32_u24 v{t1}, 205, v{t0}
        v_lshrrev_b32 v{t1}, 11, v{t1}
        v_mul_u32_u24 v{t2}, 10, v{t1}
        v_sub_u32 v{t2}, v{t0}, v{t2}
        v_mul_u32_u24 v{el}, {RP2}, v{t1}
        v_lshl_add_u32 v{el}, v{t2}, 5, v{el}
        v_mul_u32_u24 v{eg}, 1280, v{t1}
        v_lshl_add_u32 v{eg}, v{t2}, 4, v{eg}
        v_lshlrev_b32 v{t1}, 1, v{t1}
        """)
        a.vmem(f"buffer_load_dwordx4 {v(xr, 4)}, v{eg}, s[{SXX}:{SXX + 3}], s48 offen", "fx")
        a.vmem(f"buffer_load_ushort v{b2}, v{t1}, s[{SB2}:{SB2 + 3}], s49 offen", "fx")
        a(f"v_add_u32 v{t0}, {2 * RING}, v{el}")

    def final_post(R, P):
        t0, t1, t2, el, eg, b2 = [R + i for i in range(6)]
        xr = R + 8
        a(f"s_cmp_ge_u32 s{sW}, 10")
        a("s_cbranch_scc1 K2_end")
        for w in range(4):
            for k in range(2):
                a.ds(f"ds_read_b128 {v(P + 8 * w + 4 * k, 4)}, v{el if w < 2 else t0} offset:{(w % 2) * RING + 16 * k}", f"e{w}")
        xs = P + 32
        a.wait(vm="fx")
        a(f"v_lshlrev_b32 v{b2}, 16, v{b2}")
        for e in range(4):
            a(f"v_lshlrev_b32 v{xs + 2 * e}, 16, v{xr + e}")
            a(f"v_and_b32 v{xs + 2 * e + 1}, 0xffff0000, v{xr + e}")
        for e in range(8):
            a(f"v_add_f32 v{xs + e}, v{xs + e}, v{b2}")
        for w in range(4):
            a.wait(lg=f"e{w}")
            for e in range(8):
                a(f"v_add_f32 v{xs + e}, v{xs + e}, v{P + 8 * w + e}")
        for e in range(4):
            a(f"v_cvt_pk_bf16_f32 v{xr + e}, v{xs + 2 * e}, v{xs + 2 * e + 1}")
        a(f"buffer_store_dwordx4 {v(xr, 4)}, v{eg}, s[{SOUT}:{SOUT + 3}], s48 offen {st}")
        a("s_endpgm")
    V = Regs('v', 1)
    t0, t1, t2, t3 = [V.alloc() for _ in range(4)]
    vL32, vH = V.alloc(), V.alloc()
    aKa, aKb, aV, aV0, idx = [V.alloc() for _ in range(5)]
    aK0 = V.alloc(2)
    aE, aEp, aF, aFp, aLx, aLxp, aIw, aIr, og, og2 = [V.alloc() for _ in range(10)]
    oKV, aCt, one, cnt = [V.alloc() for _ in range(4)]
    sKV, sKM = 35, 36
    QA = [V.alloc(4, 4), V.alloc(4, 4)]
    QB = [V.alloc(2), V.alloc(2)]
    Ka = V.alloc(4, 4)
    Kb = V.alloc(2)
    V1 = V.alloc(4, 4)
    V2 = V.alloc(4, 4)
    S = [V.alloc(16, 4) for _ in range(3)]
    OO = [V.alloc(16, 4), V.alloc(16, 4)]
    O = OO[0]
    nv = V.n
    a(f"""
    s_lshr_b32 s{sP}, s{sW}, 2
    v_and_b32 v{vL32}, 31, v0
    v_lshrrev_b32 v{vH}, 5, v0
    """)
    iA0 = len(a.L)
    a(f"""
    v_mul_u32_u24 v{t1}, 103, v0
    v_lshrrev_b32 v{t1}, 10, v{t1}
    v_mul_u32_u24 v{t2}, 1120, v{t1}
    v_lshl_add_u32 v{t2}, v0, 4, v{t2}
    v_cmp_le_u32 vcc, 6, v0
    v_lshlrev_b32 v{t3}, 4, v0
    v_add_u32 v{t1}, {7 * 1120 + 1024}, v{t3}
    v_add_u32 v{t3}, {6 * 1120 + 1024}, v{t3}
    v_cndmask_b32 v{t3}, v{t3}, v{t1}, vcc
    s_lshl_b32 s{sT0}, s{sI}, 3
    s_add_u32 s{sT0}, s{sT0}, s{sW}
    s_mul_i32 s{sT0}, s{sT0}, {8 * 1280}
    s_mul_i32 s{sT1}, s{sJ}, 160
    s_add_u32 s{sT0}, s{sT0}, s{sT1}
    s_mul_i32 s{sT1}, s{sW}, 1280
    s_add_u32 m0, s{sT1}, {QIMG}
    s_waitcnt lgkmcnt(0)
    """)
    assert WS_Q == 0
    srd(a, SWS, 8, 9, WS_END)
    iA1 = len(a.L)
    a.vmem(f"buffer_load_dwordx4 v{t2}, s[{SWS}:{SWS + 3}], s{sT0} offen lds", "q")
    a(f"s_add_u32 m0, s{sT1}, {QIMG + 1024}")
    a("s_mov_b64 exec, 0xffff")
    a.vmem(f"buffer_load_dwordx4 v{t3}, s[{SWS}:{SWS + 3}], s{sT0} offen lds", "q")
    a("s_mov_b64 exec, -1")
    a(f"""
    v_lshlrev_b32 v{oKV}, 4, v0
    s_mul_i32 s{sKM}, s{sW}, 768
    s_add_u32 m0, s{sKM}, {KVB + rec(0)}
    s_add_u32 s{sKV}, s{sKM}, {WS_KV}
    s_mov_b32 exec_hi, 0xffff
    """)
    a.vmem(f"buffer_load_dwordx4 v{oKV}, s[{SWS}:{SWS + 3}], s{sKV} offen lds", "q")
    a(f"""
    s_mov_b32 exec_hi, -1
    s_lshl_b32 s{sKM}, s{sKM}, 1
    s_add_u32 s{sKV}, s{sKM}, {WS_KV + 6144}
    s_add_u32 s{sKM}, s{sKM}, {KVB}
    """)

    def kv_ops(g):
        def f0():
            a(f"s_add_u32 m0, s{sKM}, {(g % 4) * 12288}")

        def f1():
            a.vmem(f"buffer_load_dwordx4 v{oKV}, s[{SWS}:{SWS + 3}], s{sKV} offen lds", f"g{g}")

        def f2():
            a("s_mov_b32 exec_hi, 0")
            a.vmem(f"buffer_load_dwordx4 v{oKV}, s[{SWS}:{SWS + 3}], s{sKV} offen offset:1024 lds", f"g{g}")
            a("s_mov_b32 exec_hi, -1")

        def f3():
            a(f"s_add_u32 s{sKV}, s{sKV}, 12288")
        return [f0, f1, f2, f3]
    for g in range(2):
        for f in kv_ops(g):
            f()
    a(f"s_setprio {aprio[0]}")
    if aprio[0] != aprio[1]:
        a(f"s_cmp_lt_u32 s{sW}, 4")
        a("s_cbranch_scc1 K2_ap")
        a(f"s_setprio {aprio[1]}")
        a.label("K2_ap")
    iB0 = len(a.L)
    a(f"""
    v_lshlrev_b32 v{aK0}, 4, v0
    v_add_u32 v{aK0}, {KVB}, v{aK0}
    v_lshlrev_b32 v{aK0 + 1}, 3, v0
    v_add_u32 v{aK0 + 1}, {KVB + 2048}, v{aK0 + 1}
    s_lshl_b32 s{sT0}, s{sP}, 10
    v_add_u32 v{aKa}, s{sT0}, v{aK0}
    s_lshl_b32 s{sT0}, s{sP}, 9
    v_add_u32 v{aKb}, s{sT0}, v{aK0 + 1}
    v_and_b32 v{t1}, 3, v{vL32}
    v_min_u32 v{t1}, 1, v{t1}
    v_add_u32 v{t1}, 20, v{t1}
    v_cmp_le_u32 vcc, 20, v{vL32}
    v_mov_b32 v{t0}, 21
    v_cndmask_b32 v{t0}, v{vL32}, v{t0}, vcc
    v_cmp_le_u32 vcc, 24, v{vL32}
    v_cndmask_b32 v{t0}, v{t0}, v{t1}, vcc
    v_cmp_le_u32 vcc, 28, v{vL32}
    v_xor_b32 v{t1}, 1, v{vH}
    v_cndmask_b32 v{t1}, v{vH}, v{t1}, vcc
    v_mad_u32_u24 v{t0}, v{t1}, 24, v{t0}
    v_lshlrev_b32 v{aV0}, 4, v{t0}
    v_add_u32 v{aV0}, {KVB + 3072}, v{aV0}
    s_mul_i32 s{sT0}, s{sP}, 768
    v_add_u32 v{aV}, s{sT0}, v{aV0}
    v_mov_b32 v{idx}, 0xdddddddd
    """)
    a(f"""
    s_xor_b32 s{sT1}, s{sW}, 4
    s_mul_i32 s{sT0}, s{sW}, 3072
    s_add_u32 s{sT0}, s{sT0}, {KVB}
    v_lshl_add_u32 v{aE}, v0, 4, s{sT0}
    s_mul_i32 s{sT0}, s{sT1}, 3072
    s_add_u32 s{sT0}, s{sT0}, {KVB}
    v_lshl_add_u32 v{aEp}, v0, 4, s{sT0}
    v_mov_b32 v{aIr}, v{aEp}
    v_lshl_add_u32 v{aIw}, v{vL32}, 1, s{sT0}
    v_lshl_add_u32 v{aIw}, v{vH}, 8, v{aIw}
    s_lshl_b32 s{sT0}, s{sW}, 2
    s_add_u32 s{sT0}, s{sT0}, {FLB}
    v_mov_b32 v{aF}, s{sT0}
    v_xor_b32 v{aFp}, 16, v{aF}
    s_lshl_b32 s{sT0}, s{sW}, 8
    s_add_u32 s{sT0}, s{sT0}, {LXB}
    v_lshl_add_u32 v{aLx}, v0, 2, s{sT0}
    s_lshl_b32 s{sT0}, s{sT1}, 8
    s_add_u32 s{sT0}, s{sT0}, {LXB}
    v_lshl_add_u32 v{aLxp}, v0, 2, s{sT0}
    s_mul_i32 s{sT0}, s{sI}, 81920
    s_mul_i32 s{sT1}, s{sJ}, 10240
    s_add_u32 s{sT0}, s{sT0}, s{sT1}
    s_mul_i32 s{sT1}, s{sQ4}, 2560
    s_add_u32 s{sT0}, s{sT0}, s{sT1}
    s_lshl_b32 s{sT1}, s{sP}, 6
    s_add_u32 s{sT0}, s{sT0}, s{sT1}
    s_add_u32 s{sT0}, s{sT0}, {WS_OT}
    v_lshrrev_b32 v{t0}, 2, v0
    v_and_b32 v{t1}, 3, v0
    v_lshl_add_u32 v{og}, v{t0}, 7, s{sT0}
    v_lshl_add_u32 v{og}, v{t1}, 4, v{og}
    v_mov_b32 v{t0}, 0
    """)
    a.ds(f"ds_write_b32 v{aF}, v{t0}")
    a(f"v_mov_b32 v{aCt}, {FLB + 96}")
    a(f"v_mov_b32 v{one}, 1")
    for i in range(16):
        a(f"v_mov_b32 v{OO[0] + i}, 0")
        a(f"v_mov_b32 v{OO[1] + i}, 0")
    if merged:
        a.L = a.L[:iA0] + a.L[iB0:] + a.L[iA0:iA1] + ["    s_barrier", "    ; MARK9"] + a.L[iA1:iB0]

    def rdKa(s_):
        a.ds(f"ds_read_b128 {v(Ka, 4)}, v{aKa} offset:{rec(s_)}", f"Ka{s_}")

    def rdKb(s_):
        a.ds(f"ds_read_b64 {v(Kb, 2)}, v{aKb} offset:{rec(s_)}", f"Kb{s_}")

    def rdV(s_, t):
        a.ds(f"ds_read_b128 {v(V2 if t else V1, 4)}, v{aV} offset:{rec(s_ + t) + t * 1536}", f"V{t}_{s_}")

    def qka(d, x=0):
        a(f"v_mfma_f32_32x32x16_bf16 {v(d, 16)}, {v(Ka, 4)}, {v(QA[x], 4)}, 0")

    def qkb(d, x=0):
        a(f"v_mfma_f32_32x32x8_bf16 {v(d, 16)}, {v(Kb, 2)}, {v(QB[x], 2)}, {v(d, 16)}")

    def pv(d, t, x=0):
        a(f"v_smfmac_f32_32x32x32_bf16 {v(OO[x], 16)}, {v(V2 if t else V1, 4)}, {v(d + 8 * t, 8)}, v{idx}")

    def halfmax(m, src):
        a(f"v_max3_f32 v{m}, v{src}, v{src + 1}, v{src + 2}")
        for k in range(3, 15, 2):
            a(f"v_max3_f32 v{m}, v{m}, v{src + k}, v{src + k + 1}")
        a(f"v_max_f32 v{m}, v{m}, v{src + 15}")

    def crosshalf(m, tmp):
        a(f"v_mov_b32 v{tmp}, v{m}")
        a(f"v_permlane32_swap_b32 v{m}, v{tmp}")
        a(f"v_max_f32 v{m}, v{m}, v{tmp}")

    a(f"""
    v_cmp_le_u32 s[50:51], 32, v0
    s_mul_i32 s{sT0}, s{sP}, {32 * 160}
    s_mul_i32 s{sT1}, s{sQ4}, 40
    s_add_u32 s{sT1}, s{sT1}, {QIMG}
    s_add_u32 s{sT0}, s{sT0}, s{sT1}
    v_mul_u32_u24 v{t2}, 160, v{vL32}
    v_add_u32 v{t0}, s{sT0}, v{t2}
    s_mul_i32 s{sT0}, s{sP}, {32 * 160}
    s_sub_u32 s{sT0}, {32 * 160}, s{sT0}
    s_add_u32 s{sT0}, s{sT0}, s{sT1}
    v_add_u32 v{t1}, s{sT0}, v{t2}
    v_lshl_add_u32 v{t2}, v{vH}, 4, v{t0}
    v_lshl_add_u32 v{t3}, v{vH}, 4, v{t1}
    """)
    def att_sync(name, off):
        if not merged:
            a("s_barrier")
            return
        a("s_mov_b64 exec, 1")
        a(f"ds_add_u32 v{aCt}, v{one} offset:{off}")
        a("s_mov_b64 exec, -1")
        spin_lds(a, name, aCt, cnt, sT0, 8, off, nap=0)
    a.wait_all()
    att_sync("K2_P", 8)
    for x in range(2):
        for h in range(2):
            a.ds(f"ds_read_b64 {v(QA[x] + 2 * h, 2)}, v{(t2, t3)[x]} offset:{8 * h}", "k0")
        a.ds(f"ds_read_b64 {v(QB[x], 2)}, v{(t0, t1)[x]} offset:32", "k0")
    a.ds(f"ds_read_b128 {v(Ka, 4)}, v{aK0} offset:{rec(0)}", "k0")
    a.ds(f"ds_read_b64 {v(Kb, 2)}, v{aK0 + 1} offset:{rec(0)}", "k0")
    rdV(0, 0)
    a.wait(lg="k0")
    if not merged:
        a("s_barrier")
    else:
        a("s_mov_b64 exec, 1")
        a.ds(f"ds_add_u32 v{aCt}, v{one} offset:12")
        a("s_mov_b64 exec, -1")

    def chk(g):
        if g == 0:
            return (12, 8) if merged else None
        return 4 * ((g - 1) % 2), 8 * ((g - 1) // 2 + 1)
    qka(S[1], 0)
    qka(S[2], 1)
    for x in range(2):
        a(f"v_cndmask_b32 v{QB[x]}, v{QB[x]}, 0, s[50:51]")
        a(f"v_cndmask_b32 v{QB[x] + 1}, v{QB[x] + 1}, 0, s[50:51]")
    qkb(S[1], 0)
    qkb(S[2], 1)
    rdKa(0)
    rdKb(0)
    for x in range(2):
        halfmax(t0, S[1 + x])
        crosshalf(t0, t1)
        a(f"v_cvt_pk_bf16_f32 v{t0}, -v{t0}, 0")
        a(f"v_cndmask_b32 v{QB[x]}, v{QB[x]}, v{t0}, s[50:51]")
    a.wait(lg="Kb0")
    qka(S[0], 0)
    qkb(S[0], 0)

    NT = 2 * NST
    queue = []
    late = []
    for t in range(NT):
        s_ = t // 2
        x = t % 2
        cur, nxt, prv = S[t % 3], S[(t + 1) % 3], S[(t + 2) % 3]
        sn = (t + 1) // 2
        relK = x == 0 and s_ + 1 < NST
        e = 0
        hold = t % 4 == 0
        g = t // 4
        for k, c in enumerate(pat):
            if hold and k == 1 and chk(g):
                a.ds(f"ds_read_b32 v{cnt}, v{aCt} offset:{chk(g)[0]}")
            if hold and k == BARPOS:
                a.wait_all()
                if g < 15:
                    a("s_mov_b64 exec, 1")
                    a.ds(f"ds_add_u32 v{aCt}, v{one} offset:{4 * (g % 2)}")
                    a("s_mov_b64 exec, -1")
                if chk(g):
                    a(f"v_readfirstlane_b32 s{sT0}, v{cnt}")
                    a(f"s_cmp_lt_u32 s{sT0}, {chk(g)[1]}")
                    a(f"s_cbranch_scc1 K2_slow{g}")
                    a.label(f"K2_go{g}")
                if t in (8, 24, 40, 56):
                    a.cmt("MARK%d" % (1 + t // 16))
                hold = False
                if g + 2 < 16:
                    late.extend(kv_ops(g + 2))
            if c == 'e':
                a(f"v_exp_f32 v{cur + e}, v{cur + e}")
                e += 1
            elif c == 'a' and t + 1 < NT:
                a.wait(lg=(f"Ka{sn}", f"Kb{sn}"))
                qka(nxt, 1 - x)
                if relK:
                    queue.append(lambda s_=s_: rdKa(s_ + 1))
            elif c == 'b' and t + 1 < NT:
                qkb(nxt, 1 - x)
                if relK:
                    queue.append(lambda s_=s_: rdKb(s_ + 1))
            elif c == '2':
                if t > 0:
                    a.wait(lg=(f"V1_{(t - 1) // 2}", f"V0_{s_}"))
                    pv(prv, 1, 1 - x)
                if x == 0:
                    queue.append(lambda s_=s_: rdV(s_, 1))
            elif c == '1':
                a.wait(lg=f"V0_{s_}")
                pv(cur, 0, x)
                if x == 1 and s_ + 1 < NST:
                    queue.append(lambda s_=s_: rdV(s_ + 1, 0))
            if queue and not hold:
                queue.pop(0)()
            elif late and c == 'e':
                late.pop(0)()
        assert e == 16 and not queue and not late
    pv(S[(NT - 1) % 3], 1, 1)
    a(f"v_mov_b32 v{t0}, 1")
    for g in range(3):
        a.ds(f"ds_write_b128 v{aE}, {v(OO[1] + 4 * g, 4)} offset:{1024 * g}")
    a.ds(f"ds_write_b32 v{aLx}, v{OO[1] + 12}")
    a.wait_all(vm=False)
    a.ds(f"ds_write_b32 v{aF}, v{t0}")
    spin_lds(a, "K2_spinA", aFp, t1, sT0, 1)
    for g in range(3):
        a.ds(f"ds_read_b128 {v(OO[1] + 4 * g, 4)}, v{aEp} offset:{1024 * g}", f"y{g}")
    a.ds(f"ds_read_b32 v{OO[1] + 12}, v{aLxp}", "y3")
    for k in range(13):
        a.wait(lg=f"y{k // 4}")
        a(f"v_add_f32 v{O + k}, v{O + k}, v{OO[1] + k}")
    a(f"v_add_f32 v{t2}, |v{O}|, |v{O + 1}|")
    a(f"v_add_f32 v{t3}, |v{O + 2}|, |v{O + 3}|")
    for k in range(4, 12, 2):
        a(f"v_add_f32 v{t2}, v{t2}, |v{O + k}|")
        a(f"v_add_f32 v{t3}, v{t3}, |v{O + k + 1}|")
    a(f"""
    v_add_f32 v{t2}, v{t2}, v{t3}
    v_cmp_nge_f32 vcc, {f32(2.0 ** 120)}, v{t2}
    s_mov_b64 s[52:53], vcc
    v_cmp_nge_f32 vcc, {f32(2.0 ** 64)}, v{O + 12}
    s_or_b64 s[52:53], s[52:53], vcc
    v_cmp_nle_f32 vcc, {f32(2.0 ** -64)}, v{O + 12}
    s_or_b64 vcc, vcc, s[52:53]
    s_cbranch_vccnz K2_fallback
    """)
    a.label("K2_norm")
    pk = S[0]
    a(f"v_rcp_f32 v{t2}, v{O + 12}")
    a(f"v_add_u32 v{og2}, 2048, v{og}")
    for k in range(12):
        a(f"v_mul_f32 v{O + k}, v{O + k}, v{t2}")
    for k in range(6):
        if k == 4:
            a("s_mov_b32 exec_hi, 0")
        a(f"v_cvt_pk_bf16_f32 v{pk + k}, v{O + 2 * k}, v{O + 2 * k + 1}")
        row = 8 * (k // 2) + 2 * (k % 2)
        a.ds(f"ds_write_b16 v{aIw}, v{pk + k} offset:{row * 64}")
        a.ds(f"ds_write_b16_d16_hi v{aIw}, v{pk + k} offset:{row * 64 + 64}")
    a("s_mov_b32 exec_hi, -1")
    a.wait_all(vm=False)
    d = S[1]
    a.ds(f"ds_read_b128 {v(d, 4)}, v{aIr}", "o0")
    a.ds(f"ds_read_b128 {v(d + 4, 4)}, v{aIr} offset:1024", "o1")
    a.wait(lg="o0")
    a(f"buffer_store_dwordx4 {v(d, 4)}, v{og}, s[{SWS}:{SWS + 3}], 0 offen {hs}")
    a.wait(lg="o1")
    a("s_mov_b64 exec, 0xffff")
    a(f"buffer_store_dwordx4 {v(d + 4, 4)}, v{og2}, s[{SWS}:{SWS + 3}], 0 offen {hs}")
    if not fused:
        a("s_endpgm")
    else:
        a(f"""
        s_mov_b64 exec, 1
        v_mov_b32 v{t0}, {FLB + 68}
        v_mov_b32 v{t1}, 1
        s_lshl_b32 s{sT0}, s{sI}, 5
        s_add_u32 s{sT0}, s{sT0}, s{sJ}
        s_lshl_b32 s{sT0}, s{sT0}, 2
        s_add_u32 s{sT0}, s{sT0}, {FLAGO}
        v_mov_b32 v{t3}, s{sT0}
        s_waitcnt vmcnt(0)
        ds_add_rtn_u32 v{t2}, v{t0}, v{t1}
        s_waitcnt lgkmcnt(0)
        v_cmp_eq_u32 vcc, 7, v{t2}
        s_and_b64 exec, exec, vcc
        s_cbranch_execz K2_nopub
        buffer_store_dword v{t1}, v{t3}, s[{SWS}:{SWS + 3}], 0 offen sc1
        """)
        a.label("K2_nopub")
        a("s_mov_b64 exec, -1")
        a.lg, a.vm = [], []
        final_pre(S[0])
        a("s_barrier")
        final_post(S[0], S[1])

    for g in range(0 if merged else 1, 16):
        a.label(f"K2_slow{g}")
        spin_lds(a, f"K2_sp{g}", aCt, cnt, sT0, chk(g)[1], chk(g)[0])
        a(f"s_branch K2_go{g}")
    a.label("K2_fallback")
    m = t2
    gka, gkb, gv = OO[1], OO[1] + 1, OO[1] + 2
    a(f"""
    s_nop 7
    v_cndmask_b32 v{QB[0]}, v{QB[0]}, 0, s[50:51]
    v_add_u32 v{gka}, {WS_KV - KVB}, v{aK0}
    v_add_u32 v{gkb}, {WS_KV - KVB}, v{aK0 + 1}
    v_add_u32 v{gv}, {WS_KV - KVB}, v{aV0}
    v_mov_b32 v{m}, 0xff800000
    s_mov_b32 s57, 0
    """)
    for i in range(16):
        a(f"v_mov_b32 v{O + i}, 0")
    a.label("K2_fb1")
    for T in range(2):
        a(f"buffer_load_dwordx4 {v(Ka, 4)}, v{gka}, s[{SWS}:{SWS + 3}], s57 offen offset:{T * 1024}")
        a(f"buffer_load_dwordx2 {v(Kb, 2)}, v{gkb}, s[{SWS}:{SWS + 3}], s57 offen offset:{T * 512}")
        a("s_waitcnt vmcnt(0)")
        qka(S[0])
        qkb(S[0])
        halfmax(t3, S[0])
        a(f"v_max_f32 v{m}, v{m}, v{t3}")
    a(f"""
    s_add_u32 s57, s57, 6144
    s_cmp_lt_u32 s57, {32 * 6144}
    s_cbranch_scc1 K2_fb1
    """)
    crosshalf(m, t3)
    a("s_mov_b32 s57, 0")
    a.label("K2_fb2")
    a(f"s_add_u32 s58, s57, {6144 + 1536}")
    for T in range(2):
        a(f"buffer_load_dwordx4 {v(Ka, 4)}, v{gka}, s[{SWS}:{SWS + 3}], s57 offen offset:{T * 1024}")
        a(f"buffer_load_dwordx2 {v(Kb, 2)}, v{gkb}, s[{SWS}:{SWS + 3}], s57 offen offset:{T * 512}")
        a(f"buffer_load_dwordx4 {v(V1, 4)}, v{gv}, s[{SWS}:{SWS + 3}], s57 offen offset:{T * 768}")
        a(f"buffer_load_dwordx4 {v(V2, 4)}, v{gv}, s[{SWS}:{SWS + 3}], s58 offen offset:{T * 768}")
        a("s_waitcnt vmcnt(0)")
        qka(S[0])
        qkb(S[0])
        for e in range(16):
            a(f"v_sub_f32 v{S[0] + e}, v{S[0] + e}, v{m}")
        for e in range(16):
            a(f"v_exp_f32 v{S[0] + e}, v{S[0] + e}")
        pv(S[0], 0)
        pv(S[0], 1)
        a("s_nop 7")
    a(f"""
    s_add_u32 s57, s57, 6144
    s_cmp_lt_u32 s57, {32 * 6144}
    s_cbranch_scc1 K2_fb2
    s_nop 15
    s_branch K2_norm
    """)

    a.label("K2_eng")
    a.lg, a.vm = [], []
    V = Regs('v', 1)
    sBase, sT, sL = 35, 36, 37
    E = Engine(a, V, sQ4, sBase, sT, sL, sT0)
    bias, aC = V.alloc(), V.alloc()
    nv = max(nv, V.n)
    t0, t1, t2, t3 = E.t
    E.dma_addrs_L()
    a(f"""
    v_lshlrev_b32 v{t1}, 2, v0
    v_add_u32 v{t1}, {FLB + 64}, v{t1}
    v_mov_b32 v{aC}, {FLB + 64}
    v_mov_b32 v{t0}, 0
    s_mul_i32 s{sBase}, s{sQ4}, {RING}
    s_mov_b64 exec, 0xffff
    ds_write_b32 v{t1}, v{t0}
    s_mov_b64 exec, -1
    """)

    def poll_mem(name, vaddr, regs, width):
        op = "buffer_load_dword" if width == 1 else "buffer_load_dwordx4"

        def ld(r):
            a(f"{op} {v(r, width)}, v{vaddr}, s[{SWS}:{SWS + 3}], 0 offen sc1")
        a("s_mov_b32 s63, 0x40000")
        for r in regs[:-1]:
            ld(r)
            a(f"s_sleep {nap}")
        a.label(name)
        for k in range(len(regs)):
            ld(regs[k - 1])
            a(f"s_waitcnt vmcnt({len(regs) - 1})")
            r = regs[k]
            if width == 4:
                a(f"v_and_b32 v{r}, v{r}, v{r + 1}")
                a(f"v_and_b32 v{r + 2}, v{r + 2}, v{r + 3}")
                a(f"v_and_b32 v{r}, v{r}, v{r + 2}")
            a(f"v_cmp_ne_u32 vcc, 1, v{r}")
            a(f"s_cbranch_vccz {name}_ok")
            a(f"s_sleep {nap}")
        a("s_sub_u32 s63, s63, 1")
        a(f"s_cbranch_scc0 {name}")
        a.label(name + "_ok")
        a("s_waitcnt vmcnt(0)")

    def poll(name, base, nwords, ldsoff, regs):
        a(f"""
        s_cmp_lg_u32 s{sQ4}, 0
        s_cbranch_scc1 {name}_w
        v_and_b32 v{t0}, {nwords - 1}, v0
        v_lshl_add_u32 v{t0}, v{t0}, 2, s{base}
        """)
        poll_mem(name, t0, regs, 1)
        a(f"""
        v_mov_b32 v{t1}, 1
        ds_write_b32 v{aC}, v{t1} offset:{ldsoff}
        """)
        a.label(name + "_w")
        a(f"v_add_u32 v{t2}, {ldsoff}, v{aC}")
        spin_lds(a, name + "_l", t2, t1, sT0, 1, nap=1)

    def poll_first(name):
        a(f"s_cmp_lg_u32 s{sQ4}, 0")
        a(f"s_cbranch_scc1 {name}_w")
        a(f"s_lshl_b32 s57, s{sI}, 10")
        a(f"s_add_u32 s57, s57, {FLAGA}")
        a(f"v_add_u32 v{t0}, s57, v{E.oL[0]}")
        poll_mem(name, t0, [E.C32[0][0] + 4 * k for k in range(deep)], 4)
        a.label(name + "_w")
        a("s_barrier")

    a(f"s_cmp_ge_u32 s{sIdx}, 27")
    a("s_cbranch_scc1 K2_wot")
    vm0, lg0 = list(a.vm), list(a.lg)
    a(f"""
    s_mul_i32 s{sT0}, s{sX}, 27
    s_add_u32 s{sT0}, s{sT0}, s{sIdx}
    s_lshr_b32 s{sA}, s{sT0}, 3
    s_and_b32 s{sB}, s{sT0}, 7
    s_lshl_b32 s{sT1}, s{sA}, 7
    """)
    E.dma_addrs_T(3456, sT1)
    a(f"""
    s_mul_i32 s{sT}, s{sQ4}, {32 * 3456}
    s_lshl_b32 s{sL}, s{sB}, 6
    s_add_u32 s{sL}, s{sL}, s{sQ4}
    s_mul_i32 s{sL}, s{sL}, {LUNIT}
    s_add_u32 s{sL}, s{sL}, {WS_HT}
    """)
    a("s_waitcnt lgkmcnt(0)")
    srd(a, SWS, 8, 9, WS_END)
    srd(a, SW1, 4, 5, 2048 * 3456)
    g1_ops = lambda: E.issue_ops(SW1, SWS, 4 * 32 * 3456, 4 * LUNIT)

    def run(ops):
        for op in ops:
            op()
    if merged:
        E.n_issued = 3
        for n in range(3):
            run(E.ops_T(n, SW1, 4 * 32 * 3456))
        E.lds_addrs()
        poll_first("K2_pollA")
        for n in range(3):
            run(E.ops_L(n, SWS, 4 * LUNIT))
    else:
        run(g1_ops())
        run(g1_ops())
        E.lds_addrs()
        a("s_barrier")
        a("s_barrier")
        run(g1_ops())
    srd(a, SB1, 6, 7, 3456)
    a(f"v_lshl_add_u32 v{t1}, v0, 1, s{sT1}")
    a.vmem(f"buffer_load_ushort v{bias}, v{t1}, s[{SB1}:{SB1 + 3}], 0 offen", "bias")
    E.first_reads(0)
    a(f"s_setprio {eprio[0]}")
    E.mpat = mpat[0]

    k0 = -2.0 * math.sqrt(2.0 / math.pi) * math.log2(math.e)
    k1 = k0 * 0.044715

    def count_up():
        a.wait_all()
        a("s_mov_b64 exec, 1")
        a(f"v_mov_b32 v{t0}, 1")
        a.ds(f"ds_add_u32 v{aC}, v{t0}")
        a("s_mov_b64 exec, -1")

    def g1_dump():
        a.cmt("MARK1")
        E.dump(True, RP1)
        a.wait(vm="bias")
        a(f"v_lshlrev_b32 v{bias}, 16, v{bias}")
        a(f"v_lshl_add_u32 v{t1}, v0, 2, s{sBase}")
        a.ds(f"ds_write_b32 v{t1}, v{bias} offset:{BIAS}")
        a.wait_all(vm=False)
        a("s_mov_b64 exec, 1")
        a(f"v_mov_b32 v{t0}, 1")
        a.ds(f"ds_add_u32 v{aC}, v{t0}")
        a("s_mov_b64 exec, -1")

    def g1_tasks():
        tl0, tb0, tl, hi = [E.C16[0] + i for i in range(4)]
        PB = [E.C32[0][0], E.C32[1][0]]
        BB = [E.T32[0][0], E.T32[0][0] + 8]
        Wk = E.T16[0]
        OUT = E.T32[0][0] + 16
        a(f"""
        v_lshrrev_b32 v{t0}, 4, v0
        v_lshlrev_b32 v{t0}, 1, v{t0}
        v_mov_b32 v{t3}, {GLUT}
        v_lshrrev_b32 v{t0}, v{t0}, v{t3}
        v_xor_b32 v{t0}, v{t0}, v0
        v_and_b32 v{t0}, 3, v{t0}
        v_lshlrev_b32 v{t0}, 5, v{t0}
        v_lshrrev_b32 v{t1}, 2, v0
        v_mul_u32_u24 v{tl0}, {RP1}, v{t1}
        v_add_u32 v{tl0}, v{tl0}, v{t0}
        v_add_u32 v{tb0}, s{sBase}, v{t0}
        s_mul_i32 s{sT1}, s{sB}, {AU_STRIDE}
        s_mul_i32 s57, s{sA}, {2 * LUNIT}
        s_add_u32 s{sT1}, s{sT1}, s57
        s_add_u32 s{sT1}, s{sT1}, {WS_AU}
        v_mov_b32 v{t3}, {f32(k0)}
        """)
        spin_lds(a, "K2_spinE", aC, t1, sT0, 4)

        def rd(r):
            p = PB[r % 2]
            a(f"""
            s_add_u32 s57, s{sQ4}, {4 * r}
            s_cmp_ge_u32 s57, 5
            s_cselect_b32 s58, 5, 0
            s_cselect_b32 s59, 128, 0
            s_sub_u32 s58, s57, s58
            s_mul_i32 s58, s58, {16 * RP1}
            s_add_u32 s58, s58, s59
            s_lshl_b32 s{60 + r}, s57, 10
            s_add_u32 s{60 + r}, s{60 + r}, s{sT1}
            v_add_u32 v{tl}, s58, v{tl0}
            v_add_u32 v{hi}, {2 * RING}, v{tl}
            v_add_u32 v{t2}, s59, v{tb0}
            """)
            for w in range(4):
                for k in range(2):
                    a.ds(f"ds_read_b128 {v(p + 8 * w + 4 * k, 4)}, v{tl if w < 2 else hi} offset:{(w % 2) * RING + 16 * k}", f"p{r}")
            for k in range(2):
                a.ds(f"ds_read_b128 {v(BB[r % 2] + 4 * k, 4)}, v{t2} offset:{BIAS + 16 * k}", f"p{r}")
        rd(0)
        for r in range(3):
            if r == 2:
                a(f"s_cmp_ge_u32 s{sQ4}, 2")
                a("s_cbranch_scc1 K2_t2skip")
            p, w = PB[r % 2], Wk
            a.wait(lg=f"p{r}")
            for j in range(8):
                a(f"v_add_f32 v{p + j}, v{p + j}, v{p + 8 + j}")
                a(f"v_add_f32 v{p + 16 + j}, v{p + 16 + j}, v{p + 24 + j}")
            for j in range(8):
                a(f"v_add_f32 v{p + j}, v{p + j}, v{BB[r % 2] + j}")
            for j in range(8):
                a(f"v_add_f32 v{w + 8 + j}, v{p + j}, v{p + 16 + j}")
            if r + 1 < 3:
                rd(r + 1)
            x = w + 8
            for j in range(8):
                a(f"v_mul_f32 v{w + j}, v{x + j}, v{x + j}")
            for j in range(8):
                a(f"v_fmamk_f32 v{w + j}, v{w + j}, {f32(k1)}, v{t3}")
            for j in range(8):
                a(f"v_mul_f32 v{w + j}, v{w + j}, v{x + j}")
            for j in range(8):
                a(f"v_exp_f32 v{w + j}, v{w + j}")
            for j in range(8):
                a(f"v_add_f32 v{w + j}, 1.0, v{w + j}")
            for j in range(8):
                a(f"v_rcp_f32 v{w + j}, v{w + j}")
            for j in range(8):
                a(f"v_mul_f32 v{w + j}, v{w + j}, v{x + j}")
            o = OUT + 4 * r
            for j in range(4):
                a(f"v_cvt_pk_bf16_f32 v{o + j}, v{w + 2 * j}, v{w + 2 * j + 1}")
            a.vmem(f"buffer_store_dwordx4 {v(o, 4)}, v{E.oL[0]}, s[{SWS}:{SWS + 3}], s{60 + r} offen {hs}", "ust")
        a.label("K2_t2skip")
        count_up()

    def publish(name, sflag):
        spin_lds(a, name, aC, t1, sT0, 8)
        a(f"""
        s_cmp_lg_u32 s{sQ4}, 0
        s_cbranch_scc1 {name}_np
        s_mov_b64 exec, {(1 << RU) - 1}
        v_mov_b32 v{t0}, 1
        v_lshl_add_u32 v{t1}, v0, 10, s{sflag}
        buffer_store_dword v{t0}, v{t1}, s[{SWS}:{SWS + 3}], 0 offen sc1
        s_mov_b64 exec, -1
        """)
        a.label(name + "_np")

    for n in range(16):
        E.unit(n, True, n == 0, n + 1 < 16, g1_ops if n + 3 < 16 else None)
    a(f"s_setprio {eprio[1]}")
    g1_dump()
    g1_tasks()
    if not fused:
        a("s_endpgm")
    else:
        a(f"""
        s_lshl_b32 s57, s{sB}, 5
        s_add_u32 s57, s57, s{sA}
        s_lshl_b32 s57, s57, 2
        s_add_u32 s57, s57, {FLAGU}
        """)
        a.label("K2_merge")
        publish("K2_pubU", 57)
        a.lg, a.vm = [], []
        srd(a, SW1, 68, 69, 1728 * 4096)
        a(f"s_lshl_b32 s{sT1}, s{sI}, 7")
        E.dma_addrs_T(4096, sT1)
        a(f"""
        s_lshl_b32 s{sT}, s{sQ4}, 17
        s_mul_i32 s{sL}, s{sJ}, 74
        s_add_u32 s{sL}, s{sL}, s{sQ4}
        s_mul_i32 s{sL}, s{sL}, {LUNIT}
        s_add_u32 s{sL}, s{sL}, {WS_AU}
        """)

        N2, N3 = 14, 5
        NU = N2 + N3
        base_n = E.n_issued
        assert base_n == 16

        def opsT(n):
            if n == N2:
                a(f"s_mul_i32 s{sT1}, s{sI}, 81920")
                a(f"s_add_u32 s{sT1}, s{sT1}, {WS_OT}")
                E.dma_addrs_T(128, sT1)
                a(f"s_lshl_b32 s{sT}, s{sQ4}, 12")
            if n < N2:
                return E.ops_T(base_n + n, SW1, 4 * 32 * 4096)
            return E.ops_T(base_n + n, SWS, 4 * 4096, hl)

        def opsL(n):
            if n == N2 - 1:
                a(f"s_add_u32 s62, s{sL}, {2 * LUNIT}")
                a(f"s_cmp_ge_u32 s{sQ4}, 2")
                a(f"s_cselect_b32 s{sL}, 0x40000000, s{sL}")
            if n == N2:
                a(f"s_mov_b32 s{sL}, s62")
            return E.ops_L(base_n + n, SWS, 4 * LUNIT, hl)

        a(f"s_setprio {eprio[2]}")
        for n in range(3):
            run(opsT(n))
        a(f"s_lshl_b32 s57, s{sJ}, 7")
        a(f"s_lshl_b32 s58, s{sX}, 10")
        a(f"s_add_u32 s57, s57, s58")
        a(f"s_add_u32 s57, s57, {FLAGU}")
        poll("K2_pollU", 57, 32, 8, [E.C32[0][0] + k for k in range(deep)])
        a("s_setprio 1")
        for n in range(3):
            run(opsL(n))
        E.first_reads(base_n)
        a(f"s_setprio {eprio[2]}")
        E.mpat = mpat[1]
        for n in range(N2):
            if n + 3 < N2:
                fn = lambda n=n: opsT(n + 3) + opsL(n + 3)
            else:
                fn = lambda n=n: opsL(n + 3)
            E.unit(base_n + n, False, n == 0, n + 1 < N2, fn)
            if n in (4, 9):
                a.cmt("MARK%d" % (8 if n == 4 else 9))
        a(f"s_setprio {eprio[3]}")
        E.mpat = None
        FR = E.T16[0]
        t14 = opsT(N2)
        a(f"s_lshl_b32 s57, s{sI}, 7")
        a(f"s_add_u32 s57, s57, {FLAGO}")
        poll("K2_pollO", 57, 8, 12, [E.T16[0] + k for k in range(deep)])
        run(t14)
        run(opsT(N2 + 1))
        run(opsT(N2 + 2))
        E.first_reads(base_n + N2)
        for n in range(N2, NU):
            E.unit(base_n + n, False, False, n + 1 < NU, (lambda n=n: opsT(n + 3) + opsL(n + 3)) if n + 3 < NU else None)
        final_pre(FR)
        E.dump(False, RP2)
        a.wait_all(vm=False)
        a("s_barrier")
        final_post(FR, E.C32[0][0])

    a.label("K2_wot")
    a.lg, a.vm = lg0, vm0
    a("s_waitcnt lgkmcnt(0)")
    srd(a, SWS, 8, 9, WS_END)
    srd(a, SW1, 10, 11, 819200)
    a(f"""
    s_sub_u32 s{sT0}, s{sIdx}, 27
    s_lshl_b32 s{sT0}, s{sT0}, 2
    s_add_u32 s{sA}, s{sT0}, s{sQ4}
    s_mul_i32 s{sT}, s{sA}, {32 * 1280}
    s_mul_i32 s{sT1}, s{sX}, 160
    s_add_u32 s{sT}, s{sT}, s{sT1}
    s_mul_i32 s{sL}, s{sX}, 74
    s_add_u32 s{sL}, s{sL}, s{sA}
    s_add_u32 s{sL}, s{sL}, 54
    s_mul_i32 s{sL}, s{sL}, {LUNIT}
    s_add_u32 s{sL}, s{sL}, {WS_AU}
    """)
    a("s_setprio 0")
    if merged:
        poll_first("K2_pollB")
    else:
        a("s_barrier")
        a("s_barrier")
    for n in range(5):
        a(f"""
        v_add_u32 v{t0}, {64 * n}, v0
        v_mul_u32_u24 v{t1}, 205, v{t0}
        v_lshrrev_b32 v{t1}, 11, v{t1}
        v_mul_u32_u24 v{t2}, 10, v{t1}
        v_sub_u32 v{t2}, v{t0}, v{t2}
        v_mul_u32_u24 v{t1}, 1280, v{t1}
        v_lshl_add_u32 v{t1}, v{t2}, 4, v{t1}
        s_add_u32 m0, s{sBase}, {1024 * n}
        s_nop 0
        """)
        a.vmem(f"buffer_load_dwordx4 v{t1}, s[{SW1}:{SW1 + 3}], s{sT} offen lds", "wo")
    I, G = E.oT[0], E.oT[1]
    a(f"""
    v_and_b32 v{I}, 15, v0
    v_lshrrev_b32 v{G}, 4, v0
    v_lshrrev_b32 v{t0}, 2, v{I}
    v_lshl_add_u32 v{t1}, v{G}, 3, v{t0}
    v_mul_u32_u24 v{t1}, 160, v{t1}
    v_and_b32 v{t2}, 3, v{I}
    v_lshl_add_u32 v{t1}, v{t2}, 3, v{t1}
    v_add_u32 v{t1}, s{sBase}, v{t1}
    v_lshlrev_b32 v{t0}, 1, v{t0}
    v_mov_b32 v{t2}, {GLUT}
    v_lshrrev_b32 v{t0}, v{t0}, v{t2}
    v_xor_b32 v{t0}, v{t0}, v{G}
    v_and_b32 v{t0}, 3, v{t0}
    v_lshlrev_b32 v{t2}, 6, v{I}
    v_lshl_add_u32 v{t2}, v{t0}, 4, v{t2}
    v_add_u32 v{t3}, 4096, v{t2}
    """)
    a.wait(vm="wo")
    D = E.C32[0][0]
    for dq in range(5):
        for h in range(2):
            a.ds(f"ds_read_b64_tr_b16 {v(D + 4 * dq + 2 * h, 2)}, v{t1} offset:{32 * dq + 640 * h}", f"w{dq}")
    for dq in range(5):
        a.wait(lg=f"w{dq}")
        if dq < 4:
            a.vmem(f"buffer_store_dwordx4 {v(D + 4 * dq, 4)}, v{t2}, s[{SWS}:{SWS + 3}], s{sL} offen offset:{1024 * dq} {hs}", "x")
        else:
            a.vmem(f"buffer_store_dwordx4 {v(D + 4 * dq, 4)}, v{t3}, s[{SWS}:{SWS + 3}], s{sL} offen {hs}", "x")
    pf = []
    if pf2 and merged:
        srd(a, SW1, 4, 5, 2048 * 3456)
        a(f"""
        v_lshlrev_b32 v{t0}, 4, v0
        s_mul_i32 s{sT}, s{sX}, 27
        s_lshr_b32 s{sT}, s{sT}, 3
        s_lshl_b32 s{sT}, s{sT}, 7
        s_add_u32 s{sT1}, s{sA}, 1024
        s_mul_i32 s{sT1}, s{sT1}, 3456
        s_add_u32 s{sT}, s{sT}, s{sT1}
        s_add_u32 m0, s{sBase}, {USZ}
        s_mov_b32 exec_hi, 0xff
        """)
        for n in range(52):
            a.vmem(f"buffer_load_dwordx4 v{t0}, s[{SW1}:{SW1 + 3}], s{sT} offen lds", f"pw{n}")
            a(f"s_add_u32 s{sT}, s{sT}, {20 * 3456}")
            if n >= 16:
                a.wait(vm=f"pw{n - 16}")
        a("s_mov_b32 exec_hi, -1")
    if pf2:
        srd(a, SW1, 68, 69, 1728 * 4096)
        a(f"""
        v_lshrrev_b32 v{t0}, 5, v0
        v_and_b32 v{t1}, 31, v0
        v_lshlrev_b32 v{t0}, 12, v{t0}
        v_lshl_add_u32 v{t0}, v{t1}, 4, v{t0}
        s_lshl_b32 s{sT}, s{sX}, 9
        s_lshl_b32 s{sT1}, s{sA}, 13
        s_add_u32 s{sT}, s{sT}, s{sT1}
        s_add_u32 m0, s{sBase}, {USZ}
        """)
        for n in range(44):
            def one(n=n):
                a.vmem(f"buffer_load_dwordx4 v{t0}, s[{SW1}:{SW1 + 3}], s{sT} offen lds", f"pf{n}")
                a(f"s_add_u32 s{sT}, s{sT}, {40 * 4096}")
                if n >= 12:
                    a.wait(vm=f"pf{n - 12}")
            pf.append(one)
    for f in pf:
        f()
    if fused:
        E.lds_addrs()
        count_up()
        count_up()
        a(f"""
        s_lshl_b32 s57, s{sX}, 5
        s_add_u32 s57, s57, s{sIdx}
        s_lshl_b32 s57, s57, 2
        s_add_u32 s57, s57, {FLAGU}
        s_branch K2_merge
        """)
    a.label("K2_end")
    a("s_endpgm")
    return a.L, nv, 76
```

```python
import struct
WS_Q = 0
WS_HT = 0x280000
WS_KV = 0x500000
KV_BYTES = 33 * 6144
WS_AU = 0x600000
AU_STRIDE = 74 * 5120
WS_OT = 0x900000
WS_FLAG = 0xB80000
RU = 8
RA = 32
FLAGO = WS_FLAG
FLAGU = WS_FLAG + 4096
FLAGA = FLAGU + RU * 1024
FLAG_BYTES = 4096 + RU * 1024 + RA * 1024
WS_END = 0xC00000
LUNIT = 5120
GLUT = 0x78

def g_of(row):
    return (GLUT >> (2 * ((row // 4) % 4))) & 3

def f32(x):
    return "0x%08x" % struct.unpack("<I", struct.pack("<f", x))[0]
```

```python
import sys
from asmlib import *
import k1, k2, k3
NAME = "parallel_sum__grouped_kv_mqa__mixer_token_mlp__prompt"
STAMP_OFF = 0x1000000
NMARK = 12
def stamp(L, ki):
    pre = ["    s_memrealtime s[80:81]", "    s_memtime s[82:83]", "    v_lshrrev_b32 v1, 6, v0", "    s_nop 1",
           "    v_readfirstlane_b32 s101, v1"] + [f"    s_mov_b32 s{88 + k}, 0" for k in range(NMARK)]
    post = f"""    s_waitcnt vmcnt(0) lgkmcnt(0)
    s_memrealtime s[84:85]
    s_memtime s[86:87]
    s_load_dwordx2 s[78:79], s[0:1], 96
    s_lshl_b32 s100, s2, 4
    s_add_u32 s100, s100, s101
    s_lshl_b32 s100, s100, 6
    s_add_u32 s100, s100, {STAMP_OFF + ki * 0x80000}
    s_mov_b64 exec, 1
    s_waitcnt lgkmcnt(0)
    v_mov_b32 v1, s100
    v_mov_b32 v4, s80
    v_mov_b32 v5, s84
    v_mov_b32 v6, s82
    v_mov_b32 v7, s86
    global_store_dwordx4 v1, v[4:7], s[78:79]""".split("\n")
    for g in range(3):
        post += [f"    v_mov_b32 v{8 + 4 * g + k}, s{88 + 4 * g + k}" for k in range(4)]
        post += [f"    global_store_dwordx4 v1, v[{8 + 4 * g}:{11 + 4 * g}], s[78:79] offset:{16 + 16 * g}"]
    post += ["    s_endpgm"]
    out = list(pre)
    for ln in L:
        if ln.strip() == "s_endpgm":
            out += post
        elif ln.strip().startswith("; MARK"):
            k = int(ln.strip()[6:])
            out += ["    s_memtime s[76:77]", "    s_waitcnt lgkmcnt(0)", f"    s_mov_b32 s{88 + k}, s76"]
        else:
            out.append(ln)
    return out

def build(opts=None):
    opts = opts or {}
    ks = [("k1_kernel", k1.gen_k1(opts.get("st1", ""), **opts.get("k1", {})), k1.LDS_K1, 768),
          ("k2_kernel", k2.gen_k2(opts.get("st2", ""), **opts.get("k2", {})), k2.LDS_K2, 768),
          ("k3_kernel", k3.gen_k3(opts.get("st3", ""), **opts.get("k3", {})), k3.LDS_K3, 256)]
    if opts.get("k2", {}).get("fused", True):
        ks = ks[:2]
    if opts.get("merged"):
        L1, nv1, ns1 = k1.gen_k1("", merged=True, **opts.get("k1", {}))
        if opts.get("stamp"):
            L1 = [ln for ln in L1[:-1] if "MARK" not in ln] + L1[-1:]
        L2, nv2, ns2 = k2.gen_k2(opts.get("st2", ""), merged=True, **opts.get("k2", {}))
        ks = [("k1_kernel", (L1 + L2, max(nv1, nv2), max(ns1, ns2)), k2.LDS_K2, 768)]
    head = open("cdna_kernels/%s.s.ref" % NAME).read().split("; Override launch")[0]
    out = head
    for i in range(opts.get("pre_empty", 0)):
        out += f"; @launch kernel=empty_kernel grid=(256,1,1) block=(512,1,1) lds=0\n"
    for n, _, lds, blk in [ks[i] for i in opts.get("order", range(len(ks)))]:
        out += f"; @launch kernel={n} grid=(256,1,1) block=({blk},1,1) lds={lds}\n"
    for i in range(opts.get("empty", 0)):
        out += f"; @launch kernel=empty_kernel grid=(256,1,1) block=(512,1,1) lds=0\n"
    out += '.amdgcn_target "amdgcn-amd-amdhsa--gfx950"\n.text\n'
    descs = ""
    if opts.get("empty", 0) or opts.get("pre_empty", 0):
        ks.append(("empty_kernel", (["    s_endpgm"], 8, 16), 0, 512))
    for ki, (n, (L, nv, ns), lds, blk) in enumerate(ks):
        if opts.get("stamp"):
            L = stamp(L, ki)
            ns = 102; nv = max(nv, 24)
        t, d, nn = kernel_text(n, L, nv, ns)
        print(f"{n}: {len(L)} lines, vgpr {nv}, nops inserted {nn}", file=sys.stderr)
        out += t
        descs += ".p2align 6\n" + d
    out += 'K2_text_end:\n.section .rodata,"a"\n.p2align 6\nK_desc:\n' + descs
    if opts.get("single"):
        out = out.replace("; @launch kernel=k1_kernel ", "; @launch ").replace("k1_kernel", NAME + "_kernel")
    return out
if __name__ == "__main__":
    path = sys.argv[1] if len(sys.argv) > 1 else "cdna_kernels/%s.s" % NAME
    opts = eval(sys.argv[2]) if len(sys.argv) > 2 else {}
    open(path, "w").write(build(opts))
```

```python
from asmlib import *
from layout import *

USZ = 9216
RING = 3 * USZ


class Engine:
    def __init__(self, a, V, sW4, sBase, sT, sL, sTmp):
        self.a = a
        self.sW4, self.sBase, self.sT, self.sL, self.sTmp = sW4, sBase, sT, sL, sTmp
        self.oT = [V.alloc() for _ in range(4)]
        self.oL = [V.alloc(), V.alloc()]
        self.aT32 = [V.alloc(), V.alloc()]
        self.aT16 = [V.alloc() for _ in range(4)]
        self.aL32 = [V.alloc(), V.alloc()]
        self.aL16 = V.alloc()
        self.t = [V.alloc() for _ in range(4)]
        self.C32 = [[V.alloc(16, 4) for _ in range(2)] for _ in range(2)]
        self.C16 = [V.alloc(4, 4) for _ in range(4)]
        self.T32 = [[V.alloc(4, 4) for _ in range(2)] for _ in range(2)]
        self.L32 = [[V.alloc(4, 4) for _ in range(2)] for _ in range(2)]
        self.T16 = [V.alloc(4, 4) for _ in range(4)]
        self.L16 = V.alloc(4, 4)
        self.n_issued = 0
        self.mpat = None

    def dma_addrs_T(self, pitch, sCol):
        a = self.a
        t0, t1, t2, _ = self.t
        a(f"""
        v_lshrrev_b32 v{t0}, 3, v0
        v_and_b32 v{t1}, 7, v0
        v_bfe_u32 v{t2}, v{t0}, 1, 1
        v_lshlrev_b32 v{t2}, 2, v{t2}
        v_xor_b32 v{t1}, v{t1}, v{t2}
        v_mul_u32_u24 v{t0}, {pitch}, v{t0}
        v_lshl_add_u32 v{t0}, v{t1}, 4, v{t0}
        v_add_u32 v{self.oT[0]}, s{sCol}, v{t0}
        v_xor_b32 v{self.oT[1]}, 32, v{self.oT[0]}
        v_add_u32 v{self.oT[1]}, {8 * pitch - 1024}, v{self.oT[1]}
        v_add_u32 v{self.oT[2]}, {16 * pitch - 2048}, v{self.oT[0]}
        v_add_u32 v{self.oT[3]}, {16 * pitch - 2048}, v{self.oT[1]}
        """)

    def dma_addrs_L(self):
        self.a(f"v_lshlrev_b32 v{self.oL[0]}, 4, v0")
        self.a(f"v_add_u32 v{self.oL[1]}, 4096, v{self.oL[0]}")

    def lds_addrs(self):
        a = self.a
        t0, t1, t2, t3 = self.t
        I, G = self.T16[0], self.T16[0] + 1
        H, R = self.T16[0] + 2, self.T16[0] + 3
        a(f"""
        v_and_b32 v{I}, 15, v0
        v_lshrrev_b32 v{G}, 4, v0
        v_lshrrev_b32 v{H}, 5, v0
        v_and_b32 v{R}, 31, v0
        v_lshrrev_b32 v{t0}, 2, v{I}
        v_and_b32 v{t3}, 1, v{I}
        v_lshl_add_u32 v{t3}, v{t3}, 3, s{self.sBase}
        v_lshl_add_u32 v{t1}, v{H}, 3, v{t0}
        v_lshl_add_u32 v{self.aT32[0]}, v{t1}, 7, v{t3}
        v_lshl_add_u32 v{t1}, v{G}, 3, v{t0}
        v_lshl_add_u32 v{self.aT16[0]}, v{t1}, 7, v{t3}
        v_bfe_u32 v{t1}, v{I}, 3, 1
        v_lshlrev_b32 v{t1}, 2, v{t1}
        v_bfe_u32 v{t2}, v{I}, 1, 1
        v_and_b32 v{t3}, 1, v{G}
        v_lshl_add_u32 v{t0}, v{t3}, 1, v{t2}
        v_lshl_or_b32 v{self.aL16}, v{H}, 1, v{t1}
        v_xor_b32 v{t0}, v{t0}, v{self.aL16}
        v_lshl_add_u32 v{self.aT32[0]}, v{t0}, 4, v{self.aT32[0]}
        v_xor_b32 v{self.aT32[1]}, 64, v{self.aT32[0]}
        v_lshl_or_b32 v{self.aL16}, v{t3}, 1, v{t1}
        v_xor_b32 v{t0}, v{t2}, v{self.aL16}
        v_lshl_add_u32 v{self.aT16[0]}, v{t0}, 4, v{self.aT16[0]}
        v_xor_b32 v{self.aT16[1]}, 32, v{self.aT16[0]}
        v_xor_b32 v{self.aT16[2]}, 64, v{self.aT16[0]}
        v_xor_b32 v{self.aT16[3]}, 96, v{self.aT16[0]}
        s_add_u32 s{self.sTmp}, s{self.sBase}, 4096
        v_mov_b32 v{t3}, {GLUT}
        v_bfe_u32 v{t0}, v{I}, 2, 2
        v_lshlrev_b32 v{t0}, 1, v{t0}
        v_lshrrev_b32 v{t0}, v{t0}, v{t3}
        v_and_b32 v{t0}, 3, v{t0}
        v_xor_b32 v{t1}, v{t0}, v{H}
        v_lshl_add_u32 v{t2}, v{R}, 6, s{self.sTmp}
        v_lshl_add_u32 v{self.aL32[0]}, v{t1}, 4, v{t2}
        v_xor_b32 v{self.aL32[1]}, 32, v{self.aL32[0]}
        v_xor_b32 v{t1}, v{t0}, v{G}
        v_lshl_add_u32 v{t2}, v{I}, 6, s{self.sTmp}
        v_lshl_add_u32 v{self.aL16}, v{t1}, 4, v{t2}
        v_add_u32 v{self.aL16}, 4096, v{self.aL16}
        """)

    def ops_T(self, n, ST, stepT, mod=""):
        a = self.a
        o = (n % 3) * USZ
        ops = [lambda: a(f"s_add_u32 m0, s{self.sBase}, {o}")]
        for r in range(4):
            ops.append(lambda r=r: a.vmem(
                f"buffer_load_dwordx4 v{self.oT[r]}, s[{ST}:{ST + 3}], s{self.sT} offen offset:{r * 1024} {mod} lds", f"u{n}"))
        ops.append(lambda: a(f"s_add_u32 s{self.sT}, s{self.sT}, {stepT}"))
        return ops

    def ops_L(self, n, SL, stepL, mod=""):
        a = self.a
        o = (n % 3) * USZ
        ops = [lambda: a(f"s_add_u32 m0, s{self.sBase}, {o + 4096}")]
        for r in range(4):
            ops.append(lambda r=r: a.vmem(
                f"buffer_load_dwordx4 v{self.oL[0]}, s[{SL}:{SL + 3}], s{self.sL} offen offset:{r * 1024} {mod} lds", f"u{n}"))
        ops.append(lambda: a(f"s_add_u32 m0, s{self.sBase}, {o + 8192}"))
        ops.append(lambda: a.vmem(f"buffer_load_dwordx4 v{self.oL[1]}, s[{SL}:{SL + 3}], s{self.sL} offen {mod} lds", f"u{n}"))
        ops.append(lambda: a(f"s_add_u32 s{self.sL}, s{self.sL}, {stepL}"))
        return ops

    @staticmethod
    def join(T, L):
        return T[:5] + [L[0], T[5]] + L[1:]

    def issue_ops(self, ST, SL, stepT, stepL, modT="", modL=""):
        n = self.n_issued
        self.n_issued += 1
        return self.join(self.ops_T(n, ST, stepT, modT), self.ops_L(n, SL, stepL, modL))

    def issue(self, *args, **kw):
        for op in self.issue_ops(*args, **kw):
            op()

    def rdT32(self, n, ks, b):
        o = (n % 3) * USZ
        for h in range(2):
            self.a.ds(f"ds_read_b64_tr_b16 {v(self.T32[ks][b] + 2 * h, 2)}, v{self.aT32[b]} offset:{o + ks * 2048 + h * 512}",
                      f"T{ks}{b}_{n}")

    def rdL32(self, n, ks, b):
        o = (n % 3) * USZ
        self.a.ds(f"ds_read_b128 {v(self.L32[ks][b], 4)}, v{self.aL32[ks]} offset:{o + b * 2048}", f"L{ks}{b}_{n}")

    def rdT16(self, n, q):
        o = (n % 3) * USZ
        for h in range(2):
            self.a.ds(f"ds_read_b64_tr_b16 {v(self.T16[q] + 2 * h, 2)}, v{self.aT16[q]} offset:{o + h * 512}", f"t{q}_{n}")

    def rdL16(self, n):
        o = (n % 3) * USZ
        self.a.ds(f"ds_read_b128 {v(self.L16, 4)}, v{self.aL16} offset:{o}", f"l_{n}")

    def first_reads(self, n):
        self.a.wait(vm=f"u{n}")
        self.rdT32(n, 0, 0)
        self.rdL32(n, 0, 0)
        self.rdL32(n, 0, 1)
        self.rdL16(n)
        self.rdT16(n, 0)
        self.rdT32(n, 0, 1)
        self.rdT16(n, 1)
        self.rdT32(n, 1, 0)
        self.rdL32(n, 1, 0)
        self.rdL32(n, 1, 1)
        self.rdT16(n, 2)
        self.rdT32(n, 1, 1)
        self.rdT16(n, 3)

    def unit(self, n, t_is_a, zero, has_next, issue_fn):
        a = self.a
        dm = issue_fn() if issue_fn else []
        nx = n + 1
        T, L, C, T6, C6 = self.T32, self.L32, self.C32, self.T16, self.C16
        z1 = zero
        allr = [f"{k}_{n}" for k in ("T00", "T01", "T10", "T11", "L00", "L01", "L10", "L11", "t0", "t1", "t2", "t3", "l")]
        seq = [
            (T[0][0], L[0][0], C[0][0], 16, z1, [f"T00_{n}", f"L00_{n}", f"L01_{n}", f"t0_{n}", f"T01_{n}"], [], 0),
            (T[0][0], L[0][1], C[0][1], 16, z1, [], [("T", 0, 0)], 0),
            (T6[0], self.L16, C6[0], 4, z1, [f"l_{n}"], [], 0),
            (T[0][1], L[0][0], C[1][0], 16, z1, allr, [("t", 0), ("L", 0, 0)], 1),
            (T[0][1], L[0][1], C[1][1], 16, z1, [], [("L", 0, 1), ("T", 0, 1)], 1),
            (T6[1], self.L16, C6[1], 4, z1, [], [], 1),
            (T[1][0], L[1][0], C[0][0], 16, False, [], [("t", 1)], 2),
            (T[1][0], L[1][1], C[0][1], 16, False, [], [("T", 1, 0)], 2),
            (T6[2], self.L16, C6[2], 4, z1, [], [], 1),
            (T[1][1], L[1][0], C[1][0], 16, False, [], [("t", 2), ("L", 1, 0)], 1),
            (T6[3], self.L16, C6[3], 4, z1, [], [("l",)], 1),
            (T[1][1], L[1][1], C[1][1], 16, False, [], [("L", 1, 1), ("T", 1, 1), ("t", 3)], 9),
        ]
        for k, (Tf, Lf, Cf, sz, z, tags, freed, nd) in enumerate(seq):
            a.wait(lg=tags)
            A, B = (Tf, Lf) if t_is_a else (Lf, Tf)
            op = "v_mfma_f32_32x32x16_bf16" if sz == 16 else "v_mfma_f32_16x16x32_bf16"
            hi = self.mpat and self.mpat[k % len(self.mpat)] == '1'
            if hi:
                a("s_setprio 1")
            a(f"{op} {v(Cf, sz)}, {v(A, 4)}, {v(B, 4)}, {'0' if z else v(Cf, sz)}")
            if hi:
                a("s_setprio 0")
            if has_next:
                if k == 0:
                    a.wait(vm=f"u{nx}")
                for f in freed:
                    if f[0] == "T":
                        self.rdT32(nx, f[1], f[2])
                    elif f[0] == "L":
                        self.rdL32(nx, f[1], f[2])
                    elif f[0] == "t":
                        self.rdT16(nx, f[1])
                    else:
                        self.rdL16(nx)
            for _ in range(nd):
                if dm:
                    dm.pop(0)()
        assert not dm

    def dump_addrs(self, pitch):
        a = self.a
        t0, t1, t2, t3 = self.t
        a(f"""
        v_and_b32 v{t0}, 31, v0
        v_lshrrev_b32 v{t1}, 5, v0
        v_mul_u32_u24 v{t0}, {pitch}, v{t0}
        v_lshl_add_u32 v{t0}, v{t1}, 4, v{t0}
        v_add_u32 v{t0}, s{self.sBase}, v{t0}
        v_and_b32 v{t2}, 15, v0
        v_lshrrev_b32 v{t1}, 4, v0
        v_mul_u32_u24 v{t2}, {pitch}, v{t2}
        v_lshl_add_u32 v{t2}, v{t1}, 4, v{t2}
        v_add_u32 v{t2}, s{self.sBase}, v{t2}
        """)

    def dump32(self, tb, lb, t_is_a, pitch):
        col, row = (lb, tb) if t_is_a else (tb, lb)
        for g in range(4):
            self.a.ds(f"ds_write_b128 v{self.t[0]}, {v(self.C32[tb][lb] + 4 * g, 4)} offset:{col * 32 * pitch + row * 128 + g * 32}")

    def dump16(self, q, t_is_a, pitch):
        off = (64 * pitch + q * 64) if t_is_a else (q * 16 * pitch + 256)
        self.a.ds(f"ds_write_b128 v{self.t[2]}, {v(self.C16[q], 4)} offset:{off}")

    def last_unit(self, n, t_is_a, pitch):
        a = self.a
        self.dump_addrs(pitch)
        a.wait_all(vm=False)

        def mm(T, L, C, k):
            A, B = (T, L) if t_is_a else (L, T)
            op = "v_mfma_f32_32x32x16_bf16" if k == 16 else "v_mfma_f32_16x16x32_bf16"
            a(f"{op} {v(C, k)}, {v(A, 4)}, {v(B, 4)}, {v(C, k)}")
        for q in range(4):
            mm(self.T16[q], self.L16, self.C16[q], 4)
        order = [(0, 0), (0, 1), (1, 0), (1, 1)]
        for k, (tb, lb) in enumerate(order):
            for ks in range(2):
                mm(self.T32[ks][tb], self.L32[ks][lb], self.C32[tb][lb], 16)
            if k == 0:
                for q in range(4):
                    self.dump16(q, t_is_a, pitch)
            if k >= 2:
                self.dump32(*order[k - 2], t_is_a, pitch)
        self.dump32(1, 0, t_is_a, pitch)
        self.dump32(1, 1, t_is_a, pitch)

    def dump(self, t_is_a, pitch):
        self.dump_addrs(pitch)
        for tb in range(2):
            for lb in range(2):
                self.dump32(tb, lb, t_is_a, pitch)
        for q in range(4):
            self.dump16(q, t_is_a, pitch)


class Engine16(Engine):
    def __init__(self, a, V, sW4, sBase, sT, sL, sTmp):
        self.a = a
        self.sW4, self.sBase, self.sT, self.sL, self.sTmp = sW4, sBase, sT, sL, sTmp
        self.oT = [V.alloc() for _ in range(4)]
        self.oL = [V.alloc(), V.alloc()]
        self.aT16 = [V.alloc() for _ in range(4)]
        self.aL16 = V.alloc()
        self.t = [V.alloc() for _ in range(4)]
        base = V.alloc(80, 4)
        self.C = [[base + 4 * (5 * q + l) for l in range(5)] for q in range(4)]
        self.C32 = [[base, base + 16], [base + 32, base + 48]]
        self.C16 = [base + 64 + 4 * k for k in range(4)]
        fr = V.alloc(52, 4)
        self.T32 = [[fr, fr + 4], [fr + 8, fr + 12]]
        self.L32 = [[fr + 16, fr + 20], [fr + 24, fr + 28]]
        self.T16 = [fr + 32 + 4 * k for k in range(4)]
        self.L16 = fr + 48
        self.TF = [fr + 4 * k for k in range(4)]
        self.LF = [[fr + 16 + 4 * k for k in range(5)]]
        self.TG = [fr + 36 + 4 * k for k in range(4)]
        self.n_issued = 0
        self.mpat = None

    def lds_addrs(self):
        a = self.a
        t0, t1, t2, t3 = self.t
        I, G = self.TF[0], self.TF[0] + 1
        a(f"""
        v_and_b32 v{I}, 15, v0
        v_lshrrev_b32 v{G}, 4, v0
        v_lshrrev_b32 v{t0}, 2, v{I}
        v_and_b32 v{t3}, 1, v{I}
        v_lshl_add_u32 v{t3}, v{t3}, 3, s{self.sBase}
        v_lshl_add_u32 v{t1}, v{G}, 3, v{t0}
        v_lshl_add_u32 v{self.aT16[0]}, v{t1}, 7, v{t3}
        v_bfe_u32 v{t1}, v{I}, 3, 1
        v_lshlrev_b32 v{t1}, 2, v{t1}
        v_bfe_u32 v{t2}, v{I}, 1, 1
        v_and_b32 v{t3}, 1, v{G}
        v_lshl_or_b32 v{t1}, v{t3}, 1, v{t1}
        v_xor_b32 v{t1}, v{t2}, v{t1}
        v_lshl_add_u32 v{self.aT16[0]}, v{t1}, 4, v{self.aT16[0]}
        v_xor_b32 v{self.aT16[1]}, 32, v{self.aT16[0]}
        v_xor_b32 v{self.aT16[2]}, 64, v{self.aT16[0]}
        v_xor_b32 v{self.aT16[3]}, 96, v{self.aT16[0]}
        s_add_u32 s{self.sTmp}, s{self.sBase}, 4096
        v_mov_b32 v{t3}, {GLUT}
        v_lshlrev_b32 v{t0}, 1, v{t0}
        v_lshrrev_b32 v{t0}, v{t0}, v{t3}
        v_xor_b32 v{t1}, v{t0}, v{G}
        v_and_b32 v{t1}, 3, v{t1}
        v_lshl_add_u32 v{t2}, v{I}, 6, s{self.sTmp}
        v_lshl_add_u32 v{self.aL16}, v{t1}, 4, v{t2}
        """)

    def Tset(self, n):
        return self.TG if n % 2 else self.TF

    def rdT(self, n, q):
        o = (n % 3) * USZ
        for h in range(2):
            self.a.ds(f"ds_read_b64_tr_b16 {v(self.Tset(n)[q] + 2 * h, 2)}, v{self.aT16[q]} offset:{o + h * 512}", f"t{q}_{n}")

    def rdL(self, n, l):
        o = (n % 3) * USZ
        self.a.ds(f"ds_read_b128 {v(self.LF[0][l], 4)}, v{self.aL16} offset:{o + l * 1024}", f"l{l}_{n}")

    def first_reads(self, n):
        self.a.wait(vm=f"u{n}")
        self.rdL(n, 0)
        for q in range(4):
            self.rdT(n, q)
        for l in range(1, 5):
            self.rdL(n, l)

    def mm(self, n, q, l, t_is_a, z):
        T, L, C = self.Tset(n)[q], self.LF[0][l], self.C[q][l]
        A, B = (T, L) if t_is_a else (L, T)
        self.a(f"v_mfma_f32_16x16x32_bf16 {v(C, 4)}, {v(A, 4)}, {v(B, 4)}, {'0' if z else v(C, 4)}")

    def unit(self, n, t_is_a, zero, has_next, issue_fn):
        a = self.a
        dm = issue_fn() if issue_fn else []
        nx = n + 1
        k = 0
        for l in range(5):
            for q in range(4):
                if k == 0:
                    a.wait(lg=[f"t{j}_{n}" for j in range(4)] + [f"l0_{n}", f"l1_{n}"])
                if k == 6:
                    a.wait(lg=[f"l{j}_{n}" for j in range(5)])
                hi = self.mpat and self.mpat[k % len(self.mpat)] == '1'
                if hi:
                    a("s_setprio 1")
                self.mm(n, q, l, t_is_a, zero)
                if hi:
                    a("s_setprio 0")
                if has_next:
                    if k == 0:
                        a.wait(vm=f"u{nx}")
                    if q == 3:
                        self.rdL(nx, l)
                    elif l in (0, 1) and q in (0, 2) and k > 0:
                        self.rdT(nx, 2 * l + q // 2 - 1)
                    elif k == 8:
                        self.rdT(nx, 3)
                if k >= 6 and dm and q != 3:
                    dm.pop(0)()
                    if k >= 12 and dm:
                        dm.pop(0)()
                k += 1
        while dm:
            dm.pop(0)()

    def dump_addrs(self, pitch):
        t0, t1, t2, t3 = self.t
        self.a(f"""
        v_and_b32 v{t2}, 15, v0
        v_lshrrev_b32 v{t1}, 4, v0
        v_mul_u32_u24 v{t2}, {pitch}, v{t2}
        v_lshl_add_u32 v{t2}, v{t1}, 4, v{t2}
        v_add_u32 v{t2}, s{self.sBase}, v{t2}
        """)

    def dumpC(self, q, l, t_is_a, pitch):
        col, row = (l, q) if t_is_a else (q, l)
        self.a.ds(f"ds_write_b128 v{self.t[2]}, {v(self.C[q][l], 4)} offset:{col * 16 * pitch + row * 64}")

    def last_unit(self, n, t_is_a, pitch):
        a = self.a
        self.dump_addrs(pitch)
        a.wait_all(vm=False)
        order = [(q, l) for l in range(5) for q in range(4)]
        for k, (q, l) in enumerate(order):
            self.mm(n, q, l, t_is_a, False)
            if k >= 5:
                self.dumpC(*order[k - 5], t_is_a, pitch)
        for q, l in order[15:]:
            self.dumpC(q, l, t_is_a, pitch)
```

```python
from asmlib import *
from layout import *
import math

XS = 12288
WSZ = 8192
NR = 5
XB = 0
WB = NR * XS
STAT = WB + NR * WSZ
QIMG = STAT + 4 * 384
QP = 144
HIMG = QIMG + 96 * QP
HP = 208
LDS_K1 = HIMG + 64 * HP


def srd(a, d, lo, hi, size, off=0):
    if off:
        a(f"s_add_u32 s{d}, s{lo}, {off}")
        a(f"s_addc_u32 s{d + 1}, s{hi}, 0")
    else:
        a(f"s_mov_b32 s{d}, s{lo}")
        a(f"s_mov_b32 s{d + 1}, s{hi}")
    a(f"s_mov_b32 s{d + 2}, {size}")
    a(f"s_mov_b32 s{d + 3}, 0x20000")


def bf16r(a, d, x):
    a(f"v_cvt_pk_bf16_f32 v{d}, v{x}, v{x}")
    a(f"v_and_b32 v{d}, 0xffff0000, v{d}")


def gen_k1(st="", pf1=False, lprio=3, NPRE=4, pfc=0, late=7, merged=False, lprio2=0, lprio3=3, npf=28):
    a = Asm()
    done = "s_branch P1_done" if merged else "s_endpgm"
    if merged:
        st = "sc1"
    V = Regs('v', 1)
    sT, sRB, sCB, sW = 16, 17, 18, 19
    SX, SW, SW2, SQ, SH, SKV = 20, 24, 28, 32, 36, 40
    sKC, sOX, sOW, sMX, sMW, sT0, sT1, sRH, sCK = 44, 45, 46, 47, 48, 49, 50, 51, 52
    t0, t1, t2, t3 = [V.alloc() for _ in range(4)]
    vI, vG = V.alloc(), V.alloc()
    ones = V.alloc(4, 4)
    ql, qg, hl, hg = [V.alloc() for _ in range(4)]
    base = V.n
    vXa, vWb, vEx, vEp = [V.alloc() for _ in range(4)]
    vWa, vPa, vQw = V.alloc(), V.alloc(), V.alloc()
    cHa = [V.alloc(), V.alloc()]
    cHw, cGa = V.alloc(), V.alloc()
    chx = V.alloc(4, 4)
    XF = [[V.alloc(4, 4) for _ in range(3)] for _ in range(2)]
    WF = [[V.alloc(4, 4) for _ in range(2)] for _ in range(2)]
    acc = [V.alloc(4, 4) for _ in range(3)]
    cs = V.alloc(4, 4)
    oth = [V.alloc(4, 4) for _ in range(4)]
    big = V.alloc(24, 4)
    tmp = V.alloc(16, 4)
    nv = V.n
    V.n = base
    vXo = [V.alloc() for _ in range(3)]
    vWo = [V.alloc() for _ in range(2)]
    vSw, vHw, vGa, vPf = [V.alloc() for _ in range(4)]
    vSa = [V.alloc(), V.alloc()]
    vHa = [V.alloc() for _ in range(2)]
    SF = [V.alloc(16, 4) for _ in range(2)]
    GR = [V.alloc(4, 4) for _ in range(2)]
    SU = [V.alloc(4, 4) for _ in range(2)]
    lt = V.alloc(16, 4)
    hx = V.alloc(4, 4)
    hG = V.alloc(16, 4)
    nv = max(nv, V.n)

    a(f"""
    s_cmp_ge_u32 s2, 256
    s_cbranch_scc1 K1_end
    s_load_dwordx8 s[4:11], s[0:1], 0
    s_load_dwordx2 s[14:15], s[0:1], 96
    s_load_dwordx2 s[68:69], s[0:1], 48
    s_load_dwordx2 s[12:13], s[0:1], 88
    v_lshrrev_b32 v{t0}, 6, v0
    v_and_b32 v0, 63, v0
    s_and_b32 s{sT}, s2, 7
    v_readfirstlane_b32 s{sW}, v{t0}
    s_mul_i32 s{sT}, s{sT}, 121
    s_add_u32 s{sCB}, s{sT}, 124
    s_lshr_b32 s{sCB}, s{sCB}, 2
    s_add_u32 s{sT}, s{sT}, 3
    s_lshr_b32 s{sT}, s{sT}, 2
    s_lshr_b32 s{sRB}, s2, 3
    s_add_u32 s{sT}, s{sT}, s{sRB}
    s_cmp_ge_u32 s{sT}, s{sCB}
    s_cbranch_scc1 K1_zero
    s_mul_i32 s{sRB}, s{sT}, 745
    s_lshr_b32 s{sRB}, s{sRB}, 13
    s_mul_i32 s{sCB}, s{sRB}, 11
    s_sub_u32 s{sCB}, s{sT}, s{sCB}
    s_and_b32 s{sCK}, s{sW}, 3
    s_lshr_b32 s{sRH}, s{sW}, 2
    s_cmp_lt_u32 s{sW}, 8
    s_cbranch_scc1 K1_comp
    """)

    def store_addrs():
        a(f"""
        v_lshrrev_b32 v{t0}, 3, v0
        v_and_b32 v{t1}, 7, v0
        s_lshl_b32 s{sT0}, s{sW}, 3
        v_add_u32 v{t0}, s{sT0}, v{t0}
        v_mul_u32_u24 v{ql}, {QP}, v{t0}
        v_lshl_add_u32 v{ql}, v{t1}, 4, v{ql}
        v_add_u32 v{ql}, {QIMG}, v{ql}
        s_mul_i32 s{sT1}, s{sRB}, 96
        v_add_u32 v{t0}, s{sT1}, v{t0}
        v_mul_u32_u24 v{qg}, 1280, v{t0}
        v_lshl_add_u32 v{qg}, v{t1}, 4, v{qg}
        s_lshl_b32 s{sT0}, s{sCB}, 7
        v_add_u32 v{qg}, s{sT0}, v{qg}
        s_lshl_b32 s{sT0}, s{sCB}, 2
        s_add_u32 s{sT0}, s{sT0}, s{sCK}
        s_mul_i32 s{sT1}, s{sT0}, 205
        s_lshr_b32 s{sT1}, s{sT1}, 10
        s_mul_i32 s53, s{sT1}, 5
        s_sub_u32 s53, s{sT0}, s53
        s_mul_i32 s54, s{sRB}, 3
        s_add_u32 s54, s54, s{sRH}
        s_lshl_b32 s{sT1}, s{sT1}, 6
        s_add_u32 s{sT1}, s{sT1}, s54
        s_mul_i32 s{sT1}, s{sT1}, {LUNIT}
        s_lshl_b32 s53, s53, 10
        s_add_u32 s{sT1}, s{sT1}, s53
        s_cmp_ge_u32 s54, 64
        s_cselect_b32 s{sT1}, 0x40000000, s{sT1}
        v_lshl_add_u32 v{hg}, v0, 4, s{sT1}
        v_lshlrev_b32 v{t0}, 1, v{vG}
        v_mov_b32 v{t1}, {GLUT}
        v_lshrrev_b32 v{t0}, v{t0}, v{t1}
        v_xor_b32 v{t0}, v{t0}, v0
        v_and_b32 v{t0}, 3, v{t0}
        v_lshrrev_b32 v{t1}, 2, v0
        s_lshl_b32 s{sT0}, s{sCK}, 4
        v_add_u32 v{t1}, s{sT0}, v{t1}
        v_mul_u32_u24 v{hl}, {HP}, v{t1}
        v_lshl_add_u32 v{hl}, v{t0}, 4, v{hl}
        s_lshl_b32 s{sT0}, s{sRH}, 6
        s_add_u32 s{sT0}, s{sT0}, {HIMG}
        v_add_u32 v{hl}, s{sT0}, v{hl}
        """)

    def h_addrs(vHa, vHw, vGa, tt):
        a(f"""
        s_lshl_b32 s{sT0}, s{sW}, 5
        s_add_u32 s{sT0}, s{sT0}, {STAT + 768}
        v_mov_b32 v{vGa}, s{sT0}
        v_lshrrev_b32 v{t1}, 2, v{vI}
        s_lshl_b32 s{sT0}, s{sW}, 3
        v_add_u32 v{t1}, s{sT0}, v{t1}
        v_bfe_u32 v{t2}, v{vI}, 1, 1
        v_lshl_add_u32 v{t2}, v{vG}, 1, v{t2}
        v_and_b32 v{t3}, 1, v{vI}
        v_lshlrev_b32 v{t3}, 3, v{t3}
        """)
        for n in range(2):
            a(f"""
            v_add_u32 v{tt}, {4 * n}, v{t1}
            v_bfe_u32 v{tt + 1}, v{tt}, 1, 3
            v_xor_b32 v{tt + 1}, v{tt + 1}, v{t2}
            v_lshl_add_u32 v{tt}, v{tt}, 7, v{t3}
            v_lshl_add_u32 v{vHa[n]}, v{tt + 1}, 4, v{tt}
            """)
        a(f"""
        s_lshl_b32 s{sT0}, s{sW}, 4
        s_add_u32 s{sT0}, s{sT0}, {HIMG}
        v_mul_u32_u24 v{vHw}, {HP}, v0
        v_add_u32 v{vHw}, s{sT0}, v{vHw}
        """)

    def h_read(vHa, hx):
        for n in range(2):
            a.ds(f"ds_read_b64_tr_b16 {v(hx + 2 * n, 2)}, v{vHa[n]} offset:{XB + (9 % NR) * XS}", "hx")

    def h_gh(vGa, hG):
        for n in range(2):
            a.ds(f"ds_read_b128 {v(hG + 4 * n, 4)}, v{vGa} offset:{16 * n}", "gh")
            a.ds(f"ds_read_b128 {v(hG + 8 + 4 * n, 4)}, v{vGa} offset:{384 + 16 * n}", "gh")

    def h_unpack(hx, ux):
        for k in range(4):
            a(f"v_lshlrev_b32 v{ux + 2 * k}, 16, v{hx + k}")
            a(f"v_and_b32 v{ux + 2 * k + 1}, 0xffff0000, v{hx + k}")

    def h_finish(vHw, hx, ux, hG):
        a.wait(lg="gh")
        for j in range(0, 8, 2):
            a(f"v_pk_fma_f32 {v(ux + j, 2)}, {v(ux + j, 2)}, {v(hG + j, 2)}, {v(hG + 8 + j, 2)}")
        for k in range(4):
            a(f"v_cvt_pk_bf16_f32 v{hx + k}, v{ux + 2 * k}, v{ux + 2 * k + 1}")
        a.ds(f"ds_write_b128 v{vHw}, {v(hx, 4)}")

    def final_store(d):
        a.wait_all(vm=False)
        a("s_barrier")
        a.ds(f"ds_read_b128 {v(d, 4)}, v{ql}", "a")
        a.ds(f"ds_read_b128 {v(d + 4, 4)}, v{hl}", "b")
        a.wait(lg="a")
        a(f"buffer_store_dwordx4 {v(d, 4)}, v{qg}, s[{SQ}:{SQ + 3}], 0 offen {st}")
        a.wait(lg="b")
        a(f"buffer_store_dwordx4 {v(d + 4, 4)}, v{hg}, s[{SH}:{SH + 3}], 0 offen {st}")
        a(done)

    a(f"""
    s_setprio {lprio}
    v_lshrrev_b32 v{t0}, 3, v0
    v_and_b32 v{t1}, 7, v0
    s_mul_i32 s{sT0}, s{sCK}, 24
    v_add_u32 v{t2}, s{sT0}, v{t0}
    v_bfe_u32 v{t3}, v{t2}, 1, 3
    v_xor_b32 v{t3}, v{t3}, v{t1}
    s_mul_i32 s{sT1}, s{sRB}, 96
    v_add_u32 v{t2}, s{sT1}, v{t2}
    v_mul_u32_u24 v{t2}, 1280, v{t2}
    v_lshl_add_u32 v{vXo[0]}, v{t3}, 4, v{t2}
    v_xor_b32 v{vXo[1]}, 64, v{vXo[0]}
    v_add_u32 v{vXo[1]}, 10240, v{vXo[1]}
    v_add_u32 v{vXo[2]}, 20480, v{vXo[0]}
    s_mul_i32 s{sMX}, s{sCK}, 3072
    s_cmp_eq_u32 s{sCB}, 10
    s_cbranch_scc1 K1_lkv
    """)

    def issue(stg, role):
        slot = stg % NR
        tag = f"st{stg}"
        a(f"s_lshl_b32 s{sOX}, s{sKC}, 7")
        a(f"s_add_u32 m0, s{sMX}, {XB + slot * XS}")
        a(f"s_mul_i32 s{sOW}, s{sKC}, {81920 if role == 'Q' else 2560}")
        for e in range(3):
            a.vmem(f"buffer_load_dwordx4 v{vXo[e]}, s[{SX}:{SX + 3}], s{sOX} offen lds", tag)
            if e < 2:
                a(f"s_add_u32 m0, s{sMX}, {XB + slot * XS + 1024 * (e + 1)}")
            else:
                a(f"s_add_u32 m0, s{sMW}, {slot * WSZ}")
            a(f"s_add_u32 s{sKC}, s{sKC}, 1" if e == 0 else "s_nop 0")
        a.vmem(f"buffer_load_dwordx4 v{vWo[0]}, s[{SW}:{SW + 3}], s{sOW} offen lds", tag)
        a(f"s_add_u32 m0, s{sMW}, {slot * WSZ + (1024 if role == 'Q' else 4096)}")
        a(f"s_cmp_eq_u32 s{sKC}, 10")
        if role == 'Q':
            a.vmem(f"buffer_load_dwordx4 v{vWo[1]}, s[{SW}:{SW + 3}], s{sOW} offen lds", tag)
        else:
            a.vmem(f"buffer_load_dwordx4 v{vWo[0]}, s[{SW2}:{SW2 + 3}], s{sOW} offen lds", tag)
        a(f"s_cselect_b32 s{sKC}, 0, s{sKC}")

    def loader(role):
        a.lg, a.vm = [], []
        for i in range(NPRE):
            issue(i, role)
        a(f"""
        v_and_b32 v{vI}, 15, v0
        v_lshrrev_b32 v{vG}, 4, v0
        s_mul_i32 s{sT0}, s{sCK}, 24
        v_add_u32 v{t0}, s{sT0}, v{vI}
        v_bfe_u32 v{t1}, v{t0}, 1, 3
        v_xor_b32 v{t1}, v{t1}, v{vG}
        v_lshlrev_b32 v{t0}, 7, v{t0}
        v_lshl_add_u32 v{vSa[0]}, v{t1}, 4, v{t0}
        v_xor_b32 v{vSa[1]}, 64, v{vSa[0]}
        """)
        for i in range(4):
            a(f"v_mov_b32 v{ones + i}, 0x3f803f80")

        def late_setup():
            a(f"""
            v_lshrrev_b32 v{t0}, 2, v{vI}
            v_cmp_eq_u32 s[56:57], v{t0}, v{vG}
            v_xor_b32 v{t0}, 2, v{t0}
            v_cmp_eq_u32 s[58:59], v{t0}, v{vG}
            v_cmp_gt_u32 vcc, 8, v{vI}
            s_and_b64 s[58:59], s[58:59], vcc
            s_or_b64 s[60:61], s[56:57], s[58:59]
            v_add_u32 v{t0}, 16, v{vI}
            v_cndmask_b32 v{t0}, v{vI}, v{t0}, s[58:59]
            s_mul_i32 s{sT0}, s{sCK}, 96
            s_add_u32 s{sT0}, s{sT0}, {STAT}
            v_lshl_add_u32 v{vSw}, v{t0}, 2, s{sT0}
            v_and_b32 v{t0}, 3, v{vI}
            v_cmp_eq_u32 s[62:63], 1, v{t0}
            v_cmp_eq_u32 s[64:65], 2, v{t0}
            v_cmp_eq_u32 s[66:67], 3, v{t0}
            """)
            if role != 'Q':
                return
            srd(a, SQ, 14, 15, 2621440, WS_Q)
            srd(a, SH, 14, 15, 2621440, WS_HT)
            h_addrs(vHa, vHw, vGa, lt)
            store_addrs()

        def prefetch_w1():
            a(f"""
            v_mul_u32_u24 v{t0}, 205, v0
            v_lshrrev_b32 v{t0}, 10, v{t0}
            v_mul_u32_u24 v{t1}, 5, v{t0}
            v_sub_u32 v{t1}, v0, v{t1}
            v_mul_u32_u24 v{t0}, 3456, v{t0}
            v_lshl_add_u32 v{vPf}, v{t1}, 7, v{t0}
            s_and_b32 s{sT0}, s2, 7
            s_mul_i32 s{sT0}, s{sT0}, 27
            s_lshr_b32 s{sT0}, s{sT0}, 3
            s_lshl_b32 s{sT0}, s{sT0}, 7
            s_lshr_b32 s{sT1}, s2, 3
            s_lshl_b32 s{sT1}, s{sT1}, 2
            s_add_u32 s{sT1}, s{sT1}, s{sCK}
            s_mul_i32 s{sT1}, s{sT1}, {16 * 3456}
            s_add_u32 s70, s{sT0}, s{sT1}
            s_add_u32 s71, s70, {8 * 3456}
            """)
            srd(a, 72, 68, 69, 2048 * 3456)
            a("s_mov_b32 exec_hi, 0xff")
            a.vmem(f"buffer_load_dword v{t2}, v{vPf}, s[72:75], s70 offen", "pf")
            a.vmem(f"buffer_load_dword v{t3}, v{vPf}, s[72:75], s71 offen", "pf")
            a("s_mov_b32 exec_hi, -1")

        if late < 0:
            late_setup()
        for i in range(10):
            a.wait(vm=f"st{i}")
            a("s_barrier")
            if i in (0, 1, 5, 9):
                a.cmt("MARK%d" % {0: 2, 1: 3, 5: 5, 9: 8}[i])
            if i + NPRE < 10:
                issue(i + NPRE, role)
            f = SF[i % 2]
            for blk in range(2):
                for ks in range(2):
                    a.ds(f"ds_read_b128 {v(f + 8 * blk + 4 * ks, 4)}, v{vSa[blk ^ ks]} offset:{XB + (i % NR) * XS + blk * 1024}", f"s{i}")
            if i == 9 and role == 'Q':
                h_read(vHa, hx)

            def stat_mm(i):
                f = SF[i % 2]
                for ks in range(2):
                    for blk in range(2):
                        x = v(f + 8 * blk + 4 * ks, 4)
                        z = i == 0 and ks == 0
                        a(f"v_mfma_f32_16x16x32_bf16 {v(GR[blk], 4)}, {x}, {x}, {'0' if z else v(GR[blk], 4)}")
                        a(f"v_mfma_f32_16x16x32_bf16 {v(SU[blk], 4)}, {v(ones, 4)}, {x}, {'0' if z else v(SU[blk], 4)}")
            if i > 0:
                stat_mm(i - 1)
            if i == 8 and merged:
                a("v_mov_b32 v151, 0")
                a.vmem("global_load_dword v150, v151, s[12:13] sc1", "dbg")
            if i == 9 - NPRE:
                a(f"s_setprio {lprio2}")
            if i == late:
                late_setup()
            if i == 10 - NPRE and pf1:
                prefetch_w1()
            a.wait(lg=f"s{i}")
        stat_mm(9)
        a(f"s_setprio {lprio3}")
        su, sq = [lt + 12, lt + 13], [lt + 14, lt + 15]
        for blk in range(2):
            a(f"v_cndmask_b32 v{sq[blk]}, v{GR[blk]}, v{GR[blk] + 1}, s[62:63]")
            a(f"v_cndmask_b32 v{sq[blk]}, v{sq[blk]}, v{GR[blk] + 2}, s[64:65]")
            a(f"v_cndmask_b32 v{sq[blk]}, v{sq[blk]}, v{GR[blk] + 3}, s[66:67]")
        a(f"v_mov_b32_dpp v{su[1]}, v{SU[1]} row_ror:8 row_mask:0xf bank_mask:0xf")
        a(f"v_mov_b32_dpp v{su[0]}, v{sq[1]} row_ror:8 row_mask:0xf bank_mask:0xf")
        m, e_, mb, r1, m2, x1, x2, r2, A1, B1, G, H = [lt + i for i in range(12)]
        a(f"""
        v_cndmask_b32 v{m}, v{SU[0]}, v{su[1]}, s[58:59]
        v_cndmask_b32 v{e_}, v{sq[0]}, v{su[0]}, s[58:59]
        v_mul_f32 v{m}, {f32(1.0 / 640)}, v{m}
        v_mul_f32 v{e_}, {f32(1.0 / 640)}, v{e_}
        v_fma_f32 v{e_}, -v{m}, v{m}, v{e_}
        v_max_f32 v{e_}, 0, v{e_}
        """)
        bf16r(a, x1, e_)
        bf16r(a, mb, m)
        a(f"v_add_f32 v{x1}, {f32(1e-5)}, v{x1}")
        bf16r(a, x1, x1)
        a(f"v_sqrt_f32 v{x1}, v{x1}")
        a(f"v_sub_f32 v{m2}, v{m}, v{mb}")
        bf16r(a, x1, x1)
        a(f"v_rcp_f32 v{r1}, v{x1}")
        a("s_mov_b64 exec, s[60:61]")
        a(f"v_mul_f32 v{B1}, -v{mb}, v{r1}")
        if role == 'Q':
            c = f32(math.log2(math.e) / math.sqrt(20.0))
            a(f"v_mul_f32 v{A1}, {c}, v{r1}")
            a(f"v_mul_f32 v{G}, {c}, v{B1}")
            a.ds(f"ds_write_b32 v{vSw}, v{A1}")
            a.ds(f"ds_write_b32 v{vSw}, v{G} offset:384")
        else:
            a.ds(f"ds_write_b32 v{vSw}, v{r1}")
            a.ds(f"ds_write_b32 v{vSw}, v{B1} offset:384")
            a.wait_all(vm=False)
            a("s_barrier")
            a(done)
            return
        a(f"v_mul_f32 v{x2}, v{e_}, v{r1}")
        a(f"v_mul_f32 v{m2}, v{m2}, v{r1}")
        a(f"v_mul_f32 v{x2}, v{x2}, v{r1}")
        a.wait_all(vm=False)
        a("s_barrier")
        bf16r(a, x2, x2)
        bf16r(a, m2, m2)
        a(f"v_add_f32 v{x2}, {f32(1e-5)}, v{x2}")
        bf16r(a, x2, x2)
        a(f"v_sqrt_f32 v{x2}, v{x2}")
        a(f"v_sub_f32 v{H}, v{B1}, v{m2}")
        bf16r(a, x2, x2)
        a(f"v_rcp_f32 v{r2}, v{x2}")
        a(f"v_mul_f32 v{G}, v{r1}, v{r2}")
        a(f"v_mul_f32 v{H}, v{H}, v{r2}")
        a.ds(f"ds_write_b32 v{vSw}, v{G} offset:768")
        a.ds(f"ds_write_b32 v{vSw}, v{H} offset:1152")
        a("s_mov_b64 exec, -1")
        h_unpack(hx, SF[0])
        a.wait_all(vm=False)
        a("s_barrier")
        h_gh(vGa, hG)
        h_finish(vHw, hx, SF[0], hG)
        final_store(lt)

    a(f"""
    v_bfe_u32 v{t3}, v{t0}, 1, 1
    v_lshlrev_b32 v{t3}, 2, v{t3}
    v_xor_b32 v{t3}, v{t3}, v{t1}
    s_lshl_b32 s{sT0}, s{sCK}, 4
    v_add_u32 v{t2}, s{sT0}, v{t0}
    v_mul_u32_u24 v{t2}, 1280, v{t2}
    v_lshl_add_u32 v{t2}, v{t3}, 4, v{t2}
    s_lshl_b32 s{sT0}, s{sCB}, 7
    v_add_u32 v{vWo[0]}, s{sT0}, v{t2}
    v_xor_b32 v{vWo[1]}, 32, v{vWo[0]}
    v_add_u32 v{vWo[1]}, 10240, v{vWo[1]}
    s_lshl_b32 s{sMW}, s{sCK}, 11
    s_add_u32 s{sMW}, s{sMW}, {WB}
    s_add_u32 s{sKC}, s{sCB}, 1
    s_cmp_eq_u32 s{sKC}, 10
    s_cselect_b32 s{sKC}, 0, s{sKC}
    s_waitcnt lgkmcnt(0)
    """)
    srd(a, SX, 4, 5, 2621440)
    srd(a, SW, 6, 7, 819200)
    loader('Q')

    a.label("K1_lkv")
    a(f"""
    v_lshrrev_b32 v{t0}, 2, v0
    v_and_b32 v{t1}, 3, v0
    v_bfe_u32 v{t3}, v{t0}, 3, 1
    v_lshlrev_b32 v{t3}, 1, v{t3}
    v_xor_b32 v{t3}, v{t3}, v{t1}
    s_lshl_b32 s{sT0}, s{sCK}, 4
    v_add_u32 v{t0}, s{sT0}, v{t0}
    v_mul_u32_u24 v{t0}, 40, v{t0}
    v_lshl_add_u32 v{vWo[0]}, v{t3}, 4, v{t0}
    s_lshl_b32 s{sMW}, s{sCK}, 10
    s_add_u32 s{sMW}, s{sMW}, {WB}
    s_mov_b32 s{sKC}, 0
    s_waitcnt lgkmcnt(0)
    """)
    srd(a, SX, 4, 5, 2621440)
    srd(a, SW, 8, 9, 25600)
    srd(a, SW2, 10, 11, 25600)
    loader('K')

    a.label("K1_comp")
    if pfc:
        a("s_getpc_b64 s[70:71]")
        a.label("K1_pc")
        a(f"""
        s_lshr_b32 s72, s2, 3
        s_lshl_b32 s72, s72, 3
        s_add_u32 s72, s72, s{sW}
        s_lshl_b32 s72, s72, 8
        s_min_u32 s72, s72, K2_text_end-k1_kernel-256
        s_sub_u32 s70, s70, K1_pc-k1_kernel
        s_subb_u32 s71, s71, 0
        s_add_u32 s70, s70, s72
        s_addc_u32 s71, s71, 0
        s_load_dword s72, s[70:71], 0
        s_load_dword s73, s[70:71], 64
        s_load_dword s74, s[70:71], 128
        s_load_dword s75, s[70:71], 192
        """)
    a(f"""
    v_and_b32 v{vI}, 15, v0
    v_lshrrev_b32 v{vG}, 4, v0
    v_lshrrev_b32 v{t0}, 1, v{vI}
    v_xor_b32 v{t0}, v{t0}, v{vG}
    s_mul_i32 s{sT0}, s{sRH}, {48 * 128}
    v_lshlrev_b32 v{t1}, 7, v{vI}
    v_add_u32 v{t1}, s{sT0}, v{t1}
    v_lshl_add_u32 v{vXa}, v{t0}, 4, v{t1}
    s_and_b32 s55, s{sCK}, 1
    s_lshl_b32 s{sT0}, s55, 6
    v_xor_b32 v{vXa}, s{sT0}, v{vXa}
    s_lshl_b32 s{sT0}, s{sW}, 12
    v_lshl_add_u32 v{vEx}, v0, 4, s{sT0}
    v_xor_b32 v{vEp}, 4096, v{vEx}
    v_lshrrev_b32 v{t0}, 2, v{vI}
    v_lshl_add_u32 v{t0}, v{vG}, 3, v{t0}
    v_bfe_u32 v{t1}, v{vI}, 1, 1
    v_and_b32 v{t2}, 1, v{vG}
    v_lshlrev_b32 v{t2}, 1, v{t2}
    s_cmp_eq_u32 s{sCB}, 10
    s_cbranch_scc1 K1_ckv
    """)

    def reads(i, role):
        slot = i % NR
        b = i % 2
        hd = 512 if role == 'Q' else 256
        out = []
        for h in range(2):
            out.append(f"ds_read_b64_tr_b16 {v(WF[b][0] + 2 * h, 2)}, v{vWa} offset:{slot * WSZ + h * hd}")
        for r in range(3):
            out.append(f"ds_read_b128 {v(XF[b][r], 4)}, v{vXa} offset:{XB + slot * XS + r * 2048}")
        for h in range(2):
            out.append(f"ds_read_b64_tr_b16 {v(WF[b][1] + 2 * h, 2)}, v{vWb} offset:{slot * WSZ + h * hd}")
        return out

    def compute(i, role):
        b = i % 2
        out = []
        for c_ in (1, 0):
            for r in range(4):
                d = oth[r] if c_ else (acc[r] if r < 3 else cs)
                x = XF[b][r] if r < 3 else ones
                w = WF[b][c_]
                A, B = (x, w) if role == 'V' else (w, x)
                out.append(f"v_mfma_f32_16x16x32_bf16 {v(d, 4)}, {v(A, 4)}, {v(B, 4)}, {'0' if i == 0 else v(d, 4)}")
        return out

    def mainloop(role, pre_last=None):
        a.lg, a.vm = [], []
        for i in range(10):
            a("s_barrier")
            if i in (0, 1, 5, 9):
                a.cmt("MARK%d" % {0: 2, 1: 3, 5: 5, 9: 8}[i])
            rd = reads(i, 'Q' if role == 'Q' else 'K')
            mm = compute(i - 1, role) if i > 0 else []
            while rd or mm:
                if mm:
                    a(mm.pop(0))
                if rd:
                    a.ds(rd.pop(0), "r")
            if i == 9 and pre_last:
                pre_last()
            a.wait(lg="r")
        for m_ in compute(9, role):
            a(m_)
        for r in range(4):
            a.ds(f"ds_write_b128 v{vEx}, {v(oth[r], 4)} offset:{1024 * r}")
        a.wait_all(vm=False)
        a("s_barrier")
        for r in (3, 0, 1, 2):
            a.ds(f"ds_read_b128 {v(oth[r], 4)}, v{vEp} offset:{1024 * r}", f"x{r}")

    def merge(r):
        d = acc[r] if r < 3 else cs
        a.wait(lg=f"x{r}")
        for j in range(0, 4, 2):
            a(f"v_pk_add_f32 {v(d + j, 2)}, {v(d + j, 2)}, {v(oth[r] + j, 2)}")

    def set_ones():
        for i in range(4):
            a(f"v_mov_b32 v{ones + i}, 0x3f803f80")

    pa = tmp
    o = tmp + 8

    def scale_qk(i):
        if i == 0:
            merge(3)
        merge(i)
        a.wait(lg=f"pa{i}")
        for j in range(0, 4, 2):
            a(f"v_pk_mul_f32 {v(acc[i] + j, 2)}, {v(acc[i] + j, 2)}, {v(pa + 2 * i, 2)} op_sel_hi:[1,0]")
        for j in range(0, 4, 2):
            a(f"v_pk_fma_f32 {v(acc[i] + j, 2)}, {v(cs + j, 2)}, {v(pa + 2 * i, 2)}, {v(acc[i] + j, 2)} op_sel:[0,1,0]")
        a(f"v_cvt_pk_bf16_f32 v{o + 2 * i}, v{acc[i]}, v{acc[i] + 1}")
        a(f"v_cvt_pk_bf16_f32 v{o + 2 * i + 1}, v{acc[i] + 2}, v{acc[i] + 3}")

    def read_pa():
        for i in range(3):
            a.ds(f"ds_read_b32 v{pa + 2 * i}, v{vPa} offset:{i * 64}", f"pa{i}")
            a.ds(f"ds_read_b32 v{pa + 2 * i + 1}, v{vPa} offset:{384 + i * 64}", f"pa{i}")

    a(f"""
    v_bfe_u32 v{t3}, v{vI}, 3, 1
    v_lshl_or_b32 v{t2}, v{t3}, 2, v{t2}
    s_lshl_b32 s{sT0}, s{sCK}, 1
    v_add_u32 v{t1}, s{sT0}, v{t1}
    v_xor_b32 v{t1}, v{t1}, v{t2}
    v_lshlrev_b32 v{t0}, 7, v{t0}
    v_lshl_add_u32 v{t0}, v{t1}, 4, v{t0}
    v_add_u32 v{t0}, {WB}, v{t0}
    v_and_b32 v{t1}, 1, v{vI}
    v_lshl_add_u32 v{vWa}, v{t1}, 3, v{t0}
    s_lshl_b32 s{sT0}, s55, 12
    v_add_u32 v{vWa}, s{sT0}, v{vWa}
    v_xor_b32 v{vWb}, 32, v{vWa}
    s_mul_i32 s{sT0}, s{sRH}, {48 * 4}
    s_add_u32 s{sT0}, s{sT0}, {STAT}
    v_lshl_add_u32 v{vPa}, v{vI}, 2, s{sT0}
    s_mul_i32 s{sT0}, s{sRH}, {48 * QP}
    s_lshl_b32 s{sT1}, s{sCK}, 5
    s_add_u32 s{sT0}, s{sT0}, s{sT1}
    s_add_u32 s{sT0}, s{sT0}, {QIMG}
    v_mul_u32_u24 v{t0}, {QP}, v{vI}
    v_lshl_add_u32 v{t0}, v{vG}, 3, v{t0}
    v_add_u32 v{vQw}, s{sT0}, v{t0}
    """)
    store_addrs()
    h_addrs(cHa, cHw, cGa, tmp)
    set_ones()
    a("s_waitcnt lgkmcnt(0)")
    srd(a, SQ, 14, 15, 2621440, WS_Q)
    srd(a, SH, 14, 15, 2621440, WS_HT)
    mainloop('Q', lambda: h_read(cHa, chx))
    read_pa()
    h_unpack(chx, big + 16)
    for i in range(3):
        scale_qk(i)
        a.ds(f"ds_write_b64 v{vQw}, {v(o + 2 * i, 2)} offset:{i * 16 * QP}")
    a("s_barrier")
    h_gh(cGa, big)
    h_finish(cHw, chx, big + 16, big)
    final_store(big)

    a.label("K1_ckv")
    a(f"""
    s_and_b32 s{sT0}, s{sCK}, 1
    s_lshl_b32 s{sT0}, s{sT0}, 1
    v_add_u32 v{t1}, s{sT0}, v{t1}
    v_xor_b32 v{t1}, v{t1}, v{t2}
    v_lshlrev_b32 v{t0}, 6, v{t0}
    v_lshl_add_u32 v{t0}, v{t1}, 4, v{t0}
    s_lshr_b32 s{sT0}, s{sCK}, 1
    s_lshl_b32 s{sT0}, s{sT0}, 12
    s_add_u32 s{sT0}, s{sT0}, {WB}
    v_add_u32 v{t0}, s{sT0}, v{t0}
    v_and_b32 v{t1}, 1, v{vI}
    v_lshl_add_u32 v{vWa}, v{t1}, 3, v{t0}
    s_lshl_b32 s{sT0}, s55, 11
    v_add_u32 v{vWa}, s{sT0}, v{vWa}
    v_xor_b32 v{vWb}, 32, v{vWa}
    s_waitcnt lgkmcnt(0)
    """)
    set_ones()
    srd(a, SKV, 14, 15, KV_BYTES, WS_KV)

    def tb_off(i, sd, stile, st_):
        a(f"""
        s_mul_i32 s{sT0}, s{sRB}, 6
        s_mul_i32 s{sT1}, s{sRH}, 3
        s_add_u32 s{sT0}, s{sT0}, s{sT1}
        s_add_u32 s{sT0}, s{sT0}, {i}
        s_lshr_b32 s{sT1}, s{sT0}, 2
        s_mul_i32 s{sd}, s{sT1}, 6144
        s_cmp_ge_u32 s{sT1}, 32
        s_cselect_b32 s{sd}, 0x40000000, s{sd}
        s_bfe_u32 s{sT1}, s{sT0}, 0x10001
        s_mul_i32 s{sT1}, s{sT1}, s{stile}
        s_add_u32 s{sd}, s{sd}, s{sT1}
        s_and_b32 s{sT1}, s{sT0}, 1
        s_mul_i32 s{sT1}, s{sT1}, s{st_}
        s_add_u32 s{sd}, s{sd}, s{sT1}
        """)

    a(f"s_cmp_ge_u32 s{sCK}, 2")
    a("s_cbranch_scc1 K1_v")
    a(f"""
    s_mul_i32 s{sT0}, s{sRH}, {48 * 4}
    s_add_u32 s{sT0}, s{sT0}, {STAT}
    v_lshl_add_u32 v{vPa}, v{vI}, 2, s{sT0}
    v_lshrrev_b32 v{t1}, 1, v{vG}
    v_lshl_add_u32 v{t1}, v{t1}, 5, v{vI}
    v_and_b32 v{t2}, 1, v{vG}
    v_lshlrev_b32 v{t2}, 3, v{t2}
    v_lshl_add_u32 v{t1}, v{t1}, 4, v{t2}
    v_lshlrev_b32 v{t2}, 8, v{vG}
    v_lshl_add_u32 v{t2}, v{vI}, 3, v{t2}
    v_add_u32 v{t2}, 2048, v{t2}
    v_cmp_le_u32 vcc, 2, v{vG}
    v_cndmask_b32 v{t2}, v{t2}, v{ones}, vcc
    s_mov_b32 s54, 512
    s_mov_b32 s55, 128
    s_cmp_eq_u32 s{sCK}, 0
    s_cselect_b64 vcc, -1, 0
    s_cselect_b32 s54, 1024, s54
    s_cselect_b32 s55, 256, s55
    v_cndmask_b32 v{t1}, v{t2}, v{t1}, vcc
    v_cmp_eq_u32 s[56:57], 1, v{vG}
    s_andn2_b64 s[56:57], s[56:57], vcc
    v_mov_b32 v{t2}, 0x3f80
    v_mov_b32 v{t3}, 0
    """)
    for i in range(3):
        tb_off(i, 58 + i, 54, 55)
    mainloop('K')
    read_pa()
    for i in range(3):
        scale_qk(i)
        a(f"v_cndmask_b32 v{o + 2 * i}, v{o + 2 * i}, v{t2}, s[56:57]")
        a(f"v_cndmask_b32 v{o + 2 * i + 1}, v{o + 2 * i + 1}, v{t3}, s[56:57]")
        a(f"buffer_store_dwordx2 {v(o + 2 * i, 2)}, v{t1}, s[{SKV}:{SKV + 3}], s{58 + i} offen {st}")
    a(done)

    a.label("K1_v")
    a(f"""
    s_mul_i32 s{sT0}, s{sRH}, {48 * 4}
    s_add_u32 s{sT0}, s{sT0}, {STAT}
    v_lshl_add_u32 v{vPa}, v{vG}, 4, s{sT0}
    v_lshrrev_b32 v{t1}, 1, v{vG}
    v_mul_u32_u24 v{t1}, 24, v{t1}
    v_add_u32 v{t1}, v{t1}, v{vI}
    s_sub_u32 s{sT0}, s{sCK}, 2
    s_lshl_b32 s{sT0}, s{sT0}, 4
    v_add_u32 v{t3}, s{sT0}, v{vI}
    v_add_u32 v{t1}, s{sT0}, v{t1}
    v_and_b32 v{t2}, 1, v{vG}
    v_lshlrev_b32 v{t2}, 3, v{t2}
    v_lshl_add_u32 v{t1}, v{t1}, 4, v{t2}
    v_add_u32 v{t1}, 3072, v{t1}
    v_cmp_le_u32 vcc, 24, v{t3}
    v_cndmask_b32 v{t1}, v{t1}, v{ones}, vcc
    v_cmp_le_u32 s[56:57], 20, v{t3}
    v_cmp_eq_u32 vcc, 20, v{t3}
    v_cndmask_b32 v{t3}, 0, v{ones}, vcc
    s_mov_b32 s54, 768
    s_mov_b32 s55, {6144 + 1536}
    """)
    for i in range(3):
        tb_off(i, 58 + i, 54, 55)
    mainloop('V')
    pv = big
    for i in range(3):
        a.ds(f"ds_read_b128 {v(pv + 8 * i, 4)}, v{vPa} offset:{i * 64}", f"pa{i}")
        a.ds(f"ds_read_b128 {v(pv + 8 * i + 4, 4)}, v{vPa} offset:{384 + i * 64}", f"pa{i}")
    for i in range(3):
        if i == 0:
            merge(3)
        merge(i)
        a.wait(lg=f"pa{i}")
        for j in range(4):
            a(f"v_mul_f32 v{acc[i] + j}, v{acc[i] + j}, v{pv + 8 * i + j}")
        for j in range(4):
            a(f"v_fmac_f32 v{acc[i] + j}, v{cs + j}, v{pv + 8 * i + 4 + j}")
        a(f"v_cvt_pk_bf16_f32 v{o + 2 * i}, v{acc[i]}, v{acc[i] + 1}")
        a(f"v_cvt_pk_bf16_f32 v{o + 2 * i + 1}, v{acc[i] + 2}, v{acc[i] + 3}")
        a(f"v_cndmask_b32 v{o + 2 * i}, v{o + 2 * i}, v{t3}, s[56:57]")
        a(f"v_cndmask_b32 v{o + 2 * i + 1}, v{o + 2 * i + 1}, v{t3}, s[56:57]")
        a(f"buffer_store_dwordx2 {v(o + 2 * i, 2)}, v{t1}, s[{SKV}:{SKV + 3}], s{58 + i} offen {st}")
    a(done)
    a.label("K1_zero")
    a(f"""
    s_cmp_lg_u32 s2, 255
    s_cbranch_scc1 P1_idle
    s_lshl_b32 s{sT0}, s{sW}, 10
    v_lshl_add_u32 v{t0}, v0, 4, s{sT0}
    s_waitcnt lgkmcnt(0)
    """)
    srd(a, SKV, 14, 15, FLAG_BYTES, WS_FLAG)
    assert FLAGA - WS_FLAG == 12288
    for i in range(4):
        a(f"v_mov_b32 v{ones + i}, 0")
    a(f"buffer_store_dwordx4 {v(ones, 4)}, v{t0}, s[{SKV}:{SKV + 3}], 0 offen {st}")
    if merged:
        for i in range(4):
            a(f"v_cmp_le_u32 vcc, {(242 - i + 3) // 4}, v0")
            a(f"v_cndmask_b32 v{XF[0][0] + i}, 0, 1, vcc")
        for k in range(1, 4):
            a(f"s_mov_b32 s{sT1}, {12288 * k}")
            a(f"buffer_store_dwordx4 {v(XF[0][0], 4)}, v{t0}, s[{SKV}:{SKV + 3}], s{sT1} offen {st}")
    if merged:
        a(f"""
        s_waitcnt vmcnt(0)
        s_barrier
        s_cmp_lg_u32 s{sW}, 8
        s_cbranch_scc1 P1_idle
        v_mov_b32 v151, 0
        v_mov_b32 v150, 1
        global_store_dword v151, v150, s[12:13] sc1
        """)
    a.label("P1_idle")
    a(f"""
    s_waitcnt lgkmcnt(0)
    v_lshlrev_b32 v{t0}, 4, v0
    s_and_b32 s{sT0}, s2, 7
    s_mul_i32 s{sT0}, s{sT0}, 27
    s_lshr_b32 s{sT0}, s{sT0}, 3
    s_lshl_b32 s{sT0}, s{sT0}, 7
    s_lshr_b32 s{sT1}, s2, 3
    s_sub_u32 s{sT1}, 31, s{sT1}
    s_mul_i32 s{sT1}, s{sT1}, {12 * npf}
    s_add_u32 s{sT1}, s{sT1}, s{sW}
    s_mul_i32 s{sT1}, s{sT1}, 3456
    s_add_u32 s{sT0}, s{sT0}, s{sT1}
    s_lshl_b32 m0, s{sW}, 10
    s_mov_b32 exec_hi, 0xff
    """)
    srd(a, 72, 68, 69, 2048 * 3456)
    a.lg, a.vm = [], []
    for n in range(npf):
        a.vmem(f"buffer_load_dwordx4 v{t0}, s[72:75], s{sT0} offen lds", f"p{n}")
        a(f"s_add_u32 s{sT0}, s{sT0}, {12 * 3456}")
        if n >= 12:
            a.wait(vm=f"p{n - 12}")
    a("s_mov_b32 exec_hi, -1")
    a("s_waitcnt vmcnt(0)")
    if not merged:
        a.label("K1_end")
        a("s_endpgm")
        return a.L, nv, 76
    a("s_barrier")

    def cleared(name):
        a("s_mov_b32 s63, 0x40000")
        a.label(name)
        a(f"""
        v_readfirstlane_b32 s{sT0}, v150
        s_cmp_lg_u32 s{sT0}, 0
        s_cbranch_scc1 {name}_x
        global_load_dword v150, v151, s[12:13] sc1
        s_sleep 2
        s_sub_u32 s63, s63, 1
        s_waitcnt vmcnt(0)
        s_cbranch_scc0 {name}
        """)
        a.label(name + "_x")
    def_pos = None
    a(f"""
    s_cmp_lg_u32 s{sW}, 8
    s_cbranch_scc1 P2_entry
    v_mov_b32 v150, 0
    v_mov_b32 v151, 0
    s_waitcnt lgkmcnt(0)
    """)
    cleared("P1_ci")
    a("s_branch P2_entry")
    a.label("K1_end")
    a("s_endpgm")
    a.label("P1_done")
    a(f"""
    s_mov_b64 exec, -1
    v_mov_b32 v151, 0
    s_waitcnt vmcnt(0) lgkmcnt(0)
    s_barrier
    s_cmp_lg_u32 s{sW}, 8
    s_cbranch_scc1 P2_entry
    """)
    cleared("P1_cd")
    a(f"""
    s_lshl_b32 s{sT0}, s{sT}, 2
    s_add_u32 s{sT0}, s{sT0}, {FLAGA}
    v_lshl_add_u32 v151, v0, 10, s{sT0}
    v_mov_b32 v150, 1
    s_mov_b32 exec_hi, 0
    global_store_dword v151, v150, s[14:15] sc1
    s_mov_b32 exec_hi, -1
    """)
    a.label("P2_entry")
    a("s_waitcnt lgkmcnt(0)")
    return a.L, max(nv, 152), 76
```

```python
from asmlib import *
from layout import *
from k1 import srd
from engine import *
import math

KVB = 4 * RING
KVG = 4 * 6144
FLB = KVB + 2 * KVG
LXB = FLB + 256
LDS_K2 = LXB + 2048
RP1 = 272
BIAS = 80 * RP1
NST = 32
QIMG = KVB + 4 * 6144


def rec(r):
    return ((r - 1) % 8) * 6144


def spin_lds(a, name, vaddr, vt, st, want, off=0, nap=1, bound=0x100000):
    a(f"s_mov_b32 s63, {bound}")
    a(f"s_branch {name}_c") if False else None
    a.label(name)
    a(f"""
    ds_read_b32 v{vt}, v{vaddr} offset:{off}
    s_waitcnt lgkmcnt(0)
    v_readfirstlane_b32 s{st}, v{vt}
    s_cmp_ge_u32 s{st}, {want}
    s_cbranch_scc1 {name}_x
    {"s_sleep %d" % nap if nap else ""}
    s_sub_u32 s63, s63, 1
    s_cbranch_scc0 {name}
    """)
    a.label(name + "_x")
    a.lg = []


RP2 = 336


def gen_k2(st="", BARPOS=4, pat="aeeeebeeee2eeee1eeee", eprio=(0, 1, 0, 0),
           fused=True, pf2=True, aprio=(0, 0), mpat=(None, None), nap=4, hs="sc1", hl="", merged=False, deep=1, usepk=False, catch=58, strip=(), amarks=(8, 24, 40, 56), novm=False, nochk=False, dprio=1, nomax=False, spoll=True, onap=2, e16=False):
    a = Asm()
    sX, sIdx, sI, sJ, sA, sB, sW = 24, 25, 26, 27, 28, 29, 30
    SW1, SWS, SB1 = 12, 16, 20
    sT0, sT1, sP, sQ4 = 31, 32, 33, 34
    if not merged:
        a("""
        s_cmp_ge_u32 s2, 256
        s_cbranch_scc1 K2_end
        s_setprio 3
        v_lshrrev_b32 v1, 6, v0
        v_and_b32 v0, 63, v0
        s_nop 0
        v_readfirstlane_b32 s19, v1
        """)
    a(f"""
    s_load_dwordx2 s[8:9], s[0:1], 96
    s_load_dwordx4 s[4:7], s[0:1], 48
    s_load_dwordx2 s[10:11], s[0:1], 32
    s_load_dwordx2 s[64:65], s[0:1], 0
    s_load_dwordx4 s[68:71], s[0:1], 64
    s_load_dwordx2 s[66:67], s[0:1], 80
    s_mov_b32 s{sW}, s19
    s_and_b32 s{sX}, s2, 7
    s_lshr_b32 s{sIdx}, s2, 3
    s_and_b32 s{sQ4}, s{sW}, 3
    s_and_b32 s{sT0}, s{sIdx}, 3
    s_lshl_b32 s{sI}, s{sX}, 2
    s_add_u32 s{sI}, s{sI}, s{sT0}
    s_lshr_b32 s{sJ}, s{sIdx}, 2
    s_cmp_ge_u32 s{sW}, 8
    s_cbranch_scc1 K2_eng
    """)
    SXX, SB2, SOUT = 40, 44, 52

    def final_pre(R):
        t0, t1, t2, el, eg, b2 = [R + i for i in range(6)]
        xr = R + 8
        srd(a, SXX, 64, 65, 2621440)
        srd(a, SB2, 70, 71, 4096)
        srd(a, SOUT, 66, 67, 2621440)
        a(f"""
        s_mul_i32 s48, s{sI}, {64 * 1280}
        s_mul_i32 s49, s{sJ}, 160
        s_add_u32 s48, s48, s49
        s_lshl_b32 s49, s{sI}, 7
        s_lshl_b32 s56, s{sW}, 6
        v_add_u32 v{t0}, s56, v0
        v_mul_u32_u24 v{t1}, 205, v{t0}
        v_lshrrev_b32 v{t1}, 11, v{t1}
        v_mul_u32_u24 v{t2}, 10, v{t1}
        v_sub_u32 v{t2}, v{t0}, v{t2}
        v_mul_u32_u24 v{el}, {RP2}, v{t1}
        v_lshl_add_u32 v{el}, v{t2}, 5, v{el}
        v_mul_u32_u24 v{eg}, 1280, v{t1}
        v_lshl_add_u32 v{eg}, v{t2}, 4, v{eg}
        v_lshlrev_b32 v{t1}, 1, v{t1}
        """)
        a.vmem(f"buffer_load_dwordx4 {v(xr, 4)}, v{eg}, s[{SXX}:{SXX + 3}], s48 offen", "fx")
        a.vmem(f"buffer_load_ushort v{b2}, v{t1}, s[{SB2}:{SB2 + 3}], s49 offen", "fx")
        a(f"v_add_u32 v{t0}, {2 * RING}, v{el}")

    def final_post(R, P):
        t0, t1, t2, el, eg, b2 = [R + i for i in range(6)]
        xr = R + 8
        a(f"s_cmp_ge_u32 s{sW}, 10")
        a("s_cbranch_scc1 K2_end")
        for w in range(4):
            for k in range(2):
                a.ds(f"ds_read_b128 {v(P + 8 * w + 4 * k, 4)}, v{el if w < 2 else t0} offset:{(w % 2) * RING + 16 * k}", f"e{w}")
        xs = P + 32
        a.wait(vm="fx")
        a(f"v_lshlrev_b32 v{b2}, 16, v{b2}")
        for e in range(4):
            a(f"v_lshlrev_b32 v{xs + 2 * e}, 16, v{xr + e}")
            a(f"v_and_b32 v{xs + 2 * e + 1}, 0xffff0000, v{xr + e}")
        for e in range(8):
            a(f"v_add_f32 v{xs + e}, v{xs + e}, v{b2}")
        for w in range(4):
            a.wait(lg=f"e{w}")
            for e in range(0, 8, 2):
                a(f"v_pk_add_f32 {v(xs + e, 2)}, {v(xs + e, 2)}, {v(P + 8 * w + e, 2)}")
        for e in range(4):
            a(f"v_cvt_pk_bf16_f32 v{xr + e}, v{xs + 2 * e}, v{xs + 2 * e + 1}")
        a(f"buffer_store_dwordx4 {v(xr, 4)}, v{eg}, s[{SOUT}:{SOUT + 3}], s48 offen {st}")
        a("s_endpgm")
    V = Regs('v', 1)
    t0, t1, t2, t3 = [V.alloc() for _ in range(4)]
    vL32, vH = V.alloc(), V.alloc()
    aKa, aKb, aV, aV0, idx = [V.alloc() for _ in range(5)]
    aK0 = V.alloc(2)
    aE, aEp, aF, aFp, aLx, aLxp, aIw, aIr, og, og2 = [V.alloc() for _ in range(10)]
    oKV, aCt, one, cnt = [V.alloc() for _ in range(4)]
    sKV, sKM = 35, 36
    QA = [V.alloc(4, 4), V.alloc(4, 4)]
    QB = [V.alloc(2), V.alloc(2)]
    Ka = V.alloc(4, 4)
    Kb = V.alloc(2)
    V1 = V.alloc(4, 4)
    V2 = V.alloc(4, 4)
    S = [V.alloc(16, 4) for _ in range(3)]
    OO = [V.alloc(16, 4), V.alloc(16, 4)]
    O = OO[0]
    nv = V.n
    a(f"""
    s_lshr_b32 s{sP}, s{sW}, 2
    v_and_b32 v{vL32}, 31, v0
    v_lshrrev_b32 v{vH}, 5, v0
    """)
    iA0 = len(a.L)
    a(f"""
    v_mul_u32_u24 v{t1}, 103, v0
    v_lshrrev_b32 v{t1}, 10, v{t1}
    v_mul_u32_u24 v{t2}, 1120, v{t1}
    v_lshl_add_u32 v{t2}, v0, 4, v{t2}
    v_cmp_le_u32 vcc, 6, v0
    v_lshlrev_b32 v{t3}, 4, v0
    v_add_u32 v{t1}, {7 * 1120 + 1024}, v{t3}
    v_add_u32 v{t3}, {6 * 1120 + 1024}, v{t3}
    v_cndmask_b32 v{t3}, v{t3}, v{t1}, vcc
    s_lshl_b32 s{sT0}, s{sI}, 3
    s_add_u32 s{sT0}, s{sT0}, s{sW}
    s_mul_i32 s{sT0}, s{sT0}, {8 * 1280}
    s_mul_i32 s{sT1}, s{sJ}, 160
    s_add_u32 s{sT0}, s{sT0}, s{sT1}
    s_mul_i32 s{sT1}, s{sW}, 1280
    s_add_u32 m0, s{sT1}, {QIMG}
    s_waitcnt lgkmcnt(0)
    """)
    assert WS_Q == 0
    srd(a, SWS, 8, 9, WS_END)
    iA1 = len(a.L)
    a.vmem(f"buffer_load_dwordx4 v{t2}, s[{SWS}:{SWS + 3}], s{sT0} offen lds", "q")
    a(f"s_add_u32 m0, s{sT1}, {QIMG + 1024}")
    a("s_mov_b64 exec, 0xffff")
    a.vmem(f"buffer_load_dwordx4 v{t3}, s[{SWS}:{SWS + 3}], s{sT0} offen lds", "q")
    a("s_mov_b64 exec, -1")
    a(f"""
    v_lshlrev_b32 v{oKV}, 4, v0
    s_mul_i32 s{sKM}, s{sW}, 768
    s_add_u32 m0, s{sKM}, {KVB + rec(0)}
    s_add_u32 s{sKV}, s{sKM}, {WS_KV}
    s_mov_b32 exec_hi, 0xffff
    """)
    a.vmem(f"buffer_load_dwordx4 v{oKV}, s[{SWS}:{SWS + 3}], s{sKV} offen lds", "q")
    a(f"""
    s_mov_b32 exec_hi, -1
    s_lshl_b32 s{sKM}, s{sKM}, 1
    s_add_u32 s{sKV}, s{sKM}, {WS_KV + 6144}
    s_add_u32 s{sKM}, s{sKM}, {KVB}
    """)

    def kv_ops(g):
        def f0():
            a(f"s_add_u32 m0, s{sKM}, {(g % 4) * 12288}")

        def f1():
            a.vmem(f"buffer_load_dwordx4 v{oKV}, s[{SWS}:{SWS + 3}], s{sKV} offen lds", f"g{g}")

        def f2():
            a("s_mov_b32 exec_hi, 0")
            a.vmem(f"buffer_load_dwordx4 v{oKV}, s[{SWS}:{SWS + 3}], s{sKV} offen offset:1024 lds", f"g{g}")
            a("s_mov_b32 exec_hi, -1")

        def f3():
            a(f"s_add_u32 s{sKV}, s{sKV}, 12288")
        return [f0, f1, f2, f3]
    for g in range(2):
        for f in kv_ops(g):
            f()
    a(f"s_setprio {aprio[0]}")
    if aprio[0] != aprio[1]:
        a(f"s_cmp_lt_u32 s{sW}, 4")
        a("s_cbranch_scc1 K2_ap")
        a(f"s_setprio {aprio[1]}")
        a.label("K2_ap")
    iB0 = len(a.L)
    a(f"""
    v_lshlrev_b32 v{aK0}, 4, v0
    v_add_u32 v{aK0}, {KVB}, v{aK0}
    v_lshlrev_b32 v{aK0 + 1}, 3, v0
    v_add_u32 v{aK0 + 1}, {KVB + 2048}, v{aK0 + 1}
    s_lshl_b32 s{sT0}, s{sP}, 10
    v_add_u32 v{aKa}, s{sT0}, v{aK0}
    s_lshl_b32 s{sT0}, s{sP}, 9
    v_add_u32 v{aKb}, s{sT0}, v{aK0 + 1}
    v_and_b32 v{t1}, 3, v{vL32}
    v_min_u32 v{t1}, 1, v{t1}
    v_add_u32 v{t1}, 20, v{t1}
    v_cmp_le_u32 vcc, 20, v{vL32}
    v_mov_b32 v{t0}, 21
    v_cndmask_b32 v{t0}, v{vL32}, v{t0}, vcc
    v_cmp_le_u32 vcc, 24, v{vL32}
    v_cndmask_b32 v{t0}, v{t0}, v{t1}, vcc
    v_cmp_le_u32 vcc, 28, v{vL32}
    v_xor_b32 v{t1}, 1, v{vH}
    v_cndmask_b32 v{t1}, v{vH}, v{t1}, vcc
    v_mad_u32_u24 v{t0}, v{t1}, 24, v{t0}
    v_lshlrev_b32 v{aV0}, 4, v{t0}
    v_add_u32 v{aV0}, {KVB + 3072}, v{aV0}
    s_mul_i32 s{sT0}, s{sP}, 768
    v_add_u32 v{aV}, s{sT0}, v{aV0}
    v_mov_b32 v{idx}, 0xdddddddd
    """)
    a(f"""
    s_xor_b32 s{sT1}, s{sW}, 4
    s_mul_i32 s{sT0}, s{sW}, 3072
    s_add_u32 s{sT0}, s{sT0}, {KVB}
    v_lshl_add_u32 v{aE}, v0, 4, s{sT0}
    s_mul_i32 s{sT0}, s{sT1}, 3072
    s_add_u32 s{sT0}, s{sT0}, {KVB}
    v_lshl_add_u32 v{aEp}, v0, 4, s{sT0}
    v_mov_b32 v{aIr}, v{aEp}
    v_lshl_add_u32 v{aIw}, v{vL32}, 1, s{sT0}
    v_lshl_add_u32 v{aIw}, v{vH}, 8, v{aIw}
    s_lshl_b32 s{sT0}, s{sW}, 2
    s_add_u32 s{sT0}, s{sT0}, {FLB}
    v_mov_b32 v{aF}, s{sT0}
    v_xor_b32 v{aFp}, 16, v{aF}
    s_lshl_b32 s{sT0}, s{sW}, 8
    s_add_u32 s{sT0}, s{sT0}, {LXB}
    v_lshl_add_u32 v{aLx}, v0, 2, s{sT0}
    s_lshl_b32 s{sT0}, s{sT1}, 8
    s_add_u32 s{sT0}, s{sT0}, {LXB}
    v_lshl_add_u32 v{aLxp}, v0, 2, s{sT0}
    s_mul_i32 s{sT0}, s{sI}, 81920
    s_mul_i32 s{sT1}, s{sJ}, 10240
    s_add_u32 s{sT0}, s{sT0}, s{sT1}
    s_mul_i32 s{sT1}, s{sQ4}, 2560
    s_add_u32 s{sT0}, s{sT0}, s{sT1}
    s_lshl_b32 s{sT1}, s{sP}, 6
    s_add_u32 s{sT0}, s{sT0}, s{sT1}
    s_add_u32 s{sT0}, s{sT0}, {WS_OT}
    v_lshrrev_b32 v{t0}, 2, v0
    v_and_b32 v{t1}, 3, v0
    v_lshl_add_u32 v{og}, v{t0}, 7, s{sT0}
    v_lshl_add_u32 v{og}, v{t1}, 4, v{og}
    v_mov_b32 v{t0}, 0
    """)
    a.ds(f"ds_write_b32 v{aF}, v{t0}")
    a(f"v_mov_b32 v{aCt}, {FLB + 96}")
    a(f"v_mov_b32 v{one}, 1")
    for i in range(16):
        a(f"v_mov_b32 v{OO[0] + i}, 0")
        a(f"v_mov_b32 v{OO[1] + i}, 0")
    if merged:
        a.L = a.L[:iA0] + a.L[iB0:] + a.L[iA0:iA1] + ["    s_setprio 3", "    s_barrier", "    ; MARK9"] + a.L[iA1:iB0]

    def rdKa(s_):
        a.ds(f"ds_read_b128 {v(Ka, 4)}, v{aKa} offset:{rec(s_)}", f"Ka{s_}")

    def rdKb(s_):
        a.ds(f"ds_read_b64 {v(Kb, 2)}, v{aKb} offset:{rec(s_)}", f"Kb{s_}")

    def rdV(s_, t):
        a.ds(f"ds_read_b128 {v(V2 if t else V1, 4)}, v{aV} offset:{rec(s_ + t) + t * 1536}", f"V{t}_{s_}")

    def qka(d, x=0):
        a(f"v_mfma_f32_32x32x16_bf16 {v(d, 16)}, {v(Ka, 4)}, {v(QA[x], 4)}, 0")

    def qkb(d, x=0):
        a(f"v_mfma_f32_32x32x8_bf16 {v(d, 16)}, {v(Kb, 2)}, {v(QB[x], 2)}, {v(d, 16)}")

    def pv(d, t, x=0):
        a(f"v_smfmac_f32_32x32x32_bf16 {v(OO[x], 16)}, {v(V2 if t else V1, 4)}, {v(d + 8 * t, 8)}, v{idx}")

    def halfmax(m, src):
        a(f"v_max3_f32 v{m}, v{src}, v{src + 1}, v{src + 2}")
        for k in range(3, 15, 2):
            a(f"v_max3_f32 v{m}, v{m}, v{src + k}, v{src + k + 1}")
        a(f"v_max_f32 v{m}, v{m}, v{src + 15}")

    def crosshalf(m, tmp):
        a(f"v_mov_b32 v{tmp}, v{m}")
        a(f"v_permlane32_swap_b32 v{m}, v{tmp}")
        a(f"v_max_f32 v{m}, v{m}, v{tmp}")

    a(f"""
    v_cmp_le_u32 s[50:51], 32, v0
    s_mul_i32 s{sT0}, s{sP}, {32 * 160}
    s_mul_i32 s{sT1}, s{sQ4}, 40
    s_add_u32 s{sT1}, s{sT1}, {QIMG}
    s_add_u32 s{sT0}, s{sT0}, s{sT1}
    v_mul_u32_u24 v{t2}, 160, v{vL32}
    v_add_u32 v{t0}, s{sT0}, v{t2}
    s_mul_i32 s{sT0}, s{sP}, {32 * 160}
    s_sub_u32 s{sT0}, {32 * 160}, s{sT0}
    s_add_u32 s{sT0}, s{sT0}, s{sT1}
    v_add_u32 v{t1}, s{sT0}, v{t2}
    v_lshl_add_u32 v{t2}, v{vH}, 4, v{t0}
    v_lshl_add_u32 v{t3}, v{vH}, 4, v{t1}
    """)
    def att_sync(name, off):
        if not merged:
            a("s_barrier")
            return
        a("s_mov_b64 exec, 1")
        a(f"ds_add_u32 v{aCt}, v{one} offset:{off}")
        a("s_mov_b64 exec, -1")
        spin_lds(a, name, aCt, cnt, sT0, 8, off, nap=0)
    if merged:
        a.wait(vm="q")
        a.wait_all(vm=False)
    else:
        a.wait_all()
    att_sync("K2_P", 8)
    for x in range(2):
        for h in range(2):
            a.ds(f"ds_read_b64 {v(QA[x] + 2 * h, 2)}, v{(t2, t3)[x]} offset:{8 * h}", "k0")
        a.ds(f"ds_read_b64 {v(QB[x], 2)}, v{(t0, t1)[x]} offset:32", "k0")
    a.ds(f"ds_read_b128 {v(Ka, 4)}, v{aK0} offset:{rec(0)}", "k0")
    a.ds(f"ds_read_b64 {v(Kb, 2)}, v{aK0 + 1} offset:{rec(0)}", "k0")
    rdV(0, 0)
    a.wait(lg="k0")
    if not merged:
        a("s_barrier")


    def chk(g):
        if g == 0:
            return (12, 8) if merged else None
        return 4 * ((g - 1) % 2), 8 * ((g - 1) // 2 + 1)
    qka(S[1], 0)
    qka(S[2], 1)
    for x in range(2):
        a(f"v_cndmask_b32 v{QB[x]}, v{QB[x]}, 0, s[50:51]")
        a(f"v_cndmask_b32 v{QB[x] + 1}, v{QB[x] + 1}, 0, s[50:51]")
    qkb(S[1], 0)
    qkb(S[2], 1)
    rdKa(0)
    rdKb(0)
    ch = []
    for x in range(2):
        sv = a.L
        a.L = []
        m_, tm = (t0, t1) if x == 0 else (t2, t3)
        halfmax(m_, S[1 + x])
        crosshalf(m_, tm)
        a(f"v_cvt_pk_bf16_f32 v{m_}, -v{m_}, 0")
        a(f"v_cndmask_b32 v{QB[x]}, v{QB[x]}, v{m_}, s[50:51]")
        ch.append(a.L)
        a.L = sv
    for l0, l1 in zip(*ch):
        a.L += [l0, l1]
    a.wait(lg="Kb0")
    qka(S[0], 0)
    qkb(S[0], 0)
    if merged:
        a.wait(vm="g0")
        a("s_mov_b64 exec, 1")
        a.ds(f"ds_add_u32 v{aCt}, v{one} offset:12")
        a("s_mov_b64 exec, -1")

    NT = 2 * NST
    queue = []
    late = []
    for t in range(NT):
        s_ = t // 2
        x = t % 2
        cur, nxt, prv = S[t % 3], S[(t + 1) % 3], S[(t + 2) % 3]
        sn = (t + 1) // 2
        relK = x == 0 and s_ + 1 < NST
        e = 0
        if t == catch:
            a(f"s_cmp_lt_u32 s{sW}, 4")
            a("s_cbranch_scc1 K2_catch")
            a("s_setprio 1")
            a.label("K2_catch")
        hold = t % 4 == 0
        g = t // 4
        for k, c in enumerate(pat):
            if hold and k == 1 and chk(g):
                a.ds(f"ds_read_b32 v{cnt}, v{aCt} offset:{chk(g)[0]}")
            if hold and k == BARPOS:
                a.wait_all(vm=not novm)
                if g < 15:
                    a("s_mov_b64 exec, 1")
                    a.ds(f"ds_add_u32 v{aCt}, v{one} offset:{4 * (g % 2)}")
                    a("s_mov_b64 exec, -1")
                if chk(g):
                    a(f"v_readfirstlane_b32 s{sT0}, v{cnt}")
                    a(f"s_cmp_lt_u32 s{sT0}, {chk(g)[1]}")
                    a(f"s_cbranch_scc1 K2_slow{g}") if not nochk else None
                    a.label(f"K2_go{g}")
                if t in amarks:
                    a.cmt("MARK%d" % (1 + amarks.index(t)))
                hold = False
                if g + 2 < 16:
                    late.extend(kv_ops(g + 2))
            if c == 'e':
                a(f"v_exp_f32 v{cur + e}, v{cur + e}")
                e += 1
            elif c == 'a' and t + 1 < NT:
                a.wait(lg=(f"Ka{sn}", f"Kb{sn}"))
                qka(nxt, 1 - x)
                if relK:
                    queue.append(lambda s_=s_: rdKa(s_ + 1))
            elif c == 'b' and t + 1 < NT:
                qkb(nxt, 1 - x)
                if relK:
                    queue.append(lambda s_=s_: rdKb(s_ + 1))
            elif c == '2':
                if t > 0:
                    a.wait(lg=(f"V1_{(t - 1) // 2}", f"V0_{s_}"))
                    pv(prv, 1, 1 - x)
                if x == 0:
                    queue.append(lambda s_=s_: rdV(s_, 1))
            elif c == '1':
                a.wait(lg=f"V0_{s_}")
                pv(cur, 0, x)
                if x == 1 and s_ + 1 < NST:
                    queue.append(lambda s_=s_: rdV(s_ + 1, 0))
            if queue and not hold:
                queue.pop(0)()
            elif late and c == 'e':
                late.pop(0)()
        assert e == 16 and not queue and not late
    pv(S[(NT - 1) % 3], 1, 1)
    a("s_mov_b64 s[60:61], -1")
    for g in range(3):
        a.ds(f"ds_write_b128 v{aE}, {v(OO[1] + 4 * g, 4)} offset:{1024 * g}")
    a.ds(f"ds_write_b32 v{aLx}, v{OO[1] + 12}")
    a.wait_all(vm=False)
    a.ds(f"ds_write_b32 v{aF}, v{one}")
    spin_lds(a, "K2_spinA", aFp, t1, sT0, 1, nap=0)
    for g in range(3):
        a.ds(f"ds_read_b128 {v(OO[1] + 4 * g, 4)}, v{aEp} offset:{1024 * g}", f"y{g}")
    a.ds(f"ds_read_b32 v{OO[1] + 12}, v{aLxp}", "y3")
    for k in range(13):
        a.wait(lg=f"y{k // 4}")
        a(f"v_add_f32 v{O + k}, v{O + k}, v{OO[1] + k}")
    a.label("K2_norm")
    pk = S[0]
    N = S[2]
    a(f"v_rcp_f32 v{t2}, v{O + 12}")
    for k in range(6):
        if k == 4:
            a("s_mov_b32 exec_hi, 0")
        a(f"v_mul_f32 v{N + 2 * k}, v{O + 2 * k}, v{t2}")
        a(f"v_mul_f32 v{N + 2 * k + 1}, v{O + 2 * k + 1}, v{t2}")
        a(f"v_cvt_pk_bf16_f32 v{pk + k}, v{N + 2 * k}, v{N + 2 * k + 1}")
        row = 8 * (k // 2) + 2 * (k % 2)
        a.ds(f"ds_write_b16 v{aIw}, v{pk + k} offset:{row * 64}")
        a.ds(f"ds_write_b16_d16_hi v{aIw}, v{pk + k} offset:{row * 64 + 64}")
    a("s_mov_b32 exec_hi, -1")
    a.wait_all(vm=False)
    d = S[1]
    a.ds(f"ds_read_b128 {v(d, 4)}, v{aIr}", "o0")
    a.ds(f"ds_read_b128 {v(d + 4, 4)}, v{aIr} offset:1024", "o1")
    a.wait(lg="o0")
    a(f"buffer_store_dwordx4 {v(d, 4)}, v{og}, s[{SWS}:{SWS + 3}], 0 offen {hs}")
    a.wait(lg="o1")
    a("s_mov_b64 exec, 0xffff")
    a(f"buffer_store_dwordx4 {v(d + 4, 4)}, v{og}, s[{SWS}:{SWS + 3}], 0 offen offset:2048 {hs}")
    a("s_mov_b64 exec, -1")
    a(f"v_add_f32 v{t2}, |v{O}|, |v{O + 1}|")
    a(f"v_add_f32 v{t3}, |v{O + 2}|, |v{O + 3}|")
    for k in range(4, 12, 2):
        a(f"v_add_f32 v{t2}, v{t2}, |v{O + k}|")
        a(f"v_add_f32 v{t3}, v{t3}, |v{O + k + 1}|")
    a(f"""
    v_add_f32 v{t2}, v{t2}, v{t3}
    v_cmp_nge_f32 vcc, {f32(2.0 ** 120)}, v{t2}
    s_mov_b64 s[52:53], vcc
    v_cmp_nge_f32 vcc, {f32(2.0 ** 64)}, v{O + 12}
    s_or_b64 s[52:53], s[52:53], vcc
    v_cmp_nle_f32 vcc, {f32(2.0 ** -64)}, v{O + 12}
    s_or_b64 vcc, vcc, s[52:53]
    s_and_b64 vcc, vcc, s[60:61]
    s_cbranch_vccnz K2_fallback
    """)
    if not fused:
        a("s_endpgm")
    else:
        a(f"""
        s_mov_b64 exec, 1
        v_mov_b32 v{t0}, {FLB + 68}
        v_mov_b32 v{t1}, 1
        s_lshl_b32 s{sT0}, s{sI}, 5
        s_add_u32 s{sT0}, s{sT0}, s{sJ}
        s_lshl_b32 s{sT0}, s{sT0}, 2
        s_add_u32 s{sT0}, s{sT0}, {FLAGO}
        v_mov_b32 v{t3}, s{sT0}
        s_waitcnt vmcnt(0)
        ds_add_rtn_u32 v{t2}, v{t0}, v{t1}
        s_waitcnt lgkmcnt(0)
        v_cmp_eq_u32 vcc, 7, v{t2}
        s_and_b64 exec, exec, vcc
        s_cbranch_execz K2_nopub
        buffer_store_dword v{t1}, v{t3}, s[{SWS}:{SWS + 3}], 0 offen sc1
        s_mov_b64 exec, 0xff
        s_lshl_b32 s{sT0}, s{sI}, 7
        s_add_u32 s{sT0}, s{sT0}, {FLAGO}
        v_lshl_add_u32 v{t3}, v0, 2, s{sT0}
        s_mov_b32 s63, 0x40000
        """)
        a.label("K2_pollO")
        if spoll:
            a(f"""
            s_load_dwordx8 s[40:47], s[8:9], s{sT0} glc
            s_waitcnt lgkmcnt(0)
            s_and_b32 s40, s40, s41
            s_and_b32 s42, s42, s43
            s_and_b32 s44, s44, s45
            s_and_b32 s46, s46, s47
            s_and_b32 s40, s40, s42
            s_and_b32 s44, s44, s46
            s_and_b32 s40, s40, s44
            s_cmp_eq_u32 s40, 1
            s_cbranch_scc1 K2_pollO_ok
            s_sleep {onap}
            s_sub_u32 s63, s63, 1
            s_cbranch_scc0 K2_pollO
            """)
        else:
            a(f"""
            buffer_load_dword v{t2}, v{t3}, s[{SWS}:{SWS + 3}], 0 offen sc1
            s_waitcnt vmcnt(0)
            v_cmp_ne_u32 vcc, 1, v{t2}
            s_cbranch_vccz K2_pollO_ok
            s_sleep {onap}
            s_sub_u32 s63, s63, 1
            s_cbranch_scc0 K2_pollO
            """)
        a.label("K2_pollO_ok")
        a(f"""
        v_mov_b32 v{t0}, {FLB + 76}
        ds_write_b32 v{t0}, v{one}
        """)
        a.label("K2_nopub")
        a("s_mov_b64 exec, -1")
        a.lg, a.vm = [], []
        final_pre(S[0])
        a("s_barrier")
        final_post(S[0], S[1])

    for g in range(0 if merged else 1, 16):
        a.label(f"K2_slow{g}")
        spin_lds(a, f"K2_sp{g}", aCt, cnt, sT0, chk(g)[1], chk(g)[0])
        a(f"s_branch K2_go{g}")
    a.label("K2_fallback")
    m = t2
    gka, gkb, gv = OO[1], OO[1] + 1, OO[1] + 2
    a(f"""
    s_nop 7
    s_mov_b64 s[60:61], 0
    s_waitcnt vmcnt(0)
    v_cndmask_b32 v{QB[0]}, v{QB[0]}, 0, s[50:51]
    v_add_u32 v{gka}, {WS_KV - KVB}, v{aK0}
    v_add_u32 v{gkb}, {WS_KV - KVB}, v{aK0 + 1}
    v_add_u32 v{gv}, {WS_KV - KVB}, v{aV0}
    v_mov_b32 v{m}, 0xff800000
    s_mov_b32 s57, 0
    """)
    for i in range(16):
        a(f"v_mov_b32 v{O + i}, 0")
    a.label("K2_fb1")
    for T in range(2):
        a(f"buffer_load_dwordx4 {v(Ka, 4)}, v{gka}, s[{SWS}:{SWS + 3}], s57 offen offset:{T * 1024}")
        a(f"buffer_load_dwordx2 {v(Kb, 2)}, v{gkb}, s[{SWS}:{SWS + 3}], s57 offen offset:{T * 512}")
        a("s_waitcnt vmcnt(0)")
        qka(S[0])
        qkb(S[0])
        halfmax(t3, S[0])
        a(f"v_max_f32 v{m}, v{m}, v{t3}")
    a(f"""
    s_add_u32 s57, s57, 6144
    s_cmp_lt_u32 s57, {32 * 6144}
    s_cbranch_scc1 K2_fb1
    """)
    crosshalf(m, t3)
    a("s_mov_b32 s57, 0")
    a.label("K2_fb2")
    a(f"s_add_u32 s58, s57, {6144 + 1536}")
    for T in range(2):
        a(f"buffer_load_dwordx4 {v(Ka, 4)}, v{gka}, s[{SWS}:{SWS + 3}], s57 offen offset:{T * 1024}")
        a(f"buffer_load_dwordx2 {v(Kb, 2)}, v{gkb}, s[{SWS}:{SWS + 3}], s57 offen offset:{T * 512}")
        a(f"buffer_load_dwordx4 {v(V1, 4)}, v{gv}, s[{SWS}:{SWS + 3}], s57 offen offset:{T * 768}")
        a(f"buffer_load_dwordx4 {v(V2, 4)}, v{gv}, s[{SWS}:{SWS + 3}], s58 offen offset:{T * 768}")
        a("s_waitcnt vmcnt(0)")
        qka(S[0])
        qkb(S[0])
        for e in range(16):
            a(f"v_sub_f32 v{S[0] + e}, v{S[0] + e}, v{m}")
        for e in range(16):
            a(f"v_exp_f32 v{S[0] + e}, v{S[0] + e}")
        pv(S[0], 0)
        pv(S[0], 1)
        a("s_nop 7")
    a(f"""
    s_add_u32 s57, s57, 6144
    s_cmp_lt_u32 s57, {32 * 6144}
    s_cbranch_scc1 K2_fb2
    s_nop 15
    s_branch K2_norm
    """)

    a.label("K2_eng")
    a.lg, a.vm = [], []
    V = Regs('v', 1)
    sBase, sT, sL = 35, 36, 37
    E = (Engine16 if e16 else Engine)(a, V, sQ4, sBase, sT, sL, sT0)
    bias, aC = V.alloc(), V.alloc()
    FR = V.alloc(12, 4)
    nv = max(nv, V.n)
    t0, t1, t2, t3 = E.t
    E.dma_addrs_L()
    a(f"""
    v_lshlrev_b32 v{t1}, 2, v0
    v_add_u32 v{t1}, {FLB + 64}, v{t1}
    v_mov_b32 v{aC}, {FLB + 64}
    v_mov_b32 v{t0}, 0
    s_mul_i32 s{sBase}, s{sQ4}, {RING}
    s_mov_b64 exec, 0xffff
    ds_write_b32 v{t1}, v{t0}
    s_mov_b64 exec, -1
    """)

    def poll_mem(name, vaddr, regs, width):
        op = "buffer_load_dword" if width == 1 else "buffer_load_dwordx4"

        def ld(r):
            a(f"{op} {v(r, width)}, v{vaddr}, s[{SWS}:{SWS + 3}], 0 offen sc1")
        a("s_mov_b32 s63, 0x40000")
        for r in regs[:-1]:
            ld(r)
            a(f"s_sleep {nap}")
        a.label(name)
        for k in range(len(regs)):
            ld(regs[k - 1])
            a(f"s_waitcnt vmcnt({len(regs) - 1})")
            r = regs[k]
            if width == 4:
                a(f"v_and_b32 v{r}, v{r}, v{r + 1}")
                a(f"v_and_b32 v{r + 2}, v{r + 2}, v{r + 3}")
                a(f"v_and_b32 v{r}, v{r}, v{r + 2}")
            a(f"v_cmp_ne_u32 vcc, 1, v{r}")
            a(f"s_cbranch_vccz {name}_ok")
            a(f"s_sleep {nap}")
        a("s_sub_u32 s63, s63, 1")
        a(f"s_cbranch_scc0 {name}")
        a.label(name + "_ok")
        a("s_waitcnt vmcnt(0)")

    def poll(name, base, nwords, ldsoff, regs):
        a(f"""
        s_cmp_lg_u32 s{sQ4}, 0
        s_cbranch_scc1 {name}_w
        v_and_b32 v{t0}, {nwords - 1}, v0
        v_lshl_add_u32 v{t0}, v{t0}, 2, s{base}
        """)
        poll_mem(name, t0, regs, 1)
        a(f"""
        v_mov_b32 v{t1}, 1
        ds_write_b32 v{aC}, v{t1} offset:{ldsoff}
        """)
        a.label(name + "_w")
        a(f"v_add_u32 v{t2}, {ldsoff}, v{aC}")
        spin_lds(a, name + "_l", t2, t1, sT0, 1, nap=1)

    def poll_first(name):
        a(f"s_cmp_lg_u32 s{sQ4}, 0")
        a(f"s_cbranch_scc1 {name}_w")
        a(f"s_lshl_b32 s57, s{sI}, 10")
        a(f"s_add_u32 s57, s57, {FLAGA}")
        a(f"v_add_u32 v{t0}, s57, v{E.oL[0]}")
        poll_mem(name, t0, [E.C32[0][0] + 4 * k for k in range(deep)], 4)
        a.label(name + "_w")
        a("s_setprio 0")
        a("s_barrier")

    a(f"s_cmp_ge_u32 s{sIdx}, 27")
    a("s_cbranch_scc1 K2_wot")
    vm0, lg0 = list(a.vm), list(a.lg)
    a(f"""
    s_mul_i32 s{sT0}, s{sX}, 27
    s_add_u32 s{sT0}, s{sT0}, s{sIdx}
    s_lshr_b32 s{sA}, s{sT0}, 3
    s_and_b32 s{sB}, s{sT0}, 7
    s_lshl_b32 s{sT1}, s{sA}, 7
    """)
    E.dma_addrs_T(3456, sT1)
    a(f"""
    s_mul_i32 s{sT}, s{sQ4}, {32 * 3456}
    s_lshl_b32 s{sL}, s{sB}, 6
    s_add_u32 s{sL}, s{sL}, s{sQ4}
    s_mul_i32 s{sL}, s{sL}, {LUNIT}
    s_add_u32 s{sL}, s{sL}, {WS_HT}
    """)
    a("s_waitcnt lgkmcnt(0)")
    srd(a, SWS, 8, 9, WS_END)
    srd(a, SW1, 4, 5, 2048 * 3456)
    g1_ops = lambda: E.issue_ops(SW1, SWS, 4 * 32 * 3456, 4 * LUNIT)

    def run(ops):
        for op in ops:
            op()
    if merged:
        E.n_issued = 3
        for n in range(3):
            run(E.ops_T(n, SW1, 4 * 32 * 3456))
        E.lds_addrs()
        poll_first("K2_pollA")
        for n in range(3):
            run(E.ops_L(n, SWS, 4 * LUNIT))
    else:
        run(g1_ops())
        run(g1_ops())
        E.lds_addrs()
        a("s_barrier")
        a("s_barrier")
        run(g1_ops())
    srd(a, SB1, 6, 7, 3456)
    a(f"v_lshl_add_u32 v{t1}, v0, 1, s{sT1}")
    a.vmem(f"buffer_load_ushort v{bias}, v{t1}, s[{SB1}:{SB1 + 3}], 0 offen", "bias")
    E.first_reads(0)
    a(f"s_setprio {eprio[0]}")
    E.mpat = mpat[0]

    k0 = -2.0 * math.sqrt(2.0 / math.pi) * math.log2(math.e)
    k1 = k0 * 0.044715

    def count_up():
        a.wait_all()
        a("s_mov_b64 exec, 1")
        a(f"v_mov_b32 v{t0}, 1")
        a.ds(f"ds_add_u32 v{aC}, v{t0}")
        a("s_mov_b64 exec, -1")

    def g1_dump():
        a.cmt("MARK1")
        E.last_unit(15, True, RP1)
        a.wait(vm="bias")
        a(f"v_lshlrev_b32 v{bias}, 16, v{bias}")
        a(f"v_lshl_add_u32 v{t1}, v0, 2, s{sBase}")
        a.ds(f"ds_write_b32 v{t1}, v{bias} offset:{BIAS}")
        a.wait_all(vm=False)
        a("s_mov_b64 exec, 1")
        a(f"v_mov_b32 v{t0}, 1")
        a.ds(f"ds_add_u32 v{aC}, v{t0}")
        a("s_mov_b64 exec, -1")

    def g1_tasks():
        tl0, tb0, tl, hi = [E.C16[0] + i for i in range(4)]
        PB = [E.C32[0][0], E.C32[1][0]]
        BB = [E.T32[0][0], E.T32[0][0] + 8]
        Wk = E.T16[0]
        OUT = E.T32[0][0] + 16
        a(f"""
        v_lshrrev_b32 v{t0}, 4, v0
        v_lshlrev_b32 v{t0}, 1, v{t0}
        v_mov_b32 v{t3}, {GLUT}
        v_lshrrev_b32 v{t0}, v{t0}, v{t3}
        v_xor_b32 v{t0}, v{t0}, v0
        v_and_b32 v{t0}, 3, v{t0}
        v_lshlrev_b32 v{t0}, 5, v{t0}
        v_lshrrev_b32 v{t1}, 2, v0
        v_mul_u32_u24 v{tl0}, {RP1}, v{t1}
        v_add_u32 v{tl0}, v{tl0}, v{t0}
        v_add_u32 v{tb0}, s{sBase}, v{t0}
        s_mul_i32 s{sT1}, s{sB}, {AU_STRIDE}
        s_mul_i32 s57, s{sA}, {2 * LUNIT}
        s_add_u32 s{sT1}, s{sT1}, s57
        s_add_u32 s{sT1}, s{sT1}, {WS_AU}
        """)
        spin_lds(a, "K2_spinE", aC, t1, sT0, 4)

        def rd(r):
            p = PB[r % 2]
            a(f"""
            s_add_u32 s57, s{sQ4}, {4 * r}
            s_cmp_ge_u32 s57, 5
            s_cselect_b32 s58, 5, 0
            s_cselect_b32 s59, 128, 0
            s_sub_u32 s58, s57, s58
            s_mul_i32 s58, s58, {16 * RP1}
            s_add_u32 s58, s58, s59
            s_lshl_b32 s{60 + r}, s57, 10
            s_add_u32 s{60 + r}, s{60 + r}, s{sT1}
            v_add_u32 v{tl}, s58, v{tl0}
            v_add_u32 v{hi}, {2 * RING}, v{tl}
            v_add_u32 v{t2}, s59, v{tb0}
            """)
            for w in range(4):
                for k in range(2):
                    a.ds(f"ds_read_b128 {v(p + 8 * w + 4 * k, 4)}, v{tl if w < 2 else hi} offset:{(w % 2) * RING + 16 * k}", f"p{r}")
            for k in range(2):
                a.ds(f"ds_read_b128 {v(BB[r % 2] + 4 * k, 4)}, v{t2} offset:{BIAS + 16 * k}", f"p{r}")

        tg2 = E.T32[0][0] + 28

        def rd2():
            p = PB[0]
            a(f"""
            v_lshrrev_b32 v{t0}, 3, v0
            s_lshl_b32 s57, s{sQ4}, 3
            s_add_u32 s57, s57, 48
            v_add_u32 v{t0}, s57, v{t0}
            v_bfe_u32 v{t1}, v{t0}, 2, 2
            v_lshlrev_b32 v{t1}, 1, v{t1}
            v_mov_b32 v{t2}, {GLUT}
            v_lshrrev_b32 v{t1}, v{t1}, v{t2}
            v_lshlrev_b32 v{t1}, 1, v{t1}
            v_xor_b32 v{t1}, v{t1}, v0
            v_and_b32 v{t1}, 7, v{t1}
            v_lshlrev_b32 v{t1}, 4, v{t1}
            v_mul_u32_u24 v{tl}, {RP1}, v{t0}
            v_add_u32 v{tl}, v{tl}, v{t1}
            v_add_u32 v{hi}, {2 * RING}, v{tl}
            v_add_u32 v{t2}, s{sBase}, v{t1}
            s_lshl_b32 s62, s57, 6
            s_add_u32 s62, s62, s{sT1}
            s_add_u32 s62, s62, {LUNIT}
            v_lshlrev_b32 v{tg2}, 3, v0
            """)
            for w in range(4):
                a.ds(f"ds_read_b128 {v(p + 8 * w, 4)}, v{tl if w < 2 else hi} offset:{(w % 2) * RING + 128}", "p2")
            a.ds(f"ds_read_b128 {v(BB[0], 4)}, v{t2} offset:{BIAS + 128}", "p2")
        kk = E.C16[1]
        a(f"v_mov_b32 v{kk}, {f32(k0)}")
        a(f"v_mov_b32 v{kk + 1}, {f32(k1)}")
        a(f"v_mov_b32 v{kk + 2}, 1.0")
        rd(0)
        for r in range(3):
            n = 8 if r < 2 else 4
            p, w = PB[r % 2], Wk
            x = w + 8
            a.wait(lg=f"p{r}")
            P2 = lambda b, j: v(b + j, 2)
            if usepk:
                for j in range(0, n, 2):
                    a(f"v_pk_add_f32 {P2(p, j)}, {P2(p, j)}, {P2(p + 8, j)}")
                    a(f"v_pk_add_f32 {P2(p + 16, j)}, {P2(p + 16, j)}, {P2(p + 24, j)}")
                for j in range(0, n, 2):
                    a(f"v_pk_add_f32 {P2(p, j)}, {P2(p, j)}, {P2(BB[r % 2], j)}")
                for j in range(0, n, 2):
                    a(f"v_pk_add_f32 {P2(x, j)}, {P2(p, j)}, {P2(p + 16, j)}")
            else:
                for j in range(n):
                    a(f"v_add_f32 v{p + j}, v{p + j}, v{p + 8 + j}")
                    a(f"v_add_f32 v{p + 16 + j}, v{p + 16 + j}, v{p + 24 + j}")
                for j in range(n):
                    a(f"v_add_f32 v{p + j}, v{p + j}, v{BB[r % 2] + j}")
                for j in range(n):
                    a(f"v_add_f32 v{x + j}, v{p + j}, v{p + 16 + j}")
            if r == 0:
                rd(1)
            if r == 1:
                rd2()
            if usepk:
                for j in range(0, n, 2):
                    a(f"v_pk_mul_f32 {P2(w, j)}, {P2(x, j)}, {P2(x, j)}")
                for j in range(0, n, 2):
                    a(f"v_pk_fma_f32 {P2(w, j)}, {P2(w, j)}, {v(kk, 2)}, {v(kk, 2)} op_sel:[0,1,0] op_sel_hi:[1,1,0]")
                for j in range(0, n, 2):
                    a(f"v_pk_mul_f32 {P2(w, j)}, {P2(w, j)}, {P2(x, j)}")
            else:
                for j in range(n):
                    a(f"v_mul_f32 v{w + j}, v{x + j}, v{x + j}")
                for j in range(n):
                    a(f"v_fmamk_f32 v{w + j}, v{w + j}, {f32(k1)}, v{kk}")
                for j in range(n):
                    a(f"v_mul_f32 v{w + j}, v{w + j}, v{x + j}")
            for j in range(n):
                a(f"v_exp_f32 v{w + j}, v{w + j}")
            if usepk:
                for j in range(0, n, 2):
                    a(f"v_pk_add_f32 {P2(w, j)}, {P2(w, j)}, {v(kk + 2, 2)} op_sel_hi:[1,0]")
            else:
                for j in range(n):
                    a(f"v_add_f32 v{w + j}, 1.0, v{w + j}")
            for j in range(n):
                a(f"v_rcp_f32 v{w + j}, v{w + j}")
            if usepk:
                for j in range(0, n, 2):
                    a(f"v_pk_mul_f32 {P2(w, j)}, {P2(w, j)}, {P2(x, j)}")
            else:
                for j in range(n):
                    a(f"v_mul_f32 v{w + j}, v{w + j}, v{x + j}")
            o = OUT + 4 * r
            for j in range(n // 2):
                a(f"v_cvt_pk_bf16_f32 v{o + j}, v{w + 2 * j}, v{w + 2 * j + 1}")
            if r < 2:
                a.vmem(f"buffer_store_dwordx4 {v(o, 4)}, v{E.oL[0]}, s[{SWS}:{SWS + 3}], s{60 + r} offen {hs}", "ust")
            else:
                a.vmem(f"buffer_store_dwordx2 {v(o, 2)}, v{tg2}, s[{SWS}:{SWS + 3}], s62 offen {hs}", "ust")
        count_up()

    def publish(name, sflag):
        spin_lds(a, name, aC, t1, sT0, 8)
        a(f"""
        s_cmp_lg_u32 s{sQ4}, 0
        s_cbranch_scc1 {name}_np
        s_mov_b64 exec, {(1 << RU) - 1}
        v_mov_b32 v{t0}, 1
        v_lshl_add_u32 v{t1}, v0, 10, s{sflag}
        buffer_store_dword v{t0}, v{t1}, s[{SWS}:{SWS + 3}], 0 offen sc1
        s_mov_b64 exec, -1
        """)
        a.label(name + "_np")

    i_strip = len(a.L)
    for n in range(15):
        E.unit(n, True, n == 0, True, g1_ops if n + 3 < 16 else None)
    if strip:
        a.L = a.L[:i_strip] + [ln for ln in a.L[i_strip:] if not any(k in ln for k in strip)]
    a(f"s_setprio {dprio}")
    g1_dump()
    a(f"s_setprio {eprio[1]}")
    g1_tasks()
    if not fused:
        a("s_endpgm")
    else:
        a(f"""
        s_lshl_b32 s57, s{sB}, 5
        s_add_u32 s57, s57, s{sA}
        s_lshl_b32 s57, s57, 2
        s_add_u32 s57, s57, {FLAGU}
        """)
        a.label("K2_merge")
        publish("K2_pubU", 57)
        a.lg, a.vm = [], []
        srd(a, SW1, 68, 69, 1728 * 4096)
        a(f"s_lshl_b32 s{sT1}, s{sI}, 7")
        E.dma_addrs_T(4096, sT1)
        a(f"""
        s_lshl_b32 s{sT}, s{sQ4}, 17
        s_mul_i32 s{sL}, s{sJ}, 74
        s_add_u32 s{sL}, s{sL}, s{sQ4}
        s_mul_i32 s{sL}, s{sL}, {LUNIT}
        s_add_u32 s{sL}, s{sL}, {WS_AU}
        """)

        N2, N3 = 14, 5
        NU = N2 + N3
        base_n = E.n_issued
        assert base_n == 16

        def opsT(n):
            if n == N2:
                a(f"s_mul_i32 s{sT1}, s{sI}, 81920")
                a(f"s_add_u32 s{sT1}, s{sT1}, {WS_OT}")
                E.dma_addrs_T(128, sT1)
                a(f"s_lshl_b32 s{sT}, s{sQ4}, 12")
            if n < N2:
                return E.ops_T(base_n + n, SW1, 4 * 32 * 4096)
            return E.ops_T(base_n + n, SWS, 4 * 4096, hl)

        def opsL(n):
            if n == N2 - 1:
                a(f"s_add_u32 s62, s{sL}, {2 * LUNIT}")
                a(f"s_cmp_ge_u32 s{sQ4}, 2")
                a(f"s_cselect_b32 s{sL}, 0x40000000, s{sL}")
            if n == N2:
                a(f"s_mov_b32 s{sL}, s62")
            return E.ops_L(base_n + n, SWS, 4 * LUNIT, hl)

        a(f"s_setprio {eprio[2]}")
        for n in range(3):
            run(opsT(n))
        a(f"s_lshl_b32 s57, s{sJ}, 7")
        a(f"s_lshl_b32 s58, s{sX}, 10")
        a(f"s_add_u32 s57, s57, s58")
        a(f"s_add_u32 s57, s57, {FLAGU}")
        poll("K2_pollU", 57, 32, 8, [E.C32[0][0] + k for k in range(deep)])
        a("s_setprio 1")
        for n in range(3):
            run(opsL(n))
        E.first_reads(base_n)
        a(f"s_setprio {eprio[2]}")
        E.mpat = mpat[1]
        full = lambda n: (lambda: E.join(opsT(n + 3), opsL(n + 3)))
        NE = N2 - 3
        for n in range(NE):
            if n == NE - 1:
                a.ds(f"ds_read_b32 v{bias}, v{aC} offset:12", "peek")
            E.unit(base_n + n, False, n == 0, True, full(n))
            if n in (4, 9):
                a.cmt("MARK%d" % (8 if n == 4 else 9))
        a.wait(lg="peek")
        a(f"v_cmp_ne_u32 vcc, 1, v{bias}")
        a("s_cbranch_vccnz K2_late")
        st_lg, st_vm = list(a.lg), list(a.vm)
        final_pre(FR)
        for n in range(NE, NU - 1):
            E.unit(base_n + n, False, False, True, full(n) if n + 3 < NU else None)
            if n == N2 - 1:
                a.cmt("MARK6")
                E.mpat = None
        a("s_branch K2_lastu")
        e_lg, e_vm = list(a.lg), list(a.vm)
        a.label("K2_late")
        a.lg, a.vm = st_lg, st_vm
        E.mpat = mpat[1]
        for n in range(NE, N2):
            E.unit(base_n + n, False, False, n + 1 < N2, lambda n=n: opsL(n + 3))
        a(f"s_setprio {eprio[3]}")
        E.mpat = None
        t14 = opsT(N2)
        spin_lds(a, "K2_waitO", aC, t1, sT0, 1, 12, nap=1, bound=0x400000)
        run(t14)
        run(opsT(N2 + 1))
        run(opsT(N2 + 2))
        E.first_reads(base_n + N2)
        final_pre(FR)
        for n in range(N2, NU - 1):
            E.unit(base_n + n, False, False, True, full(n) if n + 3 < NU else None)
        a.label("K2_lastu")
        a.vm = ["fx", "fx"]
        E.last_unit(base_n + NU - 1, False, RP2)
        a.wait_all(vm=False)
        a("s_barrier")
        final_post(FR, E.C32[0][0])

    a.label("K2_wot")
    a.lg, a.vm = lg0, vm0
    a("s_waitcnt lgkmcnt(0)")
    srd(a, SWS, 8, 9, WS_END)
    srd(a, SW1, 10, 11, 819200)
    a(f"""
    s_sub_u32 s{sT0}, s{sIdx}, 27
    s_lshl_b32 s{sT0}, s{sT0}, 2
    s_add_u32 s{sA}, s{sT0}, s{sQ4}
    s_mul_i32 s{sT}, s{sA}, {32 * 1280}
    s_mul_i32 s{sT1}, s{sX}, 160
    s_add_u32 s{sT}, s{sT}, s{sT1}
    s_mul_i32 s{sL}, s{sX}, 74
    s_add_u32 s{sL}, s{sL}, s{sA}
    s_add_u32 s{sL}, s{sL}, 54
    s_mul_i32 s{sL}, s{sL}, {LUNIT}
    s_add_u32 s{sL}, s{sL}, {WS_AU}
    """)
    a("s_setprio 0")
    if merged:
        poll_first("K2_pollB")
    else:
        a("s_barrier")
        a("s_barrier")
    for n in range(5):
        a(f"""
        v_add_u32 v{t0}, {64 * n}, v0
        v_mul_u32_u24 v{t1}, 205, v{t0}
        v_lshrrev_b32 v{t1}, 11, v{t1}
        v_mul_u32_u24 v{t2}, 10, v{t1}
        v_sub_u32 v{t2}, v{t0}, v{t2}
        v_mul_u32_u24 v{t1}, 1280, v{t1}
        v_lshl_add_u32 v{t1}, v{t2}, 4, v{t1}
        s_add_u32 m0, s{sBase}, {1024 * n}
        s_nop 0
        """)
        a.vmem(f"buffer_load_dwordx4 v{t1}, s[{SW1}:{SW1 + 3}], s{sT} offen lds", "wo")
    I, G = E.oT[0], E.oT[1]
    a(f"""
    v_and_b32 v{I}, 15, v0
    v_lshrrev_b32 v{G}, 4, v0
    v_lshrrev_b32 v{t0}, 2, v{I}
    v_lshl_add_u32 v{t1}, v{G}, 3, v{t0}
    v_mul_u32_u24 v{t1}, 160, v{t1}
    v_and_b32 v{t2}, 3, v{I}
    v_lshl_add_u32 v{t1}, v{t2}, 3, v{t1}
    v_add_u32 v{t1}, s{sBase}, v{t1}
    v_lshlrev_b32 v{t0}, 1, v{t0}
    v_mov_b32 v{t2}, {GLUT}
    v_lshrrev_b32 v{t0}, v{t0}, v{t2}
    v_xor_b32 v{t0}, v{t0}, v{G}
    v_and_b32 v{t0}, 3, v{t0}
    v_lshlrev_b32 v{t2}, 6, v{I}
    v_lshl_add_u32 v{t2}, v{t0}, 4, v{t2}
    v_add_u32 v{t3}, 4096, v{t2}
    """)
    a.wait(vm="wo")
    D = E.C32[0][0]
    for dq in range(5):
        for h in range(2):
            a.ds(f"ds_read_b64_tr_b16 {v(D + 4 * dq + 2 * h, 2)}, v{t1} offset:{32 * dq + 640 * h}", f"w{dq}")
    for dq in range(5):
        a.wait(lg=f"w{dq}")
        if dq < 4:
            a.vmem(f"buffer_store_dwordx4 {v(D + 4 * dq, 4)}, v{t2}, s[{SWS}:{SWS + 3}], s{sL} offen offset:{1024 * dq} {hs}", "x")
        else:
            a.vmem(f"buffer_store_dwordx4 {v(D + 4 * dq, 4)}, v{t3}, s[{SWS}:{SWS + 3}], s{sL} offen {hs}", "x")
    pf = []
    if pf2 and merged:
        srd(a, SW1, 4, 5, 2048 * 3456)
        a(f"""
        v_lshlrev_b32 v{t0}, 4, v0
        s_mul_i32 s{sT}, s{sX}, 27
        s_lshr_b32 s{sT}, s{sT}, 3
        s_lshl_b32 s{sT}, s{sT}, 7
        s_add_u32 s{sT1}, s{sA}, 1024
        s_mul_i32 s{sT1}, s{sT1}, 3456
        s_add_u32 s{sT}, s{sT}, s{sT1}
        s_add_u32 m0, s{sBase}, {USZ}
        s_mov_b32 exec_hi, 0xff
        """)
        for n in range(52):
            a.vmem(f"buffer_load_dwordx4 v{t0}, s[{SW1}:{SW1 + 3}], s{sT} offen lds", f"pw{n}")
            a(f"s_add_u32 s{sT}, s{sT}, {20 * 3456}")
            if n >= 16:
                a.wait(vm=f"pw{n - 16}")
        a("s_mov_b32 exec_hi, -1")
    if pf2:
        srd(a, SW1, 68, 69, 1728 * 4096)
        a(f"""
        v_lshrrev_b32 v{t0}, 5, v0
        v_and_b32 v{t1}, 31, v0
        v_lshlrev_b32 v{t0}, 12, v{t0}
        v_lshl_add_u32 v{t0}, v{t1}, 4, v{t0}
        s_lshl_b32 s{sT}, s{sX}, 9
        s_lshl_b32 s{sT1}, s{sA}, 13
        s_add_u32 s{sT}, s{sT}, s{sT1}
        s_add_u32 m0, s{sBase}, {USZ}
        """)
        for n in range(44):
            def one(n=n):
                a.vmem(f"buffer_load_dwordx4 v{t0}, s[{SW1}:{SW1 + 3}], s{sT} offen lds", f"pf{n}")
                a(f"s_add_u32 s{sT}, s{sT}, {40 * 4096}")
                if n >= 12:
                    a.wait(vm=f"pf{n - 12}")
            pf.append(one)
    for f in pf:
        f()
    if fused:
        E.lds_addrs()
        count_up()
        count_up()
        a(f"""
        s_lshl_b32 s57, s{sX}, 5
        s_add_u32 s57, s57, s{sIdx}
        s_lshl_b32 s57, s57, 2
        s_add_u32 s57, s57, {FLAGU}
        s_branch K2_merge
        """)
    a.label("K2_end")
    a("s_endpgm")
    return a.L, nv, 76
```
